```python
import torch

def _softmax(x, axis=-1):
    return torch.softmax(x, dim=axis)
def _gelu(x):
    return torch.nn.functional.gelu(x, approximate="tanh")
def _silu(x):
    return torch.nn.functional.silu(x)
def _sigmoid(x):
    return torch.sigmoid(x)
def _layernorm(x, axis=-1, eps=1e-5):
    m = x.mean(dim=axis, keepdim=True)
    v = x.var(dim=axis, keepdim=True, unbiased=False)
    return (x - m) / torch.sqrt(v + eps)
def _scatter_add(tgt, idx, src, axis=0):
    return tgt.clone().index_add_(axis, idx, src)
def _segment_sum(src, seg, n):
    out = torch.zeros((n,) + src.shape[1:], dtype=src.dtype)
    return out.index_add_(0, seg, src)
def _pad(x, pw):
    flat = tuple(v for pair in reversed(pw) for v in pair)
    return torch.nn.functional.pad(x, flat)

kernel_name = 'gated_mix__mha_block__softmax_full_mha__prompt'

def setup_inputs():

    _w = (lambda a: (lambda t: t.to(torch.bfloat16) if t.is_floating_point() else t)(torch.as_tensor(a)))
    def _A_setup():
        B, S, D, H = 1, 2048, 448, 16
        return {
            "x": _w((lambda *s: torch.randn(*s, dtype=torch.bfloat16) * 0.05)(B, S, D)),
            "wqkv": _w((lambda *s: torch.randn(*s, dtype=torch.bfloat16) * 0.8)(D, 3 * D)),
            "wo": _w((lambda *s: torch.randn(*s, dtype=torch.bfloat16) * 0.05)(D, D)),
        }
    _A_in = _A_setup()

    def _B_setup():
        B, S, D = 1, 2048, 448
        return {
            "x": _w((lambda *s: torch.randn(*s, dtype=torch.bfloat16) * 0.05)(B, S, D)),
            "wqkv": _w((lambda *s: torch.randn(*s, dtype=torch.bfloat16) * 0.8)(D, 3 * D)),
            "wo": _w((lambda *s: torch.randn(*s, dtype=torch.bfloat16) * 0.05)(D, D)),
        }
    _B_in = _B_setup()

    return {
        "A_x": _A_in["x"],
        "A_wqkv": _A_in["wqkv"],
        "A_wo": _A_in["wo"],
        "B_x": _B_in["x"],
        "B_wqkv": _B_in["wqkv"],
        "B_wo": _B_in["wo"],
        "gate_w": _w((lambda *s: torch.randn(*s, dtype=torch.bfloat16) * 0.05)(448) * 16.0),
    }

def reference(A_x, A_wqkv, A_wo, B_x, B_wqkv, B_wo, gate_w):
    def _A_ref(x, wqkv, wo):
        B, S, D = x.shape
        H = 16
        Dh = D // H
        qkv = (lambda x, *d: x.permute(*d))((x @ wqkv).reshape(B, S, 3, H, Dh), 2, 0, 3, 1, 4)
        q, k, v = qkv[0], qkv[1], qkv[2]
        scores = torch.einsum("bhqd,bhkd->bhqk", q, k) * (Dh ** -0.5)
        p = _softmax(scores, axis=-1)
        o = torch.einsum("bhqk,bhkd->bhqd", p, v)
        return (lambda x, *d: x.permute(*d))(o, 0, 2, 1, 3).reshape(B, S, D) @ wo

    def _B_ref(x, wqkv, wo):
        B, S, D = x.shape
        H = 16; Dh = D // H
        qkv = (lambda x, *d: x.permute(*d))((x @ wqkv).reshape(B, S, 3, H, Dh), 2, 0, 3, 1, 4)
        q, k, v = qkv[0], qkv[1], qkv[2]
        scale = Dh ** -0.5
        scores = torch.einsum("bhqd,bhkd->bhqk", q, k) * scale
        p = _softmax(scores, axis=-1)
        o = torch.einsum("bhqk,bhkd->bhqd", p, v)
        return (lambda x, *d: x.permute(*d))(o, 0, 2, 1, 3).reshape(B, S, D) @ wo

    x = A_x
    g = _sigmoid((x * gate_w).sum(-1, keepdims=True))
    a = _A_ref(x, A_wqkv, A_wo)
    b = _B_ref(x, B_wqkv, B_wo)
    return g * a + (1 - g) * b
```

```python
import sys, math

NAME = "gated_mix__mha_block__softmax_full_mha__prompt"
S, D, H, DH = 2048, 448, 16, 28
X_BYTES = S * D * 2
W_BYTES = D * 3 * D * 2
WO_BYTES = D * D * 2
OUT_BYTES = S * D * 2
QF_OFF = 0
KV_OFF = 4 << 20
OF_OFF = 12 << 20
G_OFF = 16 << 20
WS_USED = (16 << 20) + 8192
CSCALE = (28 ** -0.5) * math.log2(math.e)

import struct
def f2u(x): return struct.unpack('<I', struct.pack('<f', x))[0]

class K:
    def __init__(s): s.l = []
    def e(s, t): s.l.append("  " + t)
    def lab(s, t): s.l.append(t + ":")
    def c(s, t): s.l.append("  ; " + t)
    def ex(s, ts):
        for t in ts: s.e(t)
    def nop(s, n):
        while n > 0:
            k = min(n, 16); s.e(f"s_nop {k-1}"); n -= k

def vr(b, n=4): return f"v[{b}:{b+n-1}]"
def mfma(d, a, b, c=None):
    cc = vr(d, 16) if c is None else c
    return f"v_mfma_f32_32x32x16_bf16 {vr(d,16)}, {vr(a)}, {vr(b)}, {cc}"

def common_prologue(k, endlabel):
    k.e("s_cmp_ge_u32 s2, 256")
    k.e(f"s_cbranch_scc1 {endlabel}")
    k.e("s_load_dwordx16 s[8:23], s[0:1], 0")
    k.e("s_load_dwordx4 s[24:27], s[0:1], 64")
    k.e("v_and_b32 v1, 63, v0")
    k.e("v_lshrrev_b32 v2, 6, v0")
    k.e("s_and_b32 s3, s2, 7")
    k.e("s_lshl_b32 s3, s3, 2")
    k.e("v_readfirstlane_b32 s6, v2")
    k.e("s_lshr_b32 s4, s2, 3")
    k.e("s_and_b32 s4, s4, 3")
    k.e("s_add_u32 s3, s3, s4")
    k.e("s_lshr_b32 s5, s2, 5")

def srd(k, b, lo, hi, nbytes):
    k.e(f"s_mov_b32 s{b}, {lo}")
    k.e(f"s_mov_b32 s{b+1}, {hi}")
    k.e(f"s_mov_b32 s{b+2}, {nbytes}")
    k.e(f"s_mov_b32 s{b+3}, 0x20000")

def gen_proj():
    k = K()
    k.lab("proj_kernel")
    common_prologue(k, "L_proj_end")
    k.e("s_and_b32 s7, s3, 15")
    k.e("v_lshrrev_b32 v3, 2, v1")
    k.e("v_mul_u32_u24 v3, 896, v3")
    k.e("v_and_b32 v4, 3, v1")
    k.e("v_lshlrev_b32 v4, 4, v4")
    k.e("v_add_u32 v3, v3, v4")
    k.e("v_and_b32 v4, 31, v1")
    k.e("v_mul_u32_u24 v4, 896, v4")
    k.e("v_lshrrev_b32 v5, 5, v1")
    k.e("v_lshlrev_b32 v6, 6, v5")
    k.e("v_add_u32 v4, v4, v6")
    k.e("v_lshlrev_b32 v7, 4, v1")
    k.e("v_lshlrev_b32 v8, 5, v5")
    k.e("v_bfe_u32 v9, v1, 2, 2")
    k.e("v_add_u32 v8, v8, v9")
    k.e("v_mul_u32_u24 v8, 192, v8")
    k.e("v_bfe_u32 v9, v1, 4, 1")
    k.e("v_lshlrev_b32 v9, 5, v9")
    k.e("v_add_u32 v8, v8, v9")
    k.e("v_and_b32 v9, 3, v1")
    k.e("v_lshlrev_b32 v9, 3, v9")
    k.e("v_add_u32 v8, v8, v9")
    k.e("v_add_u32 v9, 49152, v8")
    k.e("s_mul_i32 s40, s6, 14336")
    k.e("s_mul_i32 s41, s7, 56")
    k.e("s_add_u32 s40, s40, s41")
    k.e("s_lshl_b32 s41, s5, 3")
    k.e("s_add_u32 s41, s41, s6")
    k.e("s_mul_i32 s42, s41, 28672")
    k.e("s_lshl_b32 s43, s6, 10")
    k.e("s_lshl_b32 s44, s2, 3")
    k.e("s_add_u32 s44, s44, s6")
    k.e("s_mul_i32 s45, s44, 896")
    k.e("s_waitcnt lgkmcnt(0)")
    k.e("s_cmp_ge_u32 s3, 16")
    k.e("s_mov_b32 s28, s8")
    k.e("s_mov_b32 s29, s9")
    k.e(f"s_mov_b32 s30, {X_BYTES}")
    k.e("s_mov_b32 s31, 0x20000")
    k.e("s_cselect_b32 s32, s16, s10")
    k.e("s_cselect_b32 s33, s17, s11")
    k.e(f"s_mov_b32 s34, {W_BYTES}")
    k.e("s_mov_b32 s35, 0x20000")
    srd(k, 36, "s26", "s27", WS_USED)
    srd(k, 48, "s8", "s9", X_BYTES)
    srd(k, 52, "s20", "s21", 896)
    XR = 64
    def wload(n):
        k.e(f"s_add_u32 s46, s40, {n*114688}")
        k.e(f"s_add_u32 m0, s43, {n*8192}")
        k.e("s_nop 0")
        k.e("buffer_load_dwordx4 v3, s[32:35], s46 offen lds")
    def xload(c):
        for f in range(4):
            k.e(f"buffer_load_dwordx4 {vr(XR+(c*4+f)*4)}, v4, s[28:31], s42 offen offset:{c*128+f*16}")
    for n in (0,1,2): wload(n)
    for c in (0,1): xload(c)
    for n in (3,4,5): wload(n)
    for c in (2,3): xload(c)
    for n in (6,7,8): wload(n)
    for c in (4,5): xload(c)
    for n in (9,10): wload(n)
    xload(6)
    k.e("buffer_load_dwordx4 v[200:203], v7, s[48:51], s45 offen")
    k.e("buffer_load_dwordx4 v[204:207], v7, s[52:55], 0 offen")
    QA, KA, VA = 16, 32, 48
    WF = 176
    def treads(c, f, buf):
        base = "v8" if c < 4 else "v9"
        cc = c if c < 4 else c - 4
        for seg in range(3):
            for s_ in range(2):
                off = (64*cc + 8*f + 4*s_) * 192 + seg * 64
                r = WF + buf*12 + seg*4 + s_*2
                k.e(f"ds_read_b64_tr_b16 v[{r}:{r+1}], {base} offset:{off}")
    def mm(c, f, buf, first):
        x = XR + (c*4+f)*4
        w = WF + buf*12
        z = "0" if first else None
        k.e(mfma(QA, w, x, z))
        k.e(mfma(KA, w+4, x, z))
        k.e(mfma(VA, x, w+8, z))
    stages = [((0,1), 30), ((2,3), 19), ((4,5), 8), ((6,), 2)]
    step = 0
    for chunks, vc in stages:
        k.e(f"s_waitcnt vmcnt({vc})")
        k.e("s_barrier")
        steps = [(c, f) for c in chunks for f in range(4)]
        treads(*steps[0], step & 1)
        for i, (c, f) in enumerate(steps):
            if i + 1 < len(steps):
                treads(*steps[i+1], (step+1) & 1)
                k.e("s_waitcnt lgkmcnt(6)")
            else:
                k.e("s_waitcnt lgkmcnt(0)")
            mm(c, f, step & 1, step == 0)
            step += 1
    k.e("s_waitcnt vmcnt(0)")
    for i in range(4):
        k.e(f"v_lshlrev_b32 v{208+2*i}, 16, v{200+i}")
        k.e(f"v_and_b32 v{209+2*i}, 0xffff0000, v{200+i}")
        k.e(f"v_lshlrev_b32 v{216+2*i}, 16, v{204+i}")
        k.e(f"v_and_b32 v{217+2*i}, 0xffff0000, v{204+i}")
    k.e("v_mul_f32 v200, v208, v216")
    for i in range(1, 8):
        k.e(f"v_fmac_f32 v200, v{208+i}, v{216+i}")
    for sh in (8, 4, 2, 1):
        k.nop(2)
        k.e(f"v_add_f32_dpp v200, v200, v200 row_ror:{sh} row_mask:0xf bank_mask:0xf")
    k.nop(1)
    k.e("v_readlane_b32 s56, v200, 0")
    k.e("v_readlane_b32 s57, v200, 16")
    k.e("v_readlane_b32 s58, v200, 32")
    k.e("v_readlane_b32 s59, v200, 48")
    k.nop(1)
    k.e("v_mov_b32 v201, s56")
    k.e("v_add_f32 v201, s57, v201")
    k.e("v_add_f32 v201, s58, v201")
    k.e("v_add_f32 v201, s59, v201")
    k.e(f"v_mul_f32 v201, {hex(f2u(-math.log2(math.e)))}, v201")
    k.e("v_exp_f32 v201, v201")
    k.nop(1)
    k.e("v_add_f32 v201, 1.0, v201")
    k.e("v_rcp_f32 v201, v201")
    k.e("s_lshl_b32 s44, s44, 2")
    k.e(f"s_add_u32 s44, s44, {G_OFF}")
    k.e("v_mov_b32 v202, 0")
    k.e("s_mov_b64 exec, 1")
    k.e("buffer_store_dword v201, v202, s[36:39], s44 offen")
    k.e("s_mov_b64 exec, -1")
    QF, KF, VF = 64, 72, 80
    k.e(f"s_mov_b32 s60, {hex(f2u(CSCALE))}")
    k.e("s_mov_b32 s62, 0")
    k.e("s_mov_b32 s63, -1")
    for i in range(16): k.e(f"v_mul_f32 v{QA+i}, s60, v{QA+i}")
    k.e("s_mov_b64 exec, s[62:63]")
    for i in (12,13,14): k.e(f"v_mov_b32 v{KA+i}, 1.0")
    k.e(f"v_mov_b32 v{KA+15}, 0")
    for i in (12,13,14,15): k.e(f"v_mov_b32 v{QA+i}, 0")
    k.e("s_mov_b64 exec, -1")
    for i in range(8): k.e(f"v_cvt_pk_bf16_f32 v{KF+i}, v{KA+2*i}, v{KA+2*i+1}")
    for i in range(8): k.e(f"v_cvt_pk_bf16_f32 v{QF+i}, v{QA+2*i}, v{QA+2*i+1}")
    for i in range(8): k.e(f"v_cvt_pk_bf16_f32 v{VF+i}, v{VA+2*i}, v{VA+2*i+1}")
    SS = 96
    k.e(mfma(SS, KF, QF, "0"))
    k.e(mfma(SS, KF+4, QF+4))
    k.e("v_and_b32 v10, 31, v1")
    k.e("v_mov_b32 v11, 0x3f803f80")
    k.e("v_cmp_eq_u32 vcc, 28, v10")
    k.nop(2)
    k.e("v_cndmask_b32 v11, 0, v11, vcc")
    k.e("s_mov_b32 s64, 0xf0000000")
    k.e("s_mov_b32 s65, 0xf0000000")
    k.e("s_mov_b64 exec, s[64:65]")
    for i in range(8): k.e(f"v_mov_b32 v{VF+i}, v11")
    k.e("s_mov_b64 exec, -1")
    k.e("s_lshl_b32 s66, s3, 18")
    k.e("s_lshl_b32 s67, s5, 15")
    k.e("s_add_u32 s66, s66, s67")
    k.e("s_lshl_b32 s67, s6, 11")
    k.e("s_add_u32 s66, s66, s67")
    k.e(f"s_add_u32 s66, s66, {KV_OFF}")
    k.e("s_add_u32 s67, s66, 16384")
    k.e(f"buffer_store_dwordx4 {vr(KF)}, v7, s[36:39], s66 offen")
    k.e(f"buffer_store_dwordx4 {vr(KF+4)}, v7, s[36:39], s66 offen offset:1024")
    k.e(f"buffer_store_dwordx4 {vr(VF)}, v7, s[36:39], s67 offen")
    k.e(f"buffer_store_dwordx4 {vr(VF+4)}, v7, s[36:39], s67 offen offset:1024")
    k.nop(4)
    k.e(f"v_max3_f32 v12, v{SS}, v{SS+1}, v{SS+2}")
    for i in range(3, 15, 2): k.e(f"v_max3_f32 v12, v12, v{SS+i}, v{SS+i+1}")
    k.e(f"v_max_f32 v12, v12, v{SS+15}")
    k.e("v_mov_b32 v13, v12")
    k.nop(2)
    k.e("v_permlane32_swap_b32 v12, v13")
    k.nop(1)
    k.e("v_max_f32 v12, v12, v13")
    k.e("v_sub_f32 v12, 0, v12")
    k.e("v_cvt_pk_bf16_f32 v13, v12, v12")
    k.e("v_and_b32 v13, 0xffff0000, v13")
    k.e("v_sub_f32 v14, v12, v13")
    k.e("v_cvt_pk_bf16_f32 v15, v14, v14")
    k.e("v_and_b32 v15, 0xffff0000, v15")
    k.e("v_sub_f32 v14, v14, v15")
    k.e("v_mov_b32 v10, 0")
    k.e("s_mov_b64 exec, s[62:63]")
    k.e(f"v_cvt_pk_bf16_f32 v{QF+6}, v13, v15")
    k.e(f"v_cvt_pk_bf16_f32 v{QF+7}, v14, v10")
    k.e("s_mov_b64 exec, -1")
    k.e("s_lshl_b32 s66, s3, 17")
    k.e("s_lshl_b32 s67, s41, 11")
    k.e("s_add_u32 s66, s66, s67")
    k.e(f"buffer_store_dwordx4 {vr(QF)}, v7, s[36:39], s66 offen")
    k.e(f"buffer_store_dwordx4 {vr(QF+4)}, v7, s[36:39], s66 offen offset:1024")
    k.lab("L_proj_end")
    k.e("s_endpgm")
    return k.l, dict(vgpr=224, sgpr=72, lds=88*1024, block=512)

def gen_attn():
    k = K()
    k.lab("attn_kernel")
    common_prologue(k, "L_attn_end")
    k.e("s_lshr_b32 s7, s6, 1")
    k.e("s_and_b32 s28, s6, 1")
    k.e("v_lshlrev_b32 v2, 4, v1")
    k.e("s_lshl_b32 s29, s28, 13")
    k.e("v_add_u32 v3, s29, v2")
    k.e("v_add_u32 v4, 32768, v3")
    k.e("s_waitcnt lgkmcnt(0)")
    srd(k, 36, "s26", "s27", WS_USED)
    k.e("s_lshl_b32 s30, s3, 18")
    k.e(f"s_add_u32 s30, s30, {KV_OFF}")
    k.e("s_add_u32 s40, s26, s30")
    k.e("s_addc_u32 s41, s27, 0")
    k.e("s_mov_b32 s42, 262144")
    k.e("s_mov_b32 s43, 0x20000")
    k.e("s_lshl_b32 s44, s6, 12")
    k.e("s_mov_b32 s45, s44")
    def dma():
        k.e("s_mov_b32 m0, s45")
        k.e("s_nop 0")
        for i in range(4):
            k.e(f"buffer_load_dwordx4 v2, s[40:43], s44 offen offset:{i*1024} lds")
        k.e("s_add_u32 s44, s44, 32768")
        k.e("s_add_u32 s45, s45, 32768")
        k.e("s_and_b32 s45, s45, 0x1ffff")
    QR, OA, OB, S0, S1, PR, KR, VR = 16, 32, 48, 64, 80, 96, 104, 120
    k.e("s_lshl_b32 s46, s3, 17")
    k.e("s_lshl_b32 s47, s5, 14")
    k.e("s_add_u32 s46, s46, s47")
    k.e("s_lshl_b32 s47, s7, 12")
    k.e("s_add_u32 s46, s46, s47")
    dma()
    for i in range(4):
        k.e(f"buffer_load_dwordx4 {vr(QR+4*i)}, v2, s[36:39], s46 offen offset:{i*1024}")
    dma(); dma()
    for i in range(16): k.e(f"v_mov_b32 v{OA+i}, 0")
    for i in range(16): k.e(f"v_mov_b32 v{OB+i}, 0")
    for i in range(8): k.e(f"v_mov_b32 v{PR+i}, 0")
    for i in range(16): k.e(f"v_mov_b32 v{VR+i}, 0")
    k.e("s_waitcnt vmcnt(8)")
    k.e("s_barrier")
    k.e(f"ds_read_b128 {vr(KR)}, v3")
    k.e(f"ds_read_b128 {vr(KR+4)}, v3 offset:1024")
    k.e("s_waitcnt lgkmcnt(0)")
    k.e(mfma(S0, KR, QR, "0"))
    k.e(mfma(S0, KR+4, QR+4))
    k.e("s_mov_b32 s48, 0")
    k.nop(12)
    def slot(Sbuf, pv, sq, extra):
        e = [f"v_exp_f32 v{Sbuf+i}, v{Sbuf+i}" for i in range(16)]
        c = [f"v_cvt_pk_bf16_f32 v{PR+i}, v{Sbuf+2*i}, v{Sbuf+2*i+1}" for i in range(8)]
        O, V = pv; Sd, Kb, Qb = sq
        mPV0 = mfma(O, V, PR); mPV1 = mfma(O, V+4, PR+4)
        mS0 = mfma(Sd, Kb, Qb, "0"); mS1 = mfma(Sd, Kb+4, Qb+4)
        seq = [mPV0, e[0], e[1], e[2], c[0], e[3], e[4], mS0, c[1], e[5], e[6], e[7], c[2], e[8], mS1, e[9], c[3],
               e[10], e[11], e[12], mPV1, e[13], c[4], e[14], c[5], e[15], c[6], c[7]]
        for pos, x in enumerate(seq):
            for y in extra.get(pos, []): k.e(y)
            k.e(x)
    k.e(".p2align 6")
    k.lab("L_attn_loop")
    for t in range(4):
        kb = KR + (t & 1) * 8; kn = KR + ((t + 1) & 1) * 8
        vb = VR + (t & 1) * 8; vp = VR + ((t + 1) & 1) * 8
        pre = []
        if t == 3:
            pre += ["s_waitcnt vmcnt(4)", "s_barrier"]
        if t < 3:
            rk = [f"ds_read_b128 {vr(kn)}, v3 offset:{(t+1)*2048}", f"ds_read_b128 {vr(kn+4)}, v3 offset:{(t+1)*2048+1024}"]
        else:
            rk = [f"ds_read_b128 {vr(kn)}, v4", f"ds_read_b128 {vr(kn+4)}, v4 offset:1024"]
        rv = [f"ds_read_b128 {vr(vb)}, v3 offset:{16384+t*2048}", f"ds_read_b128 {vr(vb+4)}, v3 offset:{16384+t*2048+1024}"]
        ex = {0: pre, 1: [rk[0]], 3: [rk[1]], 5: [rv[0]], 8: [rv[1]]}
        if t == 3:
            ex[10] = ["s_mov_b32 m0, s45"]
            ex[11] = [f"buffer_load_dwordx4 v2, s[40:43], s44 offen lds"]
            ex[12] = [f"buffer_load_dwordx4 v2, s[40:43], s44 offen offset:1024 lds"]
            ex[13] = [f"buffer_load_dwordx4 v2, s[40:43], s44 offen offset:2048 lds"]
            ex[15] = [f"buffer_load_dwordx4 v2, s[40:43], s44 offen offset:3072 lds"]
            ex[16] = ["s_add_u32 s44, s44, 32768", "s_add_u32 s45, s45, 32768", "s_and_b32 s45, s45, 0x1ffff"]
        slot(S0, (OB, vp), (S1, kb, QR+8), ex)
        ex = {0: ["s_waitcnt lgkmcnt(0)"]}
        if t == 3:
            ex[22] = ["v_mov_b32 v3, v4", "v_add_u32 v4, 32768, v4"]
            ex[24] = ["v_and_b32 v4, 0x1ffff, v4", "s_add_u32 s48, s48, 1"]
            ex[26] = ["s_cmp_lt_u32 s48, 8"]
        slot(S1, (OA, vb), (S0, kn, QR), ex)
    k.e("s_cbranch_scc1 L_attn_loop")
    k.nop(2)
    k.e(mfma(OB, VR+8, PR))
    k.e(mfma(OB, VR+12, PR+4))
    k.e("s_waitcnt vmcnt(0)")
    k.e("s_barrier")
    k.nop(12)
    k.e("s_cmp_eq_u32 s28, 0")
    k.e("s_cbranch_scc1 L_attn_noswap")
    for i in range(16): k.e(f"v_swap_b32 v{OA+i}, v{OB+i}")
    k.lab("L_attn_noswap")
    k.e("s_lshl_b32 s29, s6, 12")
    k.e("v_add_u32 v5, s29, v2")
    k.e("s_xor_b32 s29, s6, 1")
    k.e("s_lshl_b32 s29, s29, 12")
    k.e("v_add_u32 v6, s29, v2")
    for i in range(4): k.e(f"ds_write_b128 v5, {vr(OB+4*i)} offset:{i*1024}")
    k.e("s_waitcnt lgkmcnt(0)")
    k.e("s_barrier")
    for i in range(4): k.e(f"ds_read_b128 {vr(S0+4*i)}, v6 offset:{i*1024}")
    k.e("s_waitcnt lgkmcnt(0)")
    for i in range(16): k.e(f"v_add_f32 v{OA+i}, v{OA+i}, v{S0+i}")
    k.e(f"v_mov_b32 v7, v{OA+12}")
    k.e(f"v_mov_b32 v8, v{OA+12}")
    k.nop(2)
    k.e("v_permlane32_swap_b32 v7, v8")
    k.nop(1)
    k.e("v_rcp_f32 v8, v8")
    k.nop(1)
    for i in range(16): k.e(f"v_mul_f32 v{OA+i}, v{OA+i}, v8")
    k.e("s_mov_b32 s62, 0")
    k.e("s_mov_b32 s63, -1")
    k.e("s_mov_b64 exec, s[62:63]")
    for i in (12,13,14,15): k.e(f"v_mov_b32 v{OA+i}, 0")
    k.e("s_mov_b64 exec, -1")
    for i in range(8): k.e(f"v_cvt_pk_bf16_f32 v{PR+i}, v{OA+2*i}, v{OA+2*i+1}")
    k.e("s_lshl_b32 s29, s5, 3")
    k.e("s_add_u32 s29, s29, s6")
    k.e("s_lshl_b32 s29, s29, 16")
    k.e("s_lshl_b32 s30, s3, 11")
    k.e("s_add_u32 s29, s29, s30")
    k.e(f"s_add_u32 s29, s29, {OF_OFF}")
    k.e(f"buffer_store_dwordx4 {vr(PR)}, v2, s[36:39], s29 offen")
    k.e(f"buffer_store_dwordx4 {vr(PR+4)}, v2, s[36:39], s29 offen offset:1024")
    k.lab("L_attn_end")
    k.e("s_endpgm")
    return k.l, dict(vgpr=136, sgpr=72, lds=128*1024, block=512)

def gen_out():
    k = K()
    k.lab("outp_kernel")
    common_prologue(k, "L_outp_end")
    k.e("s_lshr_b32 s7, s6, 2")
    k.e("s_and_b32 s28, s6, 3")
    k.e("v_lshlrev_b32 v2, 4, v1")
    k.e("v_lshrrev_b32 v3, 3, v1")
    k.e("v_bfe_u32 v4, v3, 1, 1")
    k.e("v_lshlrev_b32 v4, 2, v4")
    k.e("v_and_b32 v5, 7, v1")
    k.e("v_xor_b32 v4, v4, v5")
    k.e("v_lshlrev_b32 v4, 4, v4")
    k.e("v_mul_u32_u24 v3, 896, v3")
    k.e("v_add_u32 v3, v3, v4")
    k.e("v_lshrrev_b32 v5, 5, v1")
    k.e("v_lshlrev_b32 v5, 2, v5")
    k.e("v_bfe_u32 v6, v1, 2, 2")
    k.e("v_add_u32 v5, v5, v6")
    k.e("v_lshlrev_b32 v5, 7, v5")
    k.e("v_bfe_u32 v7, v1, 4, 1")
    k.e("v_lshlrev_b32 v7, 1, v7")
    k.e("v_bfe_u32 v8, v1, 1, 1")
    k.e("v_add_u32 v7, v7, v8")
    k.e("v_bfe_u32 v8, v6, 1, 1")
    k.e("v_lshlrev_b32 v8, 2, v8")
    k.e("v_xor_b32 v7, v7, v8")
    k.e("v_lshlrev_b32 v7, 4, v7")
    k.e("v_add_u32 v5, v5, v7")
    k.e("v_and_b32 v7, 1, v1")
    k.e("v_lshlrev_b32 v7, 3, v7")
    k.e("v_add_u32 v5, v5, v7")
    k.e("v_xor_b32 v6, 64, v5")
    k.e("s_mul_i32 s29, s28, 28672")
    k.e("v_add_u32 v5, s29, v5")
    k.e("v_add_u32 v6, s29, v6")
    k.e("s_waitcnt lgkmcnt(0)")
    srd(k, 36, "s26", "s27", WS_USED)
    srd(k, 40, "s12", "s13", WO_BYTES)
    srd(k, 44, "s18", "s19", WO_BYTES)
    srd(k, 48, "s22", "s23", OUT_BYTES)
    k.e("s_mul_i32 s30, s5, 112")
    k.e("s_mul_i32 s31, s6, 7168")
    k.e("s_add_u32 s30, s30, s31")
    k.e("s_lshl_b32 s31, s6, 10")
    OR = 64
    k.e("s_lshl_b32 s32, s3, 1")
    k.e("s_add_u32 s32, s32, s7")
    k.e("s_lshl_b32 s33, s32, 16")
    k.e("s_lshl_b32 s34, s28, 14")
    k.e("s_add_u32 s33, s33, s34")
    k.e(f"s_add_u32 s33, s33, {OF_OFF}")
    def wdma(srd_, n, ldsn):
        k.e(f"s_add_u32 s52, s30, {n*8*7168}")
        k.e(f"s_add_u32 m0, s31, {ldsn*8192}")
        k.e("s_nop 0")
        k.e(f"buffer_load_dwordx4 v3, s[{srd_}:{srd_+3}], s52 offen lds")
    for n in range(7): wdma(40, n, n)
    for n in range(8): wdma(44, n, 7+n)
    for i in range(16):
        if i % 4 == 0 and i > 0:
            k.e(f"s_add_u32 s33, s33, 4096")
        k.e(f"buffer_load_dwordx4 {vr(OR+4*i)}, v2, s[36:39], s33 offen offset:{(i%4)*1024}")
    k.e("v_and_b32 v7, 31, v1")
    k.e("v_lshlrev_b32 v8, 2, v7")
    k.e("s_lshl_b32 s34, s32, 7")
    k.e(f"s_add_u32 s34, s34, {G_OFF}")
    k.e("buffer_load_dword v9, v8, s[36:39], s34 offen")
    A0, A1, WF = 16, 32, 128
    k.e("s_waitcnt vmcnt(17)")
    k.e("s_barrier")
    steps = [(hh, m) for hh in range(8) for m in range(2)]
    def treads(hh, m, buf):
        for ct in range(2):
            for s_ in range(2):
                off = (hh*28 + 16*m + 8*s_) * 128
                r = WF + buf*8 + ct*4 + s_*2
                k.e(f"ds_read_b64_tr_b16 v[{r}:{r+1}], v{5+ct} offset:{off}")
    treads(*steps[0], 0)
    for i, (hh, m) in enumerate(steps):
        if i + 1 < len(steps):
            treads(*steps[i+1], (i+1) & 1)
            k.e(f"s_waitcnt vmcnt({16-i}) lgkmcnt(4)")
        else:
            k.e(f"s_waitcnt vmcnt({16-i}) lgkmcnt(0)")
        w = WF + (i & 1)*8
        z = "0" if i == 0 else None
        k.e(mfma(A0, w, OR+4*i, z))
        k.e(mfma(A1, w+4, OR+4*i, z))
    k.e("s_waitcnt vmcnt(0)")
    k.e("v_sub_f32 v10, 1.0, v9")
    k.e("s_cmp_lt_u32 s28, 2")
    k.e("s_cselect_b64 vcc, -1, 0")
    k.e("v_cndmask_b32 v9, v10, v9, vcc")
    k.e("s_barrier")
    k.nop(8)
    for i in range(16): k.e(f"v_mul_f32 v{A0+i}, v{A0+i}, v9")
    for i in range(16): k.e(f"v_mul_f32 v{A1+i}, v{A1+i}, v9")
    k.e("s_lshl_b32 s29, s7, 15")
    k.e("s_lshl_b32 s30, s28, 12")
    k.e("s_add_u32 s29, s29, s30")
    k.e("v_add_u32 v10, s29, v2")
    for q in range(4): k.e(f"ds_write_b128 v10, {vr(A0+4*q)} offset:{q*1024}")
    for q in range(4): k.e(f"ds_write_b128 v10, {vr(A1+4*q)} offset:{16384+q*1024}")
    k.e("s_waitcnt lgkmcnt(0)")
    k.e("s_barrier")
    k.e("s_bfe_u32 s29, s6, 0x10001")
    k.e("s_and_b32 s30, s6, 1")
    k.e("s_lshl_b32 s31, s7, 15")
    k.e("s_lshl_b32 s34, s29, 14")
    k.e("s_add_u32 s31, s31, s34")
    k.e("s_lshl_b32 s34, s30, 11")
    k.e("s_add_u32 s31, s31, s34")
    k.e("v_add_u32 v10, s31, v2")
    for kq in range(4):
        for q in range(2):
            k.e(f"ds_read_b128 {vr(64+kq*8+q*4)}, v10 offset:{kq*4096+q*1024}")
    k.e("s_waitcnt lgkmcnt(0)")
    for i in range(8):
        k.e(f"v_add_f32 v{64+i}, v{64+i}, v{72+i}")
        k.e(f"v_add_f32 v{80+i}, v{80+i}, v{88+i}")
    for i in range(8): k.e(f"v_add_f32 v{64+i}, v{64+i}, v{80+i}")
    for i in range(4): k.e(f"v_cvt_pk_bf16_f32 v{16+i}, v{64+2*i}, v{65+2*i}")
    k.nop(2)
    k.e("v_permlane32_swap_b32 v16, v18")
    k.e("v_permlane32_swap_b32 v17, v19")
    k.e("v_mul_u32_u24 v11, 896, v7")
    k.e("v_lshrrev_b32 v12, 5, v1")
    k.e("v_lshlrev_b32 v13, 4, v12")
    k.e("v_add_u32 v11, v11, v13")
    k.e("s_lshl_b32 s31, s29, 6")
    k.e("s_lshl_b32 s34, s30, 5")
    k.e("s_add_u32 s31, s31, s34")
    k.e("v_add_u32 v13, s31, v13")
    k.e("v_cmp_gt_u32 vcc, 112, v13")
    k.e("s_mul_i32 s34, s5, 112")
    k.e("s_add_u32 s31, s31, s34")
    k.e("s_mul_i32 s34, s32, 28672")
    k.e("s_add_u32 s31, s31, s34")
    k.e("v_mov_b32 v14, 0x7fffffff")
    k.e("v_cndmask_b32 v11, v14, v11, vcc")
    k.e("buffer_store_dwordx4 v[16:19], v11, s[48:51], s31 offen")
    k.lab("L_outp_end")
    k.e("s_endpgm")
    return k.l, dict(vgpr=144, sgpr=72, lds=15*8192, block=512)

def main(outpath):
    ks = [("proj_kernel", gen_proj()), ("attn_kernel", gen_attn()), ("outp_kernel", gen_out())]
    o = []
    for n, (l, m) in ks:
        o.append(f"; @launch kernel={n} grid=(256,1,1) block=({m['block']},1,1) lds={m['lds']}")
    o.append('.amdgcn_target "amdgcn-amd-amdhsa--gfx950"')
    o.append(".text")
    for n, (l, m) in ks:
        o += [f".globl {n}", ".p2align 8", f".type {n},@function"] + l
    o.append('.section .rodata,"a"')
    for n, (l, m) in ks:
        acc = (m['vgpr'] + 3) // 4 * 4
        o += [".p2align 6", f".amdhsa_kernel {n}", f"  .amdhsa_next_free_vgpr {m['vgpr']}", f"  .amdhsa_next_free_sgpr {m['sgpr']}",
              f"  .amdhsa_accum_offset {acc}", "  .amdhsa_group_segment_fixed_size 0", "  .amdhsa_kernarg_size 80",
              "  .amdhsa_user_sgpr_count 2", "  .amdhsa_user_sgpr_kernarg_segment_ptr 1", "  .amdhsa_system_sgpr_workgroup_id_x 1",
              ".end_amdhsa_kernel"]
    open(outpath, "w").write("\n".join(o) + "\n")

if __name__ == "__main__":
    main(sys.argv[1] if len(sys.argv) > 1 else f"cdna_kernels/{NAME}.s")
```

```python
import sys, math, os, struct

NAME = "gated_mix__mha_block__softmax_full_mha__prompt"
KNAME = NAME + "_kernel"
X_BYTES = 2048 * 448 * 2
W_BYTES = 448 * 1344 * 2
WO_BYTES = 448 * 448 * 2
OUT_BYTES = 2048 * 448 * 2
KV_OFF = 0
OF_OFF = 8 << 20
G_OFF = 12 << 20
FL1_OFF = (12 << 20) + 8192
FL2_OFF = (12 << 20) + 16384
STAMP_OFF = 13 << 20
WS_USED = 14 << 20
CSCALE = (28 ** -0.5) * math.log2(math.e)
STAMP = int(os.environ.get("STAMP", "0"))
STAMPSET = os.environ.get("STAMPSET", "all").split(",")
PREFETCH = int(os.environ.get("PREFETCH", "0"))
ROT = int(os.environ.get("ROT", "1"))
SPIN_MAX = 1 << 18
def f2u(x): return struct.unpack('<I', struct.pack('<f', x))[0]

class K:
    def __init__(s): s.l = []; s.ns = 0; s.tags = []
    def e(s, t): s.l.append("  " + t)
    def lab(s, t): s.l.append(t + ":")
    def nop(s, n):
        while n > 0:
            k = min(n, 16); s.e(f"s_nop {k-1}"); n -= k
    def stamp(s, tag="all"):
        if not STAMP: return
        if tag not in STAMPSET and s.ns > 0: return
        i = s.ns; s.ns += 1
        s.tags.append(tag)
        assert i < 14
        if i == 0:
            s.e("s_memrealtime s[76:77]"); s.e("s_waitcnt lgkmcnt(0)"); s.e("s_mov_b32 s94, s76")
        s.e("s_memtime s[76:77]"); s.e("s_waitcnt lgkmcnt(0)"); s.e(f"s_mov_b32 s{80+i}, s76")
    def stamp_list(s, tag):
        save = s.l; s.l = []
        s.stamp(tag)
        out = [x.strip() for x in s.l]; s.l = save
        return out
    def stamp_flush(s):
        if not STAMP: return
        s.e("s_lshl_b32 s78, s2, 3"); s.e("s_add_u32 s78, s78, s6"); s.e("s_lshl_b32 s78, s78, 6")
        s.e(f"s_add_u32 s78, s78, {STAMP_OFF}")
        s.e("s_memrealtime s[76:77]"); s.e("s_waitcnt lgkmcnt(0)"); s.e("s_mov_b32 s95, s76")
        s.e("v_mov_b32 v0, 0"); s.e("s_mov_b64 exec, 1")
        for i in range(16):
            s.e(f"v_mov_b32 v1, s{80+i}")
            s.e(f"buffer_store_dword v1, v0, s[36:39], s78 offen offset:{4*i}")
            s.e("s_nop 1")
        s.e("s_mov_b64 exec, -1")

def vr(b, n=4): return f"v[{b}:{b+n-1}]"
def mfma(d, a, b, c=None):
    cc = vr(d, 16) if c is None else c
    return f"v_mfma_f32_32x32x16_bf16 {vr(d,16)}, {vr(a)}, {vr(b)}, {cc}"
def srd(k, b, lo, hi, nbytes):
    k.e(f"s_mov_b32 s{b}, {lo}"); k.e(f"s_mov_b32 s{b+1}, {hi}"); k.e(f"s_mov_b32 s{b+2}, {nbytes}"); k.e(f"s_mov_b32 s{b+3}, 0x20000")

def shift_split(k, m, t1, t2, t3, q6, q7):
    k.e(f"v_sub_f32 v{m}, 0, v{m}")
    k.e(f"v_cvt_pk_bf16_f32 v{t1}, v{m}, v{m}")
    k.e(f"v_and_b32 v{t1}, 0xffff0000, v{t1}")
    k.e(f"v_sub_f32 v{t2}, v{m}, v{t1}")
    k.e(f"v_cvt_pk_bf16_f32 v{t3}, v{t2}, v{t2}")
    k.e(f"v_and_b32 v{t3}, 0xffff0000, v{t3}")
    k.e(f"v_sub_f32 v{t2}, v{t2}, v{t3}")
    k.e(f"v_mov_b32 v{m}, 0")
    k.e("s_mov_b64 exec, s[62:63]")
    k.e(f"v_cvt_pk_bf16_f32 v{q6}, v{t1}, v{t3}")
    k.e(f"v_cvt_pk_bf16_f32 v{q7}, v{t2}, v{m}")
    k.e("s_mov_b64 exec, -1")

def poll(k, label, voff, soff, vtmp):
    k.e("s_mov_b32 s58, 0")
    k.lab(label)
    k.e(f"buffer_load_dwordx2 v[{vtmp}:{vtmp+1}], v{voff}, s[36:39], {soff} offen sc1")
    k.lab(label + "_chk")
    k.e("s_waitcnt vmcnt(0)")
    k.e(f"v_cmp_eq_u64 vcc, s[56:57], v[{vtmp}:{vtmp+1}]")
    k.e("s_add_u32 s58, s58, 1")
    k.e(f"s_cmp_ge_u32 s58, {SPIN_MAX}")
    k.e(f"s_cbranch_scc1 {label}_done")
    k.e("s_cmp_eq_u64 vcc, exec")
    k.e(f"s_cbranch_scc0 {label}")
    k.lab(label + "_done")

def gen():
    k = K()
    k.lab(KNAME)
    k.e("s_cmp_ge_u32 s2, 256")
    k.e("s_cbranch_scc1 L_end")
    k.e("s_load_dwordx16 s[8:23], s[0:1], 0")
    k.e("s_load_dwordx4 s[24:27], s[0:1], 64")
    k.e("v_and_b32 v1, 63, v0")
    k.e("v_lshrrev_b32 v2, 6, v0")
    k.e("s_and_b32 s69, s2, 7")
    k.e("s_lshr_b32 s70, s2, 3")
    k.e("v_readfirstlane_b32 s6, v2")
    k.e("s_lshr_b32 s3, s69, 1")
    k.e("s_lshl_b32 s3, s3, 3")
    k.e("s_and_b32 s4, s70, 7")
    k.e("s_add_u32 s3, s3, s4")
    k.e("s_and_b32 s5, s69, 1")
    k.e("s_lshl_b32 s5, s5, 2")
    k.e("s_lshr_b32 s4, s70, 3")
    k.e("s_add_u32 s5, s5, s4")
    k.stamp()
    k.e("s_and_b32 s7, s3, 15")
    k.e("v_lshlrev_b32 v2, 4, v1")
    XS, WKV = 0, 98304
    WOB = 40960
    WQ = 32768
    k.e("v_lshrrev_b32 v3, 3, v1")
    k.e("v_lshrrev_b32 v4, 1, v3")
    k.e("v_and_b32 v5, 7, v1")
    k.e("v_xor_b32 v4, v4, v5")
    k.e("v_lshlrev_b32 v4, 4, v4")
    k.e("v_mul_u32_u24 v3, 896, v3")
    k.e("v_add_u32 v3, v3, v4")
    k.e("v_xor_b32 v4, 64, v3")
    k.e("v_lshrrev_b32 v5, 3, v1")
    k.e("v_bfe_u32 v6, v1, 2, 1")
    k.e("v_bfe_u32 v7, v1, 4, 1")
    k.e("v_xor_b32 v6, v6, v7")
    k.e("v_mul_u32_u24 v6, 896, v6")
    k.e("v_mul_u32_u24 v5, 2688, v5")
    k.e("v_add_u32 v5, v5, v6")
    k.e("v_and_b32 v6, 3, v1")
    k.e("v_lshlrev_b32 v6, 4, v6")
    k.e("v_add_u32 v5, v5, v6")
    k.e("v_add_u32 v5, 896, v5")
    k.e("v_lshrrev_b32 v7, 2, v1")
    k.e("v_mul_u32_u24 v7, 2688, v7")
    k.e("v_add_u32 v6, v7, v6")
    k.e("s_lshl_b32 s40, s6, 12")
    k.e("s_lshl_b32 s61, s6, 10")
    k.e("s_lshl_b32 s41, s5, 3")
    k.e("s_add_u32 s41, s41, s6")
    k.e("s_mul_i32 s42, s41, 28672")
    k.e("s_mul_i32 s43, s7, 56")
    k.e("s_mul_i32 s46, s6, 21504")
    k.e("s_add_u32 s46, s46, s43")
    k.e("s_mul_i32 s47, s6, 172032")
    k.e("s_add_u32 s47, s47, s43")
    k.e("s_lshl_b32 s44, s5, 8")
    k.e("s_lshl_b32 s45, s3, 3")
    k.e("s_add_u32 s44, s44, s45")
    k.e("s_add_u32 s44, s44, s6")
    k.e("s_mul_i32 s45, s44, 896")
    k.e("s_waitcnt lgkmcnt(0)")
    k.stamp("pro")
    srd(k, 28, "s8", "s9", X_BYTES)
    k.e("s_cmp_ge_u32 s3, 16")
    k.e("s_cselect_b32 s32, s16, s10")
    k.e("s_cselect_b32 s33, s17, s11")
    k.e(f"s_mov_b32 s34, {W_BYTES}")
    k.e("s_mov_b32 s35, 0x20000")
    if PREFETCH:
        k.e("s_cmp_ge_u32 s6, 4")
        k.e("s_cbranch_scc1 L_pfw")
        k.e("s_mul_i32 s68, s70, 224")
        k.e("s_mul_i32 s71, s6, 56")
        k.e("s_add_u32 s68, s68, s71")
        k.e("s_lshl_b32 s68, s68, 7")
        k.e("s_and_b32 s71, s69, 1")
        k.e("s_mul_i32 s71, s71, 917504")
        k.e("s_add_u32 s68, s68, s71")
        k.e("v_lshlrev_b32 v8, 7, v1")
        k.e("s_mov_b32 exec_hi, 0x00ffffff")
        k.e("buffer_load_dword v240, v8, s[28:31], s68 offen")
        k.e("s_branch L_pfd")
        k.lab("L_pfw")
        k.e("s_mul_i32 s68, s70, 168")
        k.e("s_sub_u32 s71, s6, 4")
        k.e("s_mul_i32 s71, s71, 42")
        k.e("s_add_u32 s68, s68, s71")
        k.e("v_add_u32 v8, s68, v1")
        k.e("v_lshrrev_b32 v9, 2, v8")
        k.e("v_mul_u32_u24 v9, 896, v9")
        k.e("v_and_b32 v8, 3, v8")
        k.e("v_lshlrev_b32 v8, 7, v8")
        k.e("v_add_u32 v8, v8, v9")
        k.e("s_bfe_u32 s71, s69, 0x10001")
        k.e("s_mul_i32 s71, s71, 384")
        k.e("s_mov_b32 exec_hi, 0x3ff")
        k.e("buffer_load_dword v240, v8, s[32:35], s71 offen")
        k.lab("L_pfd")
        k.e("s_mov_b64 exec, -1")
    k.e("s_and_b32 s71, s70, 7")
    k.e("s_lshr_b32 s68, s70, 3")
    k.e("s_lshl_b32 s68, s68, 1")
    k.e("s_add_u32 s71, s71, s68")
    if not ROT: k.e("s_mov_b32 s71, 0")
    k.e("s_cmp_ge_u32 s71, 7")
    k.e("s_cselect_b32 s68, 7, 0")
    k.e("s_sub_u32 s71, s71, s68")
    k.e("s_cmp_ge_u32 s71, 7")
    k.e("s_cselect_b32 s68, 7, 0")
    k.e("s_sub_u32 s71, s71, s68")
    k.e("s_mov_b32 s59, s71")
    def wx_dma(i):
        sl = i % 3
        k.e("s_lshl_b32 s64, s71, 13")
        k.e("s_add_u32 s64, s64, s61")
        k.e(f"s_add_u32 m0, s64, {WKV}")
        k.e("s_mul_i32 s68, s71, 172032")
        k.e("s_add_u32 s68, s68, s46")
        k.e("buffer_load_dwordx4 v5, s[32:35], s68 offen lds")
        k.e(f"s_add_u32 m0, s40, {XS + sl*32768}")
        k.e("s_lshl_b32 s64, s71, 7")
        k.e("s_add_u32 s64, s64, s42")
        for q in range(4):
            if q: k.e("s_add_u32 s64, s64, 6144")
            k.e(f"buffer_load_dwordx4 v{3 + (q&1)}, s[28:31], s64 offen offset:{q*1024} lds")
        k.e("s_add_u32 s71, s71, 1")
        k.e("s_cmp_eq_u32 s71, 7")
        k.e("s_cselect_b32 s71, 0, s71")
    wx_dma(0)
    k.stamp("pro")
    srd(k, 36, "s26", "s27", WS_USED)
    srd(k, 52, "s20", "s21", 896)
    srd(k, 72, "s24", "s25", 256)
    k.e("s_or_b32 s58, s2, s6")
    k.e("s_cmp_lg_u32 s58, 0")
    k.e("s_cbranch_scc1 L_nononce")
    k.e("s_memrealtime s[56:57]")
    k.e("s_waitcnt lgkmcnt(0)")
    k.e("s_or_b32 s56, s56, 1")
    k.e("v_mov_b32 v8, s56")
    k.e("v_mov_b32 v9, s57")
    k.e("v_mov_b32 v10, 0")
    k.e("s_mov_b64 exec, 1")
    k.e("buffer_store_dwordx2 v[8:9], v10, s[72:75], 0 offen sc1")
    k.e("s_mov_b64 exec, -1")
    k.e("s_waitcnt vmcnt(0)")
    k.lab("L_nononce")
    k.stamp("pro")
    wx_dma(1); wx_dma(2)
    k.e("buffer_load_dwordx4 v[216:219], v2, s[28:31], s45 offen")
    k.e("buffer_load_dwordx4 v[220:223], v2, s[52:55], 0 offen")
    k.stamp("pro")
    k.e("v_and_b32 v16, 31, v1")
    k.e("v_bfe_u32 v17, v1, 1, 3")
    k.e("v_lshrrev_b32 v18, 5, v1")
    k.e("v_lshlrev_b32 v19, 2, v18")
    k.e("v_xor_b32 v17, v17, v19")
    k.e("v_lshlrev_b32 v17, 4, v17")
    k.e("v_lshlrev_b32 v16, 7, v16")
    k.e("v_add_u32 v16, v16, v17")
    k.e("v_add_u32 v8, s40, v16")
    for f in (1, 2, 3): k.e(f"v_xor_b32 v{8+f}, {16*f}, v8")
    for f in range(4): k.e(f"v_add_u32 v{12+f}, 0x10000, v{8+f}")
    k.e("v_lshlrev_b32 v16, 5, v18")
    k.e("v_bfe_u32 v17, v1, 2, 2")
    k.e("v_add_u32 v16, v16, v17")
    k.e("v_bfe_u32 v19, v1, 4, 1")
    k.e("v_lshlrev_b32 v19, 5, v19")
    k.e("v_and_b32 v20, 3, v1")
    k.e("v_lshlrev_b32 v20, 3, v20")
    k.e("v_add_u32 v19, v19, v20")
    k.e("v_lshlrev_b32 v20, 7, v16")
    k.e("v_add_u32 v20, v20, v19")
    k.e("v_bfe_u32 v21, v1, 3, 1")
    k.e("v_lshlrev_b32 v21, 6, v21")
    k.e("v_add_u32 v20, v20, v21")
    k.e(f"v_add_u32 v232, {WKV}, v20")
    k.e("v_xor_b32 v233, 64, v232")
    k.e("v_lshlrev_b32 v20, 6, v16")
    k.e("v_add_u32 v20, v20, v19")
    k.e(f"v_add_u32 v234, {WQ}, v20")
    XR, QA, KA, VA, WF = 64, 16, 32, 48, 176
    KF, VF, QF = 192, 196 + 4, 208
    k.stamp("pro")
    waits = [12, 12, 12, 10, 10, 10, 5]
    for c in range(7):
        sl = c % 3
        k.e(f"s_waitcnt vmcnt({waits[c]})")
        if c in (0, 1, 2, 3, 4, 5, 6): k.stamp("pro")
        k.e("s_barrier")
        xb = 8 if sl < 2 else 12
        xo = (sl % 2) * 32768
        for f in range(4):
            k.e(f"ds_read_b128 {vr(XR+(c*4+f)*4)}, v{xb+f} offset:{xo}")
        k.e("s_lshl_b32 s64, s59, 13")
        k.e("v_add_u32 v242, s64, v232")
        k.e("v_add_u32 v243, s64, v233")
        k.e(f"s_mov_b32 s{96+0}, s59") if False else None
        def treads(f):
            for seg in range(2):
                for s_ in range(2):
                    r = WF + (f & 1)*8 + seg*4 + s_*2
                    k.e(f"ds_read_b64_tr_b16 v[{r}:{r+1}], v{242+seg} offset:{(8*f+4*s_)*128}")
        treads(0)
        k.e("s_add_u32 s59, s59, 1")
        k.e("s_cmp_eq_u32 s59, 7")
        k.e("s_cselect_b32 s59, 0, s59")
        k.e("s_waitcnt lgkmcnt(4)")
        if c + 3 <= 6: wx_dma(c + 3)
        if c == 4:
            for n in range(4):
                k.e(f"s_add_u32 m0, s40, {WQ + n*1024}")
                k.e(f"s_add_u32 s68, s47, {n*16*2688}")
                k.e("buffer_load_dwordx4 v6, s[32:35], s68 offen lds")
            k.e("v_mov_b32 v235, 0")
            k.e("buffer_load_dwordx2 v[236:237], v235, s[72:75], 0 offen sc1")
        for f in range(4):
            if f < 3:
                treads(f + 1)
                k.e("s_waitcnt lgkmcnt(4)")
            else:
                k.e("s_waitcnt lgkmcnt(0)")
            x = XR + (c*4+f)*4; w = WF + (f & 1)*8
            z = "0" if (c == 0 and f == 0) else None
            k.e(mfma(KA, w, x, z))
            k.e(mfma(VA, x, w+4, z))
    k.e("s_waitcnt vmcnt(0)")
    k.stamp()
    k.e("s_barrier")
    k.e("s_mov_b32 s58, 0")
    k.lab("L_nonce")
    k.e("v_readfirstlane_b32 s56, v236")
    k.e("v_readfirstlane_b32 s57, v237")
    k.e("s_add_u32 s58, s58, 1")
    k.e(f"s_cmp_ge_u32 s58, {SPIN_MAX}")
    k.e("s_cbranch_scc1 L_nonce_ok")
    k.e("s_cmp_lg_u32 s56, 0")
    k.e("s_cbranch_scc1 L_nonce_ok")
    k.e("buffer_load_dwordx2 v[236:237], v235, s[72:75], 0 offen sc1")
    k.e("s_waitcnt vmcnt(0)")
    k.e("s_branch L_nonce")
    k.lab("L_nonce_ok")
    def qreads(n):
        c, f = divmod(n, 4)
        if f == 0:
            k.e("s_lshl_b32 s64, s59, 12")
            k.e("v_add_u32 v242, s64, v234")
            k.e("s_add_u32 s59, s59, 1")
            k.e("s_cmp_eq_u32 s59, 7")
            k.e("s_cselect_b32 s59, 0, s59")
        for s_ in range(2):
            r = WF + (n & 1)*4 + s_*2
            k.e(f"ds_read_b64_tr_b16 v[{r}:{r+1}], v242 offset:{(8*f + 4*s_)*64}")
    qreads(0)
    k.e("s_mov_b32 s62, 0")
    k.e("s_mov_b32 s63, -1")
    for n in range(28):
        if n < 27:
            qreads(n + 1); k.e("s_waitcnt lgkmcnt(2)")
        else:
            k.e("s_waitcnt lgkmcnt(0)")
        k.e(mfma(QA, WF + (n & 1)*4, XR + n*4, "0" if n == 0 else None))
        if n == 3:
            k.e("s_mov_b64 exec, s[62:63]")
            for i in (12,13,14): k.e(f"v_mov_b32 v{KA+i}, 1.0")
            k.e(f"v_mov_b32 v{KA+15}, 0")
            k.e("s_mov_b64 exec, -1")
            for i in range(8): k.e(f"v_cvt_pk_bf16_f32 v{KF+i}, v{KA+2*i}, v{KA+2*i+1}")
        if n == 4:
            for i in range(8): k.e(f"v_cvt_pk_bf16_f32 v{VF+i}, v{VA+2*i}, v{VA+2*i+1}")
            k.e("v_and_b32 v238, 31, v1")
            k.e("v_mov_b32 v239, 0x3f803f80")
            k.e("v_cmp_eq_u32 vcc, 28, v238")
            k.nop(2)
            k.e("v_cndmask_b32 v239, 0, v239, vcc")
            k.e("s_mov_b32 s64, 0xf0000000")
            k.e("s_mov_b32 s65, 0xf0000000")
            k.e("s_mov_b64 exec, s[64:65]")
            for i in range(8): k.e(f"v_mov_b32 v{VF+i}, v239")
            k.e("s_mov_b64 exec, -1")
            k.e("s_lshl_b32 s66, s3, 18")
            k.e("s_lshl_b32 s67, s5, 15")
            k.e("s_add_u32 s66, s66, s67")
            k.e("s_add_u32 s66, s66, s40")
            for i, r in enumerate((KF, KF+4, VF, VF+4)):
                k.e(f"buffer_store_dwordx4 {vr(r)}, v2, s[36:39], s66 offen offset:{i*1024} sc1")
            k.e("s_add_u32 s67, s40, 65536")
            k.e("v_add_u32 v238, s67, v2")
            for i, r in enumerate((KF, KF+4, VF, VF+4)):
                k.e(f"ds_write_b128 v238, {vr(r)} offset:{i*1024}")
            k.e("s_waitcnt lgkmcnt(0)")
        if n == 8:
            for i in range(4):
                k.e(f"v_lshlrev_b32 v{224+2*i}, 16, v{216+i}")
                k.e(f"v_and_b32 v{225+2*i}, 0xffff0000, v{216+i}")
                k.e(f"v_lshlrev_b32 v{48+2*i}, 16, v{220+i}")
                k.e(f"v_and_b32 v{49+2*i}, 0xffff0000, v{220+i}")
            k.e("v_mul_f32 v216, v224, v48")
            for i in range(1, 8):
                k.e(f"v_fmac_f32 v216, v{224+i}, v{48+i}")
            for sh in (8, 4, 2, 1):
                k.nop(2)
                k.e(f"v_add_f32_dpp v216, v216, v216 row_ror:{sh} row_mask:0xf bank_mask:0xf")
            k.nop(1)
            k.e("v_readlane_b32 s64, v216, 0")
            k.e("v_readlane_b32 s65, v216, 16")
            k.e("v_readlane_b32 s66, v216, 32")
            k.e("v_readlane_b32 s67, v216, 48")
            k.nop(1)
            k.e("v_mov_b32 v217, s64")
            k.e("v_add_f32 v217, s65, v217")
            k.e("v_add_f32 v217, s66, v217")
            k.e("v_add_f32 v217, s67, v217")
            k.e(f"v_mul_f32 v217, {hex(f2u(-math.log2(math.e)))}, v217")
            k.e("v_exp_f32 v217, v217")
            k.nop(1)
            k.e("v_add_f32 v217, 1.0, v217")
            k.e("v_rcp_f32 v217, v217")
            k.e("s_lshl_b32 s44, s44, 2")
            k.e(f"s_add_u32 s44, s44, {G_OFF}")
            k.e("s_mov_b64 exec, 1")
            k.e("buffer_store_dword v217, v235, s[36:39], s44 offen sc1")
            k.e("s_mov_b64 exec, -1")
    k.stamp()
    k.e(f"s_mov_b32 s60, {hex(f2u(CSCALE))}")
    k.nop(12)
    for i in range(16): k.e(f"v_mul_f32 v{QA+i}, s60, v{QA+i}")
    k.e("s_mov_b64 exec, s[62:63]")
    for i in (12,13,14,15): k.e(f"v_mov_b32 v{QA+i}, 0")
    k.e("s_mov_b64 exec, -1")
    for i in range(8): k.e(f"v_cvt_pk_bf16_f32 v{QF+i}, v{QA+2*i}, v{QA+2*i+1}")
    SS = 96
    k.nop(2)
    k.e(mfma(SS, KF, QF, "0"))
    k.e(mfma(SS, KF+4, QF+4))
    k.nop(12)
    k.e(f"v_max3_f32 v12, v{SS}, v{SS+1}, v{SS+2}")
    for i in range(3, 15, 2): k.e(f"v_max3_f32 v12, v12, v{SS+i}, v{SS+i+1}")
    k.e(f"v_max_f32 v12, v12, v{SS+15}")
    k.e("v_mov_b32 v13, v12")
    k.nop(2)
    k.e("v_permlane32_swap_b32 v12, v13")
    k.nop(1)
    k.e("v_max_f32 v12, v12, v13")
    shift_split(k, 12, 13, 14, 15, QF+6, QF+7)
    k.e("s_lshl_b32 s66, s6, 11")
    k.e("s_add_u32 s66, s66, 98304")
    k.e("v_add_u32 v8, s66, v2")
    k.e(f"ds_write_b128 v8, {vr(QF)}")
    k.e(f"ds_write_b128 v8, {vr(QF+4)} offset:1024")
    QR, OA, OB, S0, S1, PR, KR, VR, ST = 16, 32, 48, 64, 80, 96, 104, 120, 136
    k.e("s_lshr_b32 s7, s6, 1")
    k.e("s_and_b32 s28, s6, 1")
    k.e("s_lshl_b32 s29, s28, 14")
    k.e("v_add_u32 v6, s29, v2")
    k.e("v_add_u32 v7, s40, v2")
    k.e("v_add_u32 v3, 65536, v6")
    k.e("v_mov_b32 v4, v6")
    k.e("s_mov_b32 s49, 0")
    k.e("v_mov_b32 v5, v7")
    k.e("s_lshl_b32 s66, s7, 12")
    k.e("s_add_u32 s66, s66, 98304")
    k.e("v_add_u32 v9, s66, v2")
    k.e("v_and_b32 v10, 7, v1")
    k.e("v_lshlrev_b32 v10, 3, v10")
    k.e("s_lshl_b32 s50, s3, 7")
    k.e(f"s_add_u32 s50, s50, {FL1_OFF}")
    k.e("s_lshl_b32 s51, s3, 18")
    k.e("s_add_u32 s51, s51, s40")
    k.e("s_add_u32 s52, s5, 1")
    for i in range(16): k.e(f"v_mov_b32 v{OA+i}, 0")
    for i in range(16): k.e(f"v_mov_b32 v{OB+i}, 0")
    for i in range(8): k.e(f"v_mov_b32 v{PR+i}, 0")
    for i in range(16): k.e(f"v_mov_b32 v{VR+i}, 0")
    k.e("s_lshl_b32 s54, s69, 2")
    k.e("s_and_b32 s55, s70, 3")
    k.e("s_add_u32 s54, s54, s55")
    k.e("s_lshr_b32 s55, s70, 2")
    k.e("v_lshrrev_b32 v11, 3, v1")
    k.e("v_bfe_u32 v12, v11, 1, 1")
    k.e("v_lshlrev_b32 v12, 2, v12")
    k.e("v_and_b32 v13, 7, v1")
    k.e("v_xor_b32 v12, v12, v13")
    k.e("v_lshlrev_b32 v12, 4, v12")
    k.e("v_mul_u32_u24 v11, 896, v11")
    k.e("v_add_u32 v11, v11, v12")
    srd(k, 72, "s12", "s13", WO_BYTES)
    srd(k, 44, "s18", "s19", WO_BYTES)
    k.e("s_mul_i32 s30, s55, 112")
    k.e("s_mul_i32 s31, s6, 7168")
    k.e("s_add_u32 s30, s30, s31")
    k.e("s_mov_b32 s31, s30")
    k.e(f"s_add_u32 s43, s61, {WOB + 7*8192}")
    k.e("s_waitcnt vmcnt(0) lgkmcnt(0)")
    k.e("s_barrier")
    k.stamp()
    k.e("s_cmp_lg_u32 s6, 0")
    k.e("s_cbranch_scc1 L_noflag1")
    k.e("s_lshl_b32 s66, s3, 7")
    k.e("s_lshl_b32 s67, s5, 3")
    k.e("s_add_u32 s66, s66, s67")
    k.e(f"s_add_u32 s66, s66, {FL1_OFF}")
    k.e("v_mov_b32 v236, s56")
    k.e("v_mov_b32 v237, s57")
    k.e("s_mov_b64 exec, 1")
    k.e("buffer_store_dwordx2 v[236:237], v235, s[36:39], s66 offen sc1")
    k.e("s_mov_b64 exec, -1")
    k.lab("L_noflag1")
    k.e(f"ds_read_b128 {vr(QR)}, v9")
    k.e(f"ds_read_b128 {vr(QR+4)}, v9 offset:1024")
    k.e(f"ds_read_b128 {vr(QR+8)}, v9 offset:2048")
    k.e(f"ds_read_b128 {vr(QR+12)}, v9 offset:3072")
    k.e(f"ds_read_b128 {vr(KR)}, v3")
    k.e(f"ds_read_b128 {vr(KR+4)}, v3 offset:1024")
    k.e("s_mov_b32 s58, 0")
    k.e("buffer_load_dwordx2 v[152:153], v10, s[36:39], s50 offen sc1")
    k.e("s_waitcnt lgkmcnt(0)")
    k.e(mfma(S0, KR, QR, "0"))
    k.e(mfma(S0, KR+4, QR+4))
    k.e("s_mov_b32 s48, 0")
    k.nop(12)
    def Lload():
        return ["s_and_b32 s53, s52, 7", "s_lshl_b32 s53, s53, 15", "s_add_u32 s53, s53, s51", "s_add_u32 s52, s52, 1"] + \
               [f"buffer_load_dwordx4 {vr(ST+4*i)}, v2, s[36:39], s53 offen offset:{i*1024} sc1" for i in range(4)]
    def slot(Sbuf, pv, sq, extra):
        e = [f"v_exp_f32 v{Sbuf+i}, v{Sbuf+i}" for i in range(16)]
        c = [f"v_cvt_pk_bf16_f32 v{PR+i}, v{Sbuf+2*i}, v{Sbuf+2*i+1}" for i in range(8)]
        O, V = pv; Sd, Kb, Qb = sq
        mPV0 = mfma(O, V, PR); mPV1 = mfma(O, V+4, PR+4)
        mS0 = mfma(Sd, Kb, Qb, "0"); mS1 = mfma(Sd, Kb+4, Qb+4)
        seq = [mPV0, e[0], e[1], e[2], c[0], e[3], e[4], mS0, c[1], e[5], e[6], e[7], c[2], e[8], mS1, e[9], c[3],
               e[10], e[11], e[12], mPV1, e[13], c[4], e[14], c[5], e[15], c[6], c[7]]
        for pos, x in enumerate(seq):
            for y in extra.get(pos, []):
                if y.endswith(":"): k.lab(y[:-1])
                else: k.e(y)
            k.e(x)
    k.e(".p2align 6")
    k.lab("L_loop")
    for t in range(4):
        kb = KR + (t & 1) * 8; kn = KR + ((t + 1) & 1) * 8
        vb = VR + (t & 1) * 8; vp = VR + ((t + 1) & 1) * 8
        pre = []
        if t == 0:
            pre += ["s_cmp_lg_u32 s48, 7", "s_cbranch_scc1 L_noa", "s_waitcnt vmcnt(0)", "s_barrier"]
            for n in range(7):
                pre += [f"s_add_u32 m0, s61, {WOB + n*8192}", f"s_add_u32 s53, s30, {n*8*7168}", "buffer_load_dwordx4 v11, s[72:75], s53 offen lds"]
            pre += ["L_noa:"]
        if t == 1:
            pre += ["s_cmp_lg_u32 s48, 0", "s_cbranch_scc1 L_noflagchk"] + k.stamp_list("loop") + ["s_branch L_p1_chk", "L_p1:",
                    "buffer_load_dwordx2 v[152:153], v10, s[36:39], s50 offen sc1", "L_p1_chk:",
                    "s_waitcnt vmcnt(0)", "v_cmp_eq_u64 vcc, s[56:57], v[152:153]", "s_add_u32 s58, s58, 1",
                    f"s_cmp_ge_u32 s58, {SPIN_MAX}", "s_cbranch_scc1 L_p1_done", "s_cmp_eq_u64 vcc, exec", "s_cbranch_scc0 L_p1", "L_p1_done:"]
            pre += k.stamp_list("loop") + Lload() + ["L_noflagchk:"]
        if t == 3:
            pre += ["s_cmp_eq_u32 s48, 7", "s_cbranch_scc1 L_nostage", "s_waitcnt vmcnt(0)"]
            pre += [f"ds_write_b128 v5, {vr(ST+4*i)} offset:{i*1024}" for i in range(4)]
            pre += ["s_waitcnt lgkmcnt(0)", "s_barrier", "s_cmp_ge_u32 s48, 6", "s_cbranch_scc1 L_nostage"] + Lload()
            pre += ["s_sub_u32 s53, s48, 1", "s_cmp_ge_u32 s53, 4", "s_cbranch_scc1 L_nob"]
            for i in range(2):
                pre += ["s_mov_b32 m0, s43", "s_add_u32 s43, s43, 8192", "buffer_load_dwordx4 v11, s[44:47], s31 offen lds", f"s_add_u32 s31, s31, {8*7168}"]
            pre += ["L_nob:", "s_cmp_lg_u32 s48, 5", "s_cbranch_scc1 L_nostage"]
            pre += ["v_lshrrev_b32 v12, 3, v1", "v_lshlrev_b32 v12, 6, v12", "v_and_b32 v13, 7, v1", "v_add_u32 v12, v12, v13", "v_mul_u32_u24 v12, 896, v12",
                    "buffer_load_dword v240, v12, s[72:75], s30 offen", "buffer_load_dword v241, v12, s[72:75], s30 offen offset:124"]
            pre += ["L_nostage:"]
        if t < 3:
            rk = [f"ds_read_b128 {vr(kn)}, v3 offset:{(t+1)*4096}", f"ds_read_b128 {vr(kn+4)}, v3 offset:{(t+1)*4096+1024}"]
        else:
            rk = [f"ds_read_b128 {vr(kn)}, v4", f"ds_read_b128 {vr(kn+4)}, v4 offset:1024"]
        rv = [f"ds_read_b128 {vr(vb)}, v3 offset:{t*4096+2048}", f"ds_read_b128 {vr(vb+4)}, v3 offset:{t*4096+3072}"]
        ex = {0: pre, 1: [rk[0]], 3: [rk[1]], 5: [rv[0]], 8: [rv[1]]}
        slot(S0, (OB, vp), (S1, kb, QR+8), ex)
        ex = {0: ["s_waitcnt lgkmcnt(0)"]}
        if t == 3:
            ex[20] = ["v_mov_b32 v3, v4", "s_add_u32 s49, s49, 32768", "s_cmp_eq_u32 s49, 98304", "s_cselect_b32 s49, 0, s49"]
            ex[22] = ["v_add_u32 v4, s49, v6", "v_add_u32 v5, s49, v7"]
            ex[24] = ["s_add_u32 s48, s48, 1"]
            ex[26] = ["s_cmp_lt_u32 s48, 8"]
        slot(S1, (OA, vb), (S0, kn, QR), ex)
    k.e("s_cbranch_scc1 L_loop")
    k.stamp()
    k.nop(2)
    k.e(mfma(OB, VR+8, PR))
    k.e(mfma(OB, VR+12, PR+4))
    k.e("s_barrier")
    k.nop(12)
    EXB = 0
    k.e("s_cmp_eq_u32 s28, 0")
    k.e("s_cbranch_scc1 L_noswap")
    for i in range(16): k.e(f"v_swap_b32 v{OA+i}, v{OB+i}")
    for i in range(8): k.e(f"v_swap_b32 v{QR+i}, v{QR+8+i}")
    k.lab("L_noswap")
    k.e(f"s_add_u32 s29, s40, {EXB}")
    k.e("v_add_u32 v11, s29, v2")
    k.e("s_xor_b32 s29, s6, 1")
    k.e("s_lshl_b32 s29, s29, 12")
    k.e(f"s_add_u32 s29, s29, {EXB}")
    k.e("v_add_u32 v12, s29, v2")
    for i in range(4): k.e(f"ds_write_b128 v11, {vr(OB+4*i)} offset:{i*1024}")
    k.e("s_waitcnt lgkmcnt(0)")
    k.e("s_barrier")
    for i in range(4): k.e(f"ds_read_b128 {vr(S0+4*i)}, v12 offset:{i*1024}")
    k.e("s_waitcnt lgkmcnt(0)")
    for i in range(16): k.e(f"v_add_f32 v{OA+i}, v{OA+i}, v{S0+i}")
    k.e("s_mov_b32 s59, 0")
    k.lab("L_norm")
    k.e(f"v_mov_b32 v13, v{OA+12}")
    k.e(f"v_mov_b32 v14, v{OA+12}")
    k.nop(2)
    k.e("v_permlane32_swap_b32 v13, v14")
    k.nop(1)
    k.e("v_rcp_f32 v15, v14")
    k.e("v_mul_f32 v13, 0, v14")
    for i in range(16): k.e(f"v_mul_f32 v{OA+i}, v{OA+i}, v15")
    k.e("v_mov_b32 v14, 0")
    for i in range(0, 16, 2):
        k.e(f"v_fma_f32 v13, v{OA+i}, v14, v13")
        k.e(f"v_fma_f32 v14, v{OA+i+1}, 0, v14")
    k.e("v_add_f32 v13, v13, v14")
    k.e("v_cmp_u_f32 vcc, v13, v13")
    k.e("s_cmp_lg_u32 s59, 0")
    k.e("s_cbranch_scc1 L_norm_ok")
    k.e("s_cmp_lg_u64 vcc, 0")
    k.e("s_cbranch_scc1 L_fallback")
    k.lab("L_norm_ok")
    k.e("s_mov_b64 exec, s[62:63]")
    for i in (12,13,14,15): k.e(f"v_mov_b32 v{OA+i}, 0")
    k.e("s_mov_b64 exec, -1")
    for i in range(8): k.e(f"v_cvt_pk_bf16_f32 v{PR+i}, v{OA+2*i}, v{OA+2*i+1}")
    k.e("s_lshl_b32 s29, s41, 16")
    k.e("s_lshl_b32 s30, s3, 11")
    k.e("s_add_u32 s29, s29, s30")
    k.e(f"s_add_u32 s29, s29, {OF_OFF}")
    k.e(f"buffer_store_dwordx4 {vr(PR)}, v2, s[36:39], s29 offen sc1")
    k.e(f"buffer_store_dwordx4 {vr(PR+4)}, v2, s[36:39], s29 offen offset:1024 sc1")
    k.e("s_lshr_b32 s7, s6, 2")
    k.e("s_and_b32 s28, s6, 3")
    k.e("v_lshrrev_b32 v5, 5, v1")
    k.e("v_lshlrev_b32 v5, 2, v5")
    k.e("v_bfe_u32 v6, v1, 2, 2")
    k.e("v_add_u32 v5, v5, v6")
    k.e("v_lshlrev_b32 v5, 7, v5")
    k.e("v_bfe_u32 v7, v1, 4, 1")
    k.e("v_lshlrev_b32 v7, 1, v7")
    k.e("v_bfe_u32 v8, v1, 1, 1")
    k.e("v_add_u32 v7, v7, v8")
    k.e("v_bfe_u32 v8, v6, 1, 1")
    k.e("v_lshlrev_b32 v8, 2, v8")
    k.e("v_xor_b32 v7, v7, v8")
    k.e("v_lshlrev_b32 v7, 4, v7")
    k.e("v_add_u32 v5, v5, v7")
    k.e("v_and_b32 v7, 1, v1")
    k.e("v_lshlrev_b32 v7, 3, v7")
    k.e("v_add_u32 v5, v5, v7")
    k.e("v_xor_b32 v6, 64, v5")
    k.e("s_mul_i32 s29, s28, 28672")
    k.e(f"s_add_u32 s29, s29, {WOB}")
    k.e("v_add_u32 v5, s29, v5")
    k.e("v_add_u32 v6, s29, v6")
    k.e("v_mov_b32 v13, 0")
    k.e("s_waitcnt vmcnt(0)")
    k.e("s_barrier")
    k.stamp()
    k.e("s_cmp_lg_u32 s6, 0")
    k.e("s_cbranch_scc1 L_noflag2")
    k.e("s_lshl_b32 s66, s5, 8")
    k.e("s_lshl_b32 s67, s3, 3")
    k.e("s_add_u32 s66, s66, s67")
    k.e(f"s_add_u32 s66, s66, {FL2_OFF}")
    k.e("v_mov_b32 v14, s56")
    k.e("v_mov_b32 v15, s57")
    k.e("s_mov_b64 exec, 1")
    k.e("buffer_store_dwordx2 v[14:15], v13, s[36:39], s66 offen sc1")
    k.e("s_mov_b64 exec, -1")
    k.lab("L_noflag2")
    k.e("v_and_b32 v10, 31, v1")
    k.e("v_lshlrev_b32 v11, 3, v10")
    k.e("s_lshr_b32 s66, s54, 2")
    k.e("s_lshl_b32 s66, s66, 8")
    k.e(f"s_add_u32 s66, s66, {FL2_OFF}")
    poll(k, "L_p2", 11, "s66", 14)
    k.stamp()
    OR = 64
    k.e("s_lshl_b32 s32, s54, 1")
    k.e("s_add_u32 s32, s32, s7")
    k.e("s_lshl_b32 s33, s32, 16")
    k.e("s_lshl_b32 s34, s28, 14")
    k.e("s_add_u32 s33, s33, s34")
    k.e(f"s_add_u32 s33, s33, {OF_OFF}")
    for i in range(16):
        if i % 4 == 0 and i > 0: k.e("s_add_u32 s33, s33, 4096")
        k.e(f"buffer_load_dwordx4 {vr(OR+4*i)}, v2, s[36:39], s33 offen offset:{(i%4)*1024} sc1")
    k.e("v_lshlrev_b32 v8, 2, v10")
    k.e("s_lshl_b32 s34, s32, 7")
    k.e(f"s_add_u32 s34, s34, {G_OFF}")
    k.e("buffer_load_dword v9, v8, s[36:39], s34 offen sc1")
    srd(k, 48, "s22", "s23", OUT_BYTES)
    A0, A1, WF3 = 16, 32, 128
    steps = [(hh, m) for hh in range(8) for m in range(2)]
    def treads3(hh, m, buf):
        for ct in range(2):
            for s_ in range(2):
                r = WF3 + buf*8 + ct*4 + s_*2
                k.e(f"ds_read_b64_tr_b16 v[{r}:{r+1}], v{5+ct} offset:{(hh*28 + 16*m + 8*s_) * 128}")
    treads3(*steps[0], 0)
    for i, (hh, m) in enumerate(steps):
        if i + 1 < len(steps):
            treads3(*steps[i+1], (i+1) & 1)
            k.e(f"s_waitcnt vmcnt({16-i}) lgkmcnt(4)")
        else:
            k.e(f"s_waitcnt vmcnt({16-i}) lgkmcnt(0)")
        w = WF3 + (i & 1)*8
        z = "0" if i == 0 else None
        k.e(mfma(A0, w, OR+4*i, z))
        k.e(mfma(A1, w+4, OR+4*i, z))
    k.e("s_waitcnt vmcnt(0)")
    k.stamp()
    k.e("v_sub_f32 v11, 1.0, v9")
    k.e("s_cmp_lt_u32 s28, 2")
    k.e("s_cselect_b64 vcc, -1, 0")
    k.e("v_cndmask_b32 v9, v11, v9, vcc")
    k.e("s_barrier")
    k.nop(8)
    for i in range(16): k.e(f"v_mul_f32 v{A0+i}, v{A0+i}, v9")
    for i in range(16): k.e(f"v_mul_f32 v{A1+i}, v{A1+i}, v9")
    k.e("s_lshl_b32 s29, s7, 15")
    k.e("s_lshl_b32 s30, s28, 12")
    k.e("s_add_u32 s29, s29, s30")
    k.e("v_add_u32 v11, s29, v2")
    for q in range(4): k.e(f"ds_write_b128 v11, {vr(A0+4*q)} offset:{q*1024}")
    for q in range(4): k.e(f"ds_write_b128 v11, {vr(A1+4*q)} offset:{16384+q*1024}")
    k.e("s_waitcnt lgkmcnt(0)")
    k.e("s_barrier")
    k.e("s_bfe_u32 s29, s6, 0x10001")
    k.e("s_and_b32 s30, s6, 1")
    k.e("s_lshl_b32 s31, s7, 15")
    k.e("s_lshl_b32 s34, s29, 14")
    k.e("s_add_u32 s31, s31, s34")
    k.e("s_lshl_b32 s34, s30, 11")
    k.e("s_add_u32 s31, s31, s34")
    k.e("v_add_u32 v11, s31, v2")
    for kq in range(4):
        for q in range(2):
            k.e(f"ds_read_b128 {vr(64+kq*8+q*4)}, v11 offset:{kq*4096+q*1024}")
    k.e("s_waitcnt lgkmcnt(0)")
    for i in range(8):
        k.e(f"v_add_f32 v{64+i}, v{64+i}, v{72+i}")
        k.e(f"v_add_f32 v{80+i}, v{80+i}, v{88+i}")
    for i in range(8): k.e(f"v_add_f32 v{64+i}, v{64+i}, v{80+i}")
    for i in range(4): k.e(f"v_cvt_pk_bf16_f32 v{16+i}, v{64+2*i}, v{65+2*i}")
    k.nop(2)
    k.e("v_permlane32_swap_b32 v16, v18")
    k.e("v_permlane32_swap_b32 v17, v19")
    k.e("v_mul_u32_u24 v11, 896, v10")
    k.e("v_lshrrev_b32 v12, 5, v1")
    k.e("v_lshlrev_b32 v13, 4, v12")
    k.e("v_add_u32 v11, v11, v13")
    k.e("s_lshl_b32 s31, s29, 6")
    k.e("s_lshl_b32 s34, s30, 5")
    k.e("s_add_u32 s31, s31, s34")
    k.e("v_add_u32 v13, s31, v13")
    k.e("v_cmp_gt_u32 vcc, 112, v13")
    k.e("s_mul_i32 s34, s55, 112")
    k.e("s_add_u32 s31, s31, s34")
    k.e("s_mul_i32 s34, s32, 28672")
    k.e("s_add_u32 s31, s31, s34")
    k.e("v_mov_b32 v14, 0x7fffffff")
    k.e("v_cndmask_b32 v11, v14, v11, vcc")
    k.e("buffer_store_dwordx4 v[16:19], v11, s[48:51], s31 offen")
    k.stamp()
    k.stamp_flush()
    k.lab("L_end")
    k.e("s_endpgm")
    k.lab("L_fallback")
    k.e("s_mov_b32 s59, 1")
    k.e("s_mov_b64 exec, s[62:63]")
    k.e(f"v_mov_b32 v{QR+6}, 0")
    k.e(f"v_mov_b32 v{QR+7}, 0")
    k.e("s_mov_b64 exec, -1")
    k.e("v_mov_b32 v13, 0xff800000")
    k.e("s_lshl_b32 s29, s3, 18")
    k.e("s_mov_b32 s30, 0")
    k.lab("L_fb1")
    k.e(f"buffer_load_dwordx4 {vr(KR)}, v2, s[36:39], s29 offen sc1")
    k.e(f"buffer_load_dwordx4 {vr(KR+4)}, v2, s[36:39], s29 offen offset:1024 sc1")
    k.e("s_waitcnt vmcnt(0)")
    k.e(mfma(S0, KR, QR, "0"))
    k.e(mfma(S0, KR+4, QR+4))
    k.nop(12)
    for i in range(0, 16, 2): k.e(f"v_max3_f32 v13, v13, v{S0+i}, v{S0+i+1}")
    k.e("s_add_u32 s29, s29, 4096")
    k.e("s_add_u32 s30, s30, 1")
    k.e("s_cmp_lt_u32 s30, 64")
    k.e("s_cbranch_scc1 L_fb1")
    k.e("v_mov_b32 v14, v13")
    k.nop(2)
    k.e("v_permlane32_swap_b32 v13, v14")
    k.nop(1)
    k.e("v_max_f32 v13, v13, v14")
    shift_split(k, 13, 14, 15, 12, QR+6, QR+7)
    for i in range(16): k.e(f"v_mov_b32 v{OA+i}, 0")
    k.e("s_lshl_b32 s29, s3, 18")
    k.e("s_mov_b32 s30, 0")
    k.lab("L_fb2")
    k.e(f"buffer_load_dwordx4 {vr(KR)}, v2, s[36:39], s29 offen sc1")
    k.e(f"buffer_load_dwordx4 {vr(KR+4)}, v2, s[36:39], s29 offen offset:1024 sc1")
    k.e(f"buffer_load_dwordx4 {vr(VR)}, v2, s[36:39], s29 offen offset:2048 sc1")
    k.e(f"buffer_load_dwordx4 {vr(VR+4)}, v2, s[36:39], s29 offen offset:3072 sc1")
    k.e("s_waitcnt vmcnt(0)")
    k.e(mfma(S0, KR, QR, "0"))
    k.e(mfma(S0, KR+4, QR+4))
    k.nop(12)
    for i in range(16): k.e(f"v_exp_f32 v{S0+i}, v{S0+i}")
    k.nop(1)
    for i in range(8): k.e(f"v_cvt_pk_bf16_f32 v{PR+i}, v{S0+2*i}, v{S0+2*i+1}")
    k.nop(2)
    k.e(mfma(OA, VR, PR))
    k.e(mfma(OA, VR+4, PR+4))
    k.e("s_add_u32 s29, s29, 4096")
    k.e("s_add_u32 s30, s30, 1")
    k.e("s_cmp_lt_u32 s30, 64")
    k.e("s_cbranch_scc1 L_fb2")
    k.nop(12)
    k.e("s_branch L_norm")
    return k.l, dict(vgpr=244, sgpr=100, lds=163840, block=512)

def main(outpath):
    l, m = gen()
    o = [f"; gated_mix mha block, fused single launch (projection -> attention -> output projection, flag hand-offs). Generated by my own generator script.",
         f"; @launch grid=(256,1,1) block=({m['block']},1,1) lds={m['lds']}",
         '.amdgcn_target "amdgcn-amd-amdhsa--gfx950"', ".text", f".globl {KNAME}", ".p2align 8", f".type {KNAME},@function"] + l
    acc = (m['vgpr'] + 3) // 4 * 4
    o += ['.section .rodata,"a"', ".p2align 6", f".amdhsa_kernel {KNAME}", f"  .amdhsa_next_free_vgpr {m['vgpr']}", f"  .amdhsa_next_free_sgpr {m['sgpr']}",
          f"  .amdhsa_accum_offset {acc}", "  .amdhsa_group_segment_fixed_size 0", "  .amdhsa_kernarg_size 80",
          "  .amdhsa_user_sgpr_count 2", "  .amdhsa_user_sgpr_kernarg_segment_ptr 1", "  .amdhsa_system_sgpr_workgroup_id_x 1", ".end_amdhsa_kernel"]
    open(outpath, "w").write("\n".join(o) + "\n")

if __name__ == "__main__":
    main(sys.argv[1] if len(sys.argv) > 1 else f"cdna_kernels/{NAME}.s")
```

```python
import sys, math, os, struct

NAME = "gated_mix__mha_block__softmax_full_mha__prompt"
KNAME = NAME + "_kernel"
X_BYTES = 2048 * 448 * 2
W_BYTES = 448 * 1344 * 2
WO_BYTES = 448 * 448 * 2
OUT_BYTES = 2048 * 448 * 2
KV_OFF = 0
OF_OFF = 8 << 20
FL1_OFF = (12 << 20) + 8192
FL2_OFF = (12 << 20) + 16384
STAMP_OFF = 13 << 20
WS_USED = 14 << 20
LOG2E = math.log2(math.e)
CSCALE = (28 ** -0.5) * LOG2E
STAMP = int(os.environ.get("STAMP", "0"))
STAMPSET = os.environ.get("STAMPSET", "all").split(",")
EXP = os.environ.get("EXP", "").split(",")
SPIN_MAX = 1 << 18
def f2u(x): return struct.unpack('<I', struct.pack('<f', x))[0]

class K:
    def __init__(s): s.l = []; s.ns = 0
    def e(s, t):
        if t.endswith(":"): s.l.append(t)
        else: s.l.append("  " + t)
    def ex(s, ts):
        for t in ts: s.e(t)
    def lab(s, t): s.l.append(t + ":")
    def nop(s, n):
        while n > 0:
            k = min(n, 16); s.e(f"s_nop {k-1}"); n -= k
    def stamp(s, tag="all"):
        if not STAMP: return
        if tag not in STAMPSET and s.ns > 0: return
        i = s.ns; s.ns += 1
        assert i < 14
        if i == 0:
            s.e("s_memrealtime s[76:77]"); s.e("s_waitcnt lgkmcnt(0)"); s.e("s_mov_b32 s94, s76")
        s.e("s_memrealtime s[76:77]" if os.environ.get("STAMPRT") else "s_memtime s[76:77]"); s.e("s_waitcnt lgkmcnt(0)"); s.e(f"s_mov_b32 s{80+i}, s76")
    def stamp_list(s, tag):
        save = s.l; s.l = []
        s.stamp(tag)
        out = [x.strip() for x in s.l]; s.l = save
        return out
    def stamp_flush(s):
        if not STAMP: return
        s.e("s_lshl_b32 s78, s2, 3"); s.e("s_add_u32 s78, s78, s6"); s.e("s_lshl_b32 s78, s78, 6")
        s.e(f"s_add_u32 s78, s78, {STAMP_OFF}")
        s.e("s_memrealtime s[76:77]"); s.e("s_waitcnt lgkmcnt(0)"); s.e("s_mov_b32 s95, s76")
        s.e("v_mov_b32 v0, 0"); s.e("s_mov_b64 exec, 1")
        for i in range(16):
            s.e(f"v_mov_b32 v1, s{80+i}")
            s.e(f"buffer_store_dword v1, v0, s[36:39], s78 offen offset:{4*i}")
            s.e("s_nop 1")
        s.e("s_mov_b64 exec, -1")

def vr(b, n=4): return f"v[{b}:{b+n-1}]"
def mfma(d, a, b, c=None):
    cc = vr(d, 16) if c is None else c
    return f"v_mfma_f32_32x32x16_bf16 {vr(d,16)}, {vr(a)}, {vr(b)}, {cc}"
def srd(k, b, lo, hi, nbytes):
    k.e(f"s_mov_b32 s{b}, {lo}"); k.e(f"s_mov_b32 s{b+1}, {hi}"); k.e(f"s_mov_b32 s{b+2}, {nbytes}"); k.e(f"s_mov_b32 s{b+3}, 0x20000")
def cyc7(r): return [f"s_add_u32 {r}, {r}, 1", f"s_cmp_eq_u32 {r}, 7", f"s_cselect_b32 {r}, 0, {r}"]

def shift_split(k, m, t1, t2, t3, q6, q7):
    k.e(f"v_sub_f32 v{m}, 0, v{m}")
    k.e(f"v_cvt_pk_bf16_f32 v{t1}, v{m}, v{m}")
    k.e(f"v_and_b32 v{t1}, 0xffff0000, v{t1}")
    k.e(f"v_sub_f32 v{t2}, v{m}, v{t1}")
    k.e(f"v_cvt_pk_bf16_f32 v{t3}, v{t2}, v{t2}")
    k.e(f"v_and_b32 v{t3}, 0xffff0000, v{t3}")
    k.e(f"v_sub_f32 v{t2}, v{t2}, v{t3}")
    k.e(f"v_mov_b32 v{m}, 0")
    k.e("s_mov_b64 exec, s[62:63]")
    k.e(f"v_cvt_pk_bf16_f32 v{q6}, v{t1}, v{t3}")
    k.e(f"v_cvt_pk_bf16_f32 v{q7}, v{t2}, v{m}")
    k.e("s_mov_b64 exec, -1")

def poll_list(label, voff, soff, vtmp, first_issued):
    o = ["s_mov_b32 s58, 0"]
    if first_issued: o += [f"s_branch {label}_chk"]
    o += [f"{label}:", f"buffer_load_dwordx2 v[{vtmp}:{vtmp+1}], v{voff}, s[36:39], {soff} offen sc1", f"{label}_chk:",
          "s_waitcnt vmcnt(0)", f"v_cmp_eq_u64 vcc, s[56:57], v[{vtmp}:{vtmp+1}]", "s_add_u32 s58, s58, 1",
          f"s_cmp_ge_u32 s58, {SPIN_MAX}", f"s_cbranch_scc1 {label}_done", "s_cmp_eq_u64 vcc, exec", f"s_cbranch_scc0 {label}", f"{label}_done:"]
    return o

def gen():
    k = K()
    k.lab(KNAME)
    k.e("s_cmp_ge_u32 s2, 256")
    k.e("s_cbranch_scc1 L_end")
    k.e("s_load_dwordx16 s[8:23], s[0:1], 0")
    k.e("s_load_dwordx4 s[24:27], s[0:1], 64")
    k.e("v_and_b32 v1, 63, v0")
    k.e("v_lshrrev_b32 v2, 6, v0")
    k.e("s_and_b32 s69, s2, 7")
    k.e("s_lshr_b32 s70, s2, 3")
    k.e("v_readfirstlane_b32 s6, v2")
    k.e("s_lshr_b32 s3, s69, 1")
    k.e("s_lshl_b32 s3, s3, 3")
    k.e("s_and_b32 s4, s70, 7")
    k.e("s_add_u32 s3, s3, s4")
    k.e("s_and_b32 s5, s69, 1")
    k.e("s_lshl_b32 s5, s5, 2")
    k.e("s_lshr_b32 s4, s70, 3")
    k.e("s_add_u32 s5, s5, s4")
    k.stamp()
    k.e("s_and_b32 s7, s3, 15")
    k.e("v_lshlrev_b32 v2, 4, v1")
    XS, WKV, WQ, WOB = 0, 98304, 32768, 40960
    k.e("v_lshrrev_b32 v3, 3, v1")
    k.e("v_lshrrev_b32 v4, 1, v3")
    k.e("v_and_b32 v5, 7, v1")
    k.e("v_xor_b32 v4, v4, v5")
    k.e("v_lshlrev_b32 v4, 4, v4")
    k.e("v_mul_u32_u24 v3, 896, v3")
    k.e("v_add_u32 v3, v3, v4")
    k.e("v_xor_b32 v4, 64, v3")
    k.e("v_lshrrev_b32 v5, 3, v1")
    k.e("v_bfe_u32 v6, v1, 2, 1")
    k.e("v_bfe_u32 v7, v1, 4, 1")
    k.e("v_xor_b32 v6, v6, v7")
    k.e("v_mul_u32_u24 v6, 896, v6")
    k.e("v_mul_u32_u24 v5, 2688, v5")
    k.e("v_add_u32 v5, v5, v6")
    k.e("v_and_b32 v6, 3, v1")
    k.e("v_lshlrev_b32 v6, 4, v6")
    k.e("v_add_u32 v5, v5, v6")
    k.e("v_add_u32 v5, 896, v5")
    k.e("v_lshrrev_b32 v7, 2, v1")
    k.e("v_mul_u32_u24 v7, 2688, v7")
    k.e("v_add_u32 v6, v7, v6")
    k.e("s_lshl_b32 s40, s6, 12")
    k.e("s_lshl_b32 s61, s6, 10")
    k.e("s_lshl_b32 s41, s5, 3")
    k.e("s_add_u32 s41, s41, s6")
    k.e("s_mul_i32 s42, s41, 28672")
    k.e("s_mul_i32 s43, s7, 56")
    k.e("s_mul_i32 s50, s6, 21504")
    k.e("s_add_u32 s50, s50, s43")
    k.e("s_mul_i32 s51, s6, 172032")
    k.e("s_add_u32 s51, s51, s43")
    k.e("s_and_b32 s71, s70, 7")
    k.e("s_lshr_b32 s68, s70, 3")
    k.e("s_lshl_b32 s68, s68, 1")
    k.e("s_add_u32 s71, s71, s68")
    for _ in range(2):
        k.e("s_cmp_ge_u32 s71, 7")
        k.e("s_cselect_b32 s68, 7, 0")
        k.e("s_sub_u32 s71, s71, s68")
    k.e("s_mov_b32 s59, s71")
    k.e("s_mov_b32 s52, s71")
    k.e("s_waitcnt lgkmcnt(0)")
    k.stamp("pro")
    srd(k, 28, "s8", "s9", X_BYTES)
    k.e("s_cmp_ge_u32 s3, 16")
    k.e("s_cselect_b32 s32, s16, s10")
    k.e("s_cselect_b32 s33, s17, s11")
    k.e(f"s_mov_b32 s34, {W_BYTES}")
    k.e("s_mov_b32 s35, 0x20000")
    k.e("s_cselect_b32 s60, 0, 0x80000000")
    k.e(f"s_xor_b32 s60, s60, {hex(f2u(LOG2E))}")
    def w_dma():
        return ["s_lshl_b32 s64, s52, 13", "s_add_u32 s64, s64, s61", f"s_add_u32 m0, s64, {WKV}", "s_mul_i32 s68, s52, 172032",
                "s_add_u32 s68, s68, s50", "buffer_load_dwordx4 v5, s[32:35], s68 offen lds"] + cyc7("s52")
    def x_dma(i):
        sl = i % 3
        p = []
        for q in range(4):
            o = []
            if q == 0: o += [f"s_add_u32 m0, s40, {XS + sl*32768}", "s_lshl_b32 s65, s71, 7", "s_add_u32 s65, s65, s42"]
            else: o += [f"s_add_u32 m0, s40, {XS + sl*32768}", "s_add_u32 s65, s65, 6144"]
            o += [f"buffer_load_dwordx4 v{3 + (q&1)}, s[28:31], s65 offen offset:{q*1024} lds"]
            if q == 3: o += cyc7("s71")
            p.append(o)
        return p
    k.ex(w_dma())
    for p in x_dma(0): k.ex(p)
    k.ex(w_dma())
    k.e("s_barrier")
    srd(k, 36, "s26", "s27", WS_USED)
    srd(k, 52 + 20, "s24", "s25", 256)
    k.e("s_or_b32 s58, s2, s6")
    k.e("s_cmp_lg_u32 s58, 0")
    k.e("s_cbranch_scc1 L_nononce")
    k.e("s_memrealtime s[56:57]")
    k.e("s_waitcnt lgkmcnt(0)")
    k.e("s_or_b32 s56, s56, 1")
    k.e("v_mov_b32 v8, s56")
    k.e("v_mov_b32 v9, s57")
    k.e("v_mov_b32 v10, 0")
    k.e("s_mov_b64 exec, 1")
    k.e("buffer_store_dwordx2 v[8:9], v10, s[72:75], 0 offen sc1")
    k.e("s_mov_b64 exec, -1")
    k.lab("L_nononce")
    k.ex(w_dma())
    for p in x_dma(1): k.ex(p)
    srd(k, 44, "s20", "s21", 896)
    k.e("v_lshlrev_b32 v8, 1, v0")
    k.e("buffer_load_ushort v216, v8, s[44:47], 0 offen")
    k.stamp("pro")
    k.e("v_and_b32 v16, 31, v1")
    k.e("v_bfe_u32 v17, v1, 1, 3")
    k.e("v_lshrrev_b32 v18, 5, v1")
    k.e("v_lshlrev_b32 v19, 2, v18")
    k.e("v_xor_b32 v17, v17, v19")
    k.e("v_lshlrev_b32 v17, 4, v17")
    k.e("v_lshlrev_b32 v16, 7, v16")
    k.e("v_add_u32 v16, v16, v17")
    k.e("v_add_u32 v8, s40, v16")
    for f in (1, 2, 3): k.e(f"v_xor_b32 v{8+f}, {16*f}, v8")
    for f in range(4): k.e(f"v_add_u32 v{12+f}, 0x10000, v{8+f}")
    k.e("v_lshlrev_b32 v16, 5, v18")
    k.e("v_bfe_u32 v17, v1, 2, 2")
    k.e("v_add_u32 v16, v16, v17")
    k.e("v_bfe_u32 v19, v1, 4, 1")
    k.e("v_lshlrev_b32 v19, 5, v19")
    k.e("v_and_b32 v20, 3, v1")
    k.e("v_lshlrev_b32 v20, 3, v20")
    k.e("v_add_u32 v19, v19, v20")
    k.e("v_lshlrev_b32 v20, 7, v16")
    k.e("v_add_u32 v20, v20, v19")
    k.e("v_bfe_u32 v21, v1, 3, 1")
    k.e("v_lshlrev_b32 v21, 6, v21")
    k.e("v_add_u32 v20, v20, v21")
    k.e(f"v_add_u32 v232, {WKV}, v20")
    k.e("v_xor_b32 v233, 64, v232")
    k.e("v_lshlrev_b32 v20, 6, v16")
    k.e("v_add_u32 v20, v20, v19")
    k.e(f"v_add_u32 v234, {WQ}, v20")
    k.e("v_lshlrev_b32 v217, 6, v0")
    k.e(f"v_add_u32 v217, {WQ + 56}, v217")
    k.e("v_mov_b32 v235, 0")
    k.e("s_mov_b32 s62, 0")
    k.e("s_mov_b32 s63, -1")
    k.e("s_lshr_b32 s7, s6, 1")
    k.e("s_and_b32 s96, s6, 1")
    k.e("s_lshl_b32 s64, s96, 14")
    k.e("v_add_u32 v244, s64, v2")
    k.e("v_add_u32 v245, s40, v2")
    k.e("s_lshl_b32 s66, s7, 12")
    k.e("s_add_u32 s66, s66, 98304")
    k.e("v_add_u32 v248, s66, v2")
    k.e("v_and_b32 v249, 7, v1")
    k.e("v_lshlrev_b32 v249, 3, v249")
    k.e("s_lshl_b32 s97, s3, 7")
    k.e(f"s_add_u32 s97, s97, {FL1_OFF}")
    k.e("s_lshl_b32 s98, s3, 18")
    k.e("s_add_u32 s98, s98, s40")
    k.e("s_add_u32 s99, s5, 1")
    k.e("s_mov_b32 s49, 0")
    k.e("s_lshl_b32 s54, s69, 2")
    k.e("s_and_b32 s55, s70, 3")
    k.e("s_add_u32 s54, s54, s55")
    k.e("s_lshr_b32 s55, s70, 2")
    k.e("v_lshrrev_b32 v251, 3, v1")
    k.e("v_bfe_u32 v16, v251, 1, 1")
    k.e("v_lshlrev_b32 v16, 2, v16")
    k.e("v_and_b32 v17, 7, v1")
    k.e("v_xor_b32 v16, v16, v17")
    k.e("v_lshlrev_b32 v16, 4, v16")
    k.e("v_mul_u32_u24 v251, 896, v251")
    k.e("v_add_u32 v251, v251, v16")
    k.e("s_mul_i32 s100, s55, 112")
    k.e("s_mul_i32 s101, s6, 7168")
    k.e("s_add_u32 s100, s100, s101")
    k.e("s_mov_b32 s101, s100")
    k.e(f"s_add_u32 s43, s61, {WOB + 7*8192}")
    srd(k, 44, "s18", "s19", WO_BYTES)
    k.e("s_lshl_b32 s48, s3, 18")
    k.e("s_lshl_b32 s53, s5, 15")
    k.e("s_add_u32 s48, s48, s53")
    k.e("s_add_u32 s48, s48, s40")
    k.e("s_add_u32 s67, s40, 65536")
    k.e("v_add_u32 v238, s67, v2")
    k.e("s_lshl_b32 s66, s6, 11")
    k.e("s_add_u32 s66, s66, 98304")
    k.e("v_add_u32 v218, s66, v2")
    k.e("v_and_b32 v240, 31, v1")
    k.e("v_mov_b32 v239, 0x3f803f80")
    k.e("v_cmp_eq_u32 vcc, 28, v240")
    k.nop(2)
    k.e("v_cndmask_b32 v239, 0, v239, vcc")
    XR, QA, KA, VA, WF = 64, 16, 32, 48, 176
    KF, VF, QF = 200, 208, 220
    k.stamp("pro")
    WF = 176
    def R(c, vm):
        sl = c % 3
        k.e(f"s_waitcnt vmcnt({vm})")
        k.stamp("pro")
        xb = 8 if sl < 2 else 12
        xo = (sl % 2) * 32768
        for f in range(4):
            k.e(f"ds_read_b128 {vr(XR+(c*4+f)*4)}, v{xb+f} offset:{xo}")
        pieces = []
        if c + 3 <= 6: pieces += x_dma(c + 3)
        if c == 4:
            for n in range(4):
                pieces.append([f"s_add_u32 m0, s40, {WQ + n*1024}", f"s_add_u32 s68, s51, {n*16*2688}", "buffer_load_dwordx4 v6, s[32:35], s68 offen lds"])
            pieces.append(["buffer_load_dwordx2 v[236:237], v235, s[72:75], 0 offen sc1"])
        return pieces
    def wbase():
        k.e("s_lshl_b32 s64, s59, 13")
        k.e("v_add_u32 v242, s64, v232")
        k.e("v_add_u32 v243, s64, v233")
        k.ex(cyc7("s59"))
    def treads(g):
        c, f = divmod(g, 4)
        if f == 0:
            k.e("s_lshl_b32 s64, s59, 13")
            k.e(f"v_add_u32 v{242 + 4*(c&1)}, s64, v232")
            k.e(f"v_add_u32 v{243 + 4*(c&1)}, s64, v233")
            k.ex(cyc7("s59"))
        for seg in range(2):
            for s_ in range(2):
                r = WF + (g % 3)*8 + seg*4 + s_*2
                k.e(f"ds_read_b64_tr_b16 v[{r}:{r+1}], v{242 + 4*(c&1) + seg} offset:{(8*f+4*s_)*128}")
    waits = [6, 6, 5, 5, 5, 5, 5]
    for c in range(7):
        sl = c % 3
        k.e(f"s_waitcnt vmcnt({waits[c]})")
        k.stamp("pro")
        if c <= 5: k.e("s_barrier")
        xb = 8 if sl < 2 else 12
        xo = (sl % 2) * 32768
        if c == 0: treads(0)
        for f in range(4):
            k.e(f"ds_read_b128 {vr(XR+(c*4+f)*4)}, v{xb+f} offset:{xo}")
        if c == 0: treads(1)
        pend = []
        if c <= 3: pend.append(w_dma())
        if c + 2 <= 6: pend += x_dma(c + 2)
        if c == 5:
            for n in range(4):
                pend.append([f"s_add_u32 m0, s40, {WQ + n*1024}", f"s_add_u32 s68, s51, {n*16*2688}", "buffer_load_dwordx4 v6, s[32:35], s68 offen lds"])
        if c == 4:
            pend.append(["buffer_load_dwordx2 v[236:237], v235, s[72:75], 0 offen sc1"])
        n = len(pend); cuts = [(n*i)//4 for i in range(5)]
        per = [pend[cuts[i]:cuts[i+1]] for i in range(4)]
        for p in per[0]: k.ex(p)
        for f in range(4):
            g = c*4 + f
            if g + 2 < 28: treads(g + 2)
            if f == 0:
                later = (4 + 4) if c == 0 else (4 if g + 2 < 28 else 0)
            else:
                later = (4 if g + 1 < 28 else 0) + (4 if g + 2 < 28 else 0)
            k.e(f"s_waitcnt lgkmcnt({later})")
            x = XR + g*4; w = WF + (g % 3)*8
            z = "0" if g == 0 else None
            k.e(mfma(KA, w, x, z))
            k.e(mfma(VA, x, w+4, z))
            if f < 3:
                for p in per[f + 1]: k.ex(p)
    k.stamp("q2")
    k.e("s_waitcnt vmcnt(0)")
    k.e("ds_write_b16 v217, v216")
    k.stamp("all" if "q2" not in STAMPSET else "q2")
    def qreads(n):
        c, f = divmod(n, 4)
        if f == 0:
            k.e("s_lshl_b32 s64, s59, 12")
            k.e(f"v_add_u32 v{242 + 4*(c&1)}, s64, v234")
            k.ex(cyc7("s59"))
        for s_ in range(2):
            r = WF + (n & 3)*4 + s_*2
            k.e(f"ds_read_b64_tr_b16 v[{r}:{r+1}], v{242 + 4*(c&1)} offset:{(8*f + 4*s_)*64}")
    k.e("s_mov_b32 s58, 0")
    k.lab("L_nonce")
    k.e("v_readfirstlane_b32 s56, v236")
    k.e("v_readfirstlane_b32 s57, v237")
    k.e("s_add_u32 s58, s58, 1")
    k.e(f"s_cmp_ge_u32 s58, {SPIN_MAX}")
    k.e("s_cbranch_scc1 L_nonce_ok")
    k.e("s_cmp_lg_u32 s56, 0")
    k.e("s_cbranch_scc1 L_nonce_ok")
    k.e("buffer_load_dwordx2 v[236:237], v235, s[72:75], 0 offen sc1")
    k.e("s_waitcnt vmcnt(0)")
    k.e("s_branch L_nonce")
    k.lab("L_nonce_ok")
    k.e("s_waitcnt lgkmcnt(0)")
    k.e("s_barrier")
    k.stamp("q2")
    qreads(0); qreads(1); qreads(2)
    srd(k, 72, "s12", "s13", WO_BYTES)
    k.e("s_mov_b64 exec, s[62:63]")
    for i in (12,13,14): k.e(f"v_mov_b32 v{KA+i}, 1.0")
    k.e(f"v_mov_b32 v{KA+15}, 0")
    k.e("s_mov_b64 exec, -1")
    epi = []
    epi += [[f"v_cvt_pk_bf16_f32 v{KF+i}, v{KA+2*i}, v{KA+2*i+1}" for i in range(8)]]
    epi += [[f"buffer_store_dwordx4 {vr(KF)}, v2, s[36:39], s48 offen sc1", f"buffer_store_dwordx4 {vr(KF+4)}, v2, s[36:39], s48 offen offset:1024 sc1"] +
            [f"v_cvt_pk_bf16_f32 v{VF+i}, v{VA+2*i}, v{VA+2*i+1}" for i in range(8)]]
    epi += [["s_mov_b32 s64, 0xf0000000", "s_mov_b32 s65, 0xf0000000", "s_mov_b64 exec, s[64:65]"] + [f"v_mov_b32 v{VF+i}, v239" for i in range(8)] + ["s_mov_b64 exec, -1",
            f"buffer_store_dwordx4 {vr(VF)}, v2, s[36:39], s48 offen offset:2048 sc1", f"buffer_store_dwordx4 {vr(VF+4)}, v2, s[36:39], s48 offen offset:3072 sc1"]]
    epi += [[f"ds_write_b128 v238, {vr(r)} offset:{i*1024}" for i, r in enumerate((KF, KF+4, VF, VF+4))]]
    for n in range(28):
        if n + 3 < 28: qreads(n + 3)
        later = 2 * min(3, 27 - n)
        if n in (4, 5, 6): later += 4
        k.e(f"s_waitcnt lgkmcnt({later})")
        k.e(mfma(QA, WF + (n & 3)*4, XR + n*4, "0" if n == 0 else None))
        if n < len(epi):
            blk = epi[n]
            if "nostore" in EXP: blk = [x for x in blk if not x.startswith("buffer_store")]
            if "nodsw" in EXP: blk = [x for x in blk if not x.startswith("ds_write")]
            k.ex(blk)
        if n in (5, 13): k.stamp("q2")
    k.stamp("all" if "q2" not in STAMPSET else "q2")
    QR, OA, OB, S0, S1, PR, KR, VR, ST = 16, 32, 48, 64, 80, 96, 104, 120, 136
    GS = 250
    k.e(f"s_mov_b32 s64, {hex(f2u(CSCALE))}")
    k.e("v_mov_b32 v6, v244")
    k.e("v_mov_b32 v7, v245")
    k.e("v_add_u32 v3, 65536, v244")
    k.e("v_mov_b32 v4, v244")
    k.e("v_mov_b32 v5, v245")
    k.e("v_mov_b32 v9, v248")
    k.e("v_mov_b32 v10, v249")
    k.e("v_mov_b32 v11, v251")
    k.nop(3)
    k.e(f"v_mov_b32 v12, v{QA+12}")
    k.e(f"v_mov_b32 v{GS}, v{QA+12}")
    for i in range(12): k.e(f"v_mul_f32 v{QA+i}, s64, v{QA+i}")
    k.e(f"v_permlane32_swap_b32 v12, v{GS}")
    for i in range(6): k.e(f"v_cvt_pk_bf16_f32 v{QF+i}, v{QA+2*i}, v{QA+2*i+1}")
    k.e(f"v_mov_b32 v{QF+6}, 0")
    k.e(f"v_mov_b32 v{QF+7}, 0")
    k.e("s_mov_b32 exec_hi, 0")
    k.e(f"v_mul_f32 v{QA+12}, s64, v{QA+12}")
    k.e(f"v_mul_f32 v{QA+13}, s64, v{QA+13}")
    k.e(f"v_mul_f32 v{QA+14}, s64, v{QA+14}")
    k.e(f"v_mul_f32 v{QA+15}, s64, v{QA+15}")
    k.e(f"v_cvt_pk_bf16_f32 v{QF+6}, v{QA+12}, v{QA+13}")
    k.e(f"v_cvt_pk_bf16_f32 v{QF+7}, v{QA+14}, v{QA+15}")
    k.e("s_mov_b64 exec, -1")
    SS = 96
    k.e(f"v_mul_f32 v{GS}, s60, v{GS}")
    k.e(f"v_exp_f32 v{GS}, v{GS}")
    k.e(mfma(SS, KF, QF, "0"))
    k.e(mfma(SS, KF+4, QF+4))
    k.e(f"v_add_f32 v{GS}, 1.0, v{GS}")
    k.e(f"v_rcp_f32 v{GS}, v{GS}")
    k.e(f"ds_write_b128 v218, {vr(QF)}")
    k.nop(9)
    k.e(f"v_max3_f32 v12, v{SS}, v{SS+1}, v{SS+2}")
    k.e(f"v_max3_f32 v13, v{SS+3}, v{SS+4}, v{SS+5}")
    k.e(f"v_max3_f32 v12, v12, v{SS+6}, v{SS+7}")
    k.e(f"v_max3_f32 v13, v13, v{SS+8}, v{SS+9}")
    k.e(f"v_max3_f32 v12, v12, v{SS+10}, v{SS+11}")
    k.e(f"v_max3_f32 v13, v13, v{SS+12}, v{SS+13}")
    k.e(f"v_max3_f32 v12, v12, v{SS+14}, v{SS+15}")
    k.e("v_max_f32 v12, v12, v13")
    k.e("v_mov_b32 v13, v12")
    k.nop(2)
    k.e("v_permlane32_swap_b32 v12, v13")
    k.nop(1)
    k.e("v_max_f32 v12, v12, v13")
    shift_split(k, 12, 13, 14, 15, QF+6, QF+7)
    k.e(f"ds_write_b128 v218, {vr(QF+4)} offset:1024")
    k.e("s_waitcnt lgkmcnt(0)")
    k.e("s_barrier")
    k.stamp("all" if "q2" not in STAMPSET else "q2")
    k.e(f"ds_read_b128 {vr(QR)}, v9")
    k.e(f"ds_read_b128 {vr(QR+4)}, v9 offset:1024")
    k.e(f"ds_read_b128 {vr(KR)}, v3")
    k.e(f"ds_read_b128 {vr(KR+4)}, v3 offset:1024")
    k.e(f"ds_read_b128 {vr(QR+8)}, v9 offset:2048")
    k.e(f"ds_read_b128 {vr(QR+12)}, v9 offset:3072")
    k.e("s_waitcnt lgkmcnt(2)")
    k.e(mfma(S0, KR, QR, "0"))
    k.e(mfma(S0, KR+4, QR+4))
    k.e("s_waitcnt lgkmcnt(0)")
    k.nop(11)
    def Lload():
        if "noload" in EXP: return ["s_add_u32 s99, s99, 1"]
        return ["s_and_b32 s53, s99, 7", "s_lshl_b32 s53, s53, 15", "s_add_u32 s53, s53, s98", "s_add_u32 s99, s99, 1"] + \
               [f"buffer_load_dwordx4 {vr(ST+4*i)}, v2, s[36:39], s53 offen offset:{i*1024} sc1" for i in range(4)]
    def slot(Sbuf, pv, sq, extra, pvmode="acc"):
        e = [f"v_exp_f32 v{Sbuf+i}, v{Sbuf+i}" for i in range(16)]
        c = [f"v_cvt_pk_bf16_f32 v{PR+i}, v{Sbuf+2*i}, v{Sbuf+2*i+1}" for i in range(8)]
        O, V = pv; Sd, Kb, Qb = sq
        mPV0 = mfma(O, V, PR, "0" if pvmode == "zero" else None); mPV1 = mfma(O, V+4, PR+4)
        if pvmode == "skip": mPV0 = "s_nop 0"; mPV1 = "s_nop 0"
        mS0 = mfma(Sd, Kb, Qb, "0"); mS1 = mfma(Sd, Kb+4, Qb+4)
        seq = [mPV0, e[0], e[1], e[2], c[0], e[3], e[4], mS0, c[1], e[5], e[6], e[7], c[2], e[8], mS1, e[9], c[3],
               e[10], e[11], e[12], mPV1, e[13], c[4], e[14], c[5], e[15], c[6], c[7]]
        for pos, x in enumerate(seq):
            k.ex(extra.get(pos, []))
            k.e(x)
    def bdma():
        return ["s_mov_b32 m0, s43", "s_add_u32 s43, s43, 8192", "buffer_load_dwordx4 v11, s[44:47], s101 offen lds", f"s_add_u32 s101, s101, {8*7168}"]
    def wr(i): return [f"ds_write_b128 v5, {vr(ST+4*i)} offset:{i*1024}"]
    def body(kind):
        for t in range(4):
            kb = KR + (t & 1) * 8; kn = KR + ((t + 1) & 1) * 8
            vb = VR + (t & 1) * 8; vp = VR + ((t + 1) & 1) * 8
            exA = {}; exB = {0: ["s_waitcnt lgkmcnt(0)"]}
            def add(d, p, l): d.setdefault(p, []); d[p] = d[p] + l
            if t < 3:
                rk = [f"ds_read_b128 {vr(kn)}, v3 offset:{(t+1)*4096}", f"ds_read_b128 {vr(kn+4)}, v3 offset:{(t+1)*4096+1024}"]
            else:
                rk = [f"ds_read_b128 {vr(kn)}, v4", f"ds_read_b128 {vr(kn+4)}, v4 offset:1024"]
            rv = [f"ds_read_b128 {vr(vb)}, v3 offset:{t*4096+2048}", f"ds_read_b128 {vr(vb+4)}, v3 offset:{t*4096+3072}"]
            late_k = (kind == "first" and t == 3)
            if t == 0 and kind == "last":
                add(exA, 0, ["s_barrier"])
                for n in range(7):
                    add(exA, 2 + 3*n, [f"s_add_u32 m0, s61, {WOB + n*8192}", f"s_add_u32 s53, s100, {n*8*7168}", "buffer_load_dwordx4 v11, s[72:75], s53 offen lds"])
            if t == 2 and kind == "c6":
                add(exA, 10, ["v_lshrrev_b32 v12, 3, v1", "v_lshlrev_b32 v12, 6, v12", "v_and_b32 v13, 7, v1", "v_add_u32 v12, v12, v13", "v_mul_u32_u24 v12, 896, v12",
                              "buffer_load_dword v240, v12, s[72:75], s100 offen", "buffer_load_dword v241, v12, s[72:75], s100 offen offset:124"])
            if kind == "first" and t == 1:
                add(exA, 0, k.stamp_list("loop") + ["s_waitcnt vmcnt(0)", "s_barrier"] + k.stamp_list("loop") +
                    ["s_cmp_lg_u32 s6, 0", "s_cbranch_scc1 L_noflag1", "s_lshl_b32 s66, s3, 7", "s_lshl_b32 s67, s5, 3", "s_add_u32 s66, s66, s67",
                     f"s_add_u32 s66, s66, {FL1_OFF}", "v_mov_b32 v236, s56", "v_mov_b32 v237, s57", "s_mov_b64 exec, 1",
                     "buffer_store_dwordx2 v[236:237], v235, s[36:39], s66 offen sc1", "s_mov_b64 exec, -1", "L_noflag1:"])
                add(exB, 14, ["buffer_load_dwordx2 v[152:153], v10, s[36:39], s97 offen sc1"])
            if kind == "first" and t == 2:
                add(exA, 0, k.stamp_list("loop") + poll_list("L_p1", 10, "s97", 152, True) + k.stamp_list("loop") + Lload())
            if t == 3 and kind in ("mid", "c6"):
                add(exA, 0, ["s_waitcnt lgkmcnt(0)"] + ([] if "nobar" in EXP else ["s_barrier"]))
                if kind == "mid":
                    ll = Lload()
                    add(exA, 2, bdma()); add(exA, 4, ll[:5])
                    for p, x in zip((6, 9, 11), ll[5:]): add(exA, p, [x])
            if late_k:
                exB[0] = ["s_waitcnt vmcnt(0) lgkmcnt(0)"] + sum([wr(i) for i in range(4)], []) + ["s_waitcnt lgkmcnt(0)", "s_barrier"] + rk
                ll = Lload()
                add(exB, 2, bdma() + bdma() + bdma()); add(exB, 4, ll[:5])
                add(exB, 7, ["s_waitcnt lgkmcnt(0)"])
                for p, x in zip((8, 9, 11), ll[5:]): add(exB, p, [x])
                add(exA, 5, [rv[0]]); add(exA, 8, [rv[1]])
            else:
                add(exA, 1, [rk[0]]); add(exA, 3, [rk[1]]); add(exA, 5, [rv[0]]); add(exA, 8, [rv[1]])
            wrs = kind in ("mid", "c6")
            if wrs and t == 1: add(exA, 12, ["s_waitcnt vmcnt(0)"] + wr(0)); add(exB, 12, wr(1))
            if wrs and t == 2: add(exA, 12, wr(2)); add(exB, 12, wr(3))
            if t == 3 and kind != "last":
                add(exB, 20, ["v_mov_b32 v3, v4", "s_add_u32 s49, s49, 32768", "s_cmp_eq_u32 s49, 98304", "s_cselect_b32 s49, 0, s49"])
                add(exB, 22, ["v_add_u32 v4, s49, v6", "v_add_u32 v5, s49, v7"])
                if kind == "mid":
                    add(exB, 24, ["s_add_u32 s48, s48, 1"]); add(exB, 26, ["s_cmp_lt_u32 s48, 6"])
            fa = "skip" if (kind == "first" and t == 0) else "zero" if (kind == "first" and t == 1) else "acc"
            fb = "zero" if (kind == "first" and t == 0) else "acc"
            slot(S0, (OB, vp), (S1, kb, QR+8), exA, fa)
            slot(S1, (OA, vb), (S0, kn, QR), exB, fb)
    body("first")
    k.e("s_mov_b32 s48, 1")
    k.e(".p2align 6")
    k.lab("L_loop")
    body("mid")
    k.e("s_cbranch_scc1 L_loop")
    body("c6")
    body("last")
    k.stamp()
    k.nop(2)
    k.e(mfma(OB, VR+8, PR))
    k.e(mfma(OB, VR+12, PR+4))
    k.e("v_add_u32 v11, s40, v2")
    k.e("s_xor_b32 s29, s6, 1")
    k.e("s_lshl_b32 s29, s29, 12")
    k.e("v_add_u32 v12, s29, v2")
    k.e("s_lshl_b32 s29, s41, 16")
    k.e("s_lshl_b32 s30, s3, 11")
    k.e("s_add_u32 s29, s29, s30")
    k.e(f"s_add_u32 s29, s29, {OF_OFF}")
    k.e("s_barrier")
    k.nop(4)
    k.e("s_cmp_eq_u32 s96, 0")
    k.e("s_cbranch_scc0 L_x1")
    for i in range(4): k.e(f"ds_write_b128 v11, {vr(OB+4*i)} offset:{i*1024}")
    k.e("s_waitcnt lgkmcnt(0)")
    k.e("s_barrier")
    for i in range(4): k.e(f"ds_read_b128 {vr(S0+4*i)}, v12 offset:{i*1024}")
    for i in range(16):
        if i % 4 == 0: k.e(f"s_waitcnt lgkmcnt({3 - i//4})")
        k.e(f"v_add_f32 v{OA+i}, v{OA+i}, v{S0+i}")
    k.e("s_branch L_xd")
    k.lab("L_x1")
    for i in range(4): k.e(f"ds_write_b128 v11, {vr(OA+4*i)} offset:{i*1024}")
    k.e("s_waitcnt lgkmcnt(0)")
    k.e("s_barrier")
    for i in range(4): k.e(f"ds_read_b128 {vr(S0+4*i)}, v12 offset:{i*1024}")
    for i in range(16):
        if i % 4 == 0: k.e(f"s_waitcnt lgkmcnt({3 - i//4})")
        k.e(f"v_add_f32 v{OA+i}, v{OB+i}, v{S0+i}")
    k.lab("L_xd")
    k.e("s_mov_b32 s59, 0")
    k.lab("L_norm")
    k.e("s_mov_b32 s64, 0x203")
    k.e(f"v_mov_b32 v13, v{OA+12}")
    k.e(f"v_mov_b32 v14, v{OA+12}")
    k.e(f"v_maximum3_f32 v15, |v{OA}|, |v{OA+1}|, |v{OA+2}|")
    k.e(f"v_maximum3_f32 v15, |v{OA+3}|, |v{OA+4}|, v15")
    k.e("v_permlane32_swap_b32 v13, v14")
    for i in range(5, 15, 2): k.e(f"v_maximum3_f32 v15, |v{OA+i}|, |v{OA+i+1}|, v15")
    k.e("v_rcp_f32 v13, v14")
    k.e(f"v_maximum3_f32 v15, |v{OA+15}|, |v14|, v15")
    k.e(f"v_mul_f32 v13, v13, v{GS}")
    k.e("v_cmp_class_f32 vcc, v15, s64")
    for i in range(12): k.e(f"v_mul_f32 v{OA+i}, v{OA+i}, v13")
    k.e("s_cmp_lg_u32 s59, 0")
    k.e("s_cbranch_scc1 L_norm_ok")
    k.e("s_cmp_lg_u64 vcc, 0")
    k.e("s_cbranch_scc1 L_fallback")
    k.lab("L_norm_ok")
    for i in range(12, 16): k.e(f"v_mul_f32 v{OA+i}, v{OA+i}, v13")
    k.e("s_mov_b64 exec, s[62:63]")
    for i in (12,13,14,15): k.e(f"v_mov_b32 v{OA+i}, 0")
    k.e("s_mov_b64 exec, -1")
    for i in range(4): k.e(f"v_cvt_pk_bf16_f32 v{PR+i}, v{OA+2*i}, v{OA+2*i+1}")
    k.e(f"buffer_store_dwordx4 {vr(PR)}, v2, s[36:39], s29 offen sc1")
    for i in range(4, 8): k.e(f"v_cvt_pk_bf16_f32 v{PR+i}, v{OA+2*i}, v{OA+2*i+1}")
    k.e(f"buffer_store_dwordx4 {vr(PR+4)}, v2, s[36:39], s29 offen offset:1024 sc1")
    k.e("s_lshr_b32 s7, s6, 2")
    k.e("s_and_b32 s28, s6, 3")
    k.e("v_lshrrev_b32 v5, 5, v1")
    k.e("v_lshlrev_b32 v5, 2, v5")
    k.e("v_bfe_u32 v6, v1, 2, 2")
    k.e("v_add_u32 v5, v5, v6")
    k.e("v_lshlrev_b32 v5, 7, v5")
    k.e("v_bfe_u32 v7, v1, 4, 1")
    k.e("v_lshlrev_b32 v7, 1, v7")
    k.e("v_bfe_u32 v8, v1, 1, 1")
    k.e("v_add_u32 v7, v7, v8")
    k.e("v_bfe_u32 v8, v6, 1, 1")
    k.e("v_lshlrev_b32 v8, 2, v8")
    k.e("v_xor_b32 v7, v7, v8")
    k.e("v_lshlrev_b32 v7, 4, v7")
    k.e("v_add_u32 v5, v5, v7")
    k.e("v_and_b32 v7, 1, v1")
    k.e("v_lshlrev_b32 v7, 3, v7")
    k.e("v_add_u32 v5, v5, v7")
    k.e("v_xor_b32 v6, 64, v5")
    k.e("s_mul_i32 s29, s28, 28672")
    k.e(f"s_add_u32 s29, s29, {WOB}")
    k.e("v_add_u32 v5, s29, v5")
    k.e("v_add_u32 v6, s29, v6")
    k.e("v_mov_b32 v13, 0")
    k.e("v_and_b32 v10, 31, v1")
    k.e("v_lshlrev_b32 v11, 3, v10")
    k.e("s_lshr_b32 s66, s54, 2")
    k.e("s_lshl_b32 s66, s66, 8")
    k.e(f"s_add_u32 s66, s66, {FL2_OFF}")
    k.e("s_lshl_b32 s32, s54, 1")
    k.e("s_add_u32 s32, s32, s7")
    k.e("s_lshl_b32 s33, s32, 16")
    k.e("s_lshl_b32 s34, s28, 14")
    k.e("s_add_u32 s33, s33, s34")
    k.e(f"s_add_u32 s33, s33, {OF_OFF}")
    k.e("s_lshl_b32 s29, s7, 15")
    k.e("s_lshl_b32 s30, s28, 12")
    k.e("s_add_u32 s29, s29, s30")
    k.e("v_add_u32 v16, s29, v2")
    k.e("s_bfe_u32 s29, s6, 0x10001")
    k.e("s_and_b32 s30, s6, 1")
    k.e("s_lshl_b32 s31, s7, 15")
    k.e("s_lshl_b32 s34, s29, 14")
    k.e("s_add_u32 s31, s31, s34")
    k.e("s_lshl_b32 s34, s30, 11")
    k.e("s_add_u32 s31, s31, s34")
    k.e("v_add_u32 v17, s31, v2")
    k.e("v_mul_u32_u24 v18, 896, v10")
    k.e("v_lshrrev_b32 v12, 5, v1")
    k.e("v_lshlrev_b32 v12, 4, v12")
    k.e("v_add_u32 v18, v18, v12")
    k.e("s_lshl_b32 s31, s29, 6")
    k.e("s_lshl_b32 s34, s30, 5")
    k.e("s_add_u32 s31, s31, s34")
    k.e("v_add_u32 v12, s31, v12")
    k.e("v_cmp_gt_u32 vcc, 112, v12")
    k.e("s_mul_i32 s34, s55, 112")
    k.e("s_add_u32 s31, s31, s34")
    k.e("s_mul_i32 s34, s32, 28672")
    k.e("s_add_u32 s31, s31, s34")
    k.e("v_mov_b32 v19, 0x7fffffff")
    k.e("v_cndmask_b32 v18, v19, v18, vcc")
    srd(k, 48, "s22", "s23", OUT_BYTES)
    k.e("s_waitcnt vmcnt(0)")
    k.e("s_barrier")
    k.stamp()
    k.e("s_cmp_lg_u32 s6, 0")
    k.e("s_cbranch_scc1 L_noflag2")
    k.e("s_lshl_b32 s64, s5, 8")
    k.e("s_lshl_b32 s67, s3, 3")
    k.e("s_add_u32 s64, s64, s67")
    k.e(f"s_add_u32 s64, s64, {FL2_OFF}")
    k.e("v_mov_b32 v14, s56")
    k.e("v_mov_b32 v15, s57")
    k.e("s_mov_b64 exec, 1")
    k.e("buffer_store_dwordx2 v[14:15], v13, s[36:39], s64 offen sc1")
    k.e("s_mov_b64 exec, -1")
    k.lab("L_noflag2")
    k.ex(poll_list("L_p2", 11, "s66", 14, False))
    k.stamp()
    OR = 64
    for i in range(16):
        if i % 4 == 0 and i > 0: k.e("s_add_u32 s33, s33, 4096")
        k.e(f"buffer_load_dwordx4 {vr(OR+4*i)}, v2, s[36:39], s33 offen offset:{(i%4)*1024} sc1")
    A0, A1, WF3 = 32, 48, 128
    steps = [(hh, m) for hh in range(8) for m in range(2)]
    def treads3(hh, m, buf):
        for ct in range(2):
            for s_ in range(2):
                r = WF3 + buf*8 + ct*4 + s_*2
                k.e(f"ds_read_b64_tr_b16 v[{r}:{r+1}], v{5+ct} offset:{(hh*28 + 16*m + 8*s_) * 128}")
    treads3(*steps[0], 0)
    for i, (hh, m) in enumerate(steps):
        if i + 1 < len(steps):
            treads3(*steps[i+1], (i+1) & 1)
            k.e(f"s_waitcnt vmcnt({15-i}) lgkmcnt(4)")
        else:
            k.e(f"s_waitcnt vmcnt({15-i}) lgkmcnt(0)")
        w = WF3 + (i & 1)*8
        z = "0" if i == 0 else None
        k.e(mfma(A0, w, OR+4*i, z))
        k.e(mfma(A1, w+4, OR+4*i, z))
    k.stamp()
    k.e("s_barrier")
    k.nop(10)
    for q in range(4): k.e(f"ds_write_b128 v16, {vr(A0+4*q)} offset:{q*1024}")
    for q in range(4): k.e(f"ds_write_b128 v16, {vr(A1+4*q)} offset:{16384+q*1024}")
    k.e("s_waitcnt lgkmcnt(0)")
    k.e("s_barrier")
    for kq in range(4):
        for q in range(2):
            k.e(f"ds_read_b128 {vr(64+kq*8+q*4)}, v17 offset:{kq*4096+q*1024}")
    k.e("s_waitcnt lgkmcnt(4)")
    for i in range(8): k.e(f"v_add_f32 v{64+i}, v{64+i}, v{72+i}")
    k.e("s_waitcnt lgkmcnt(0)")
    for i in range(8): k.e(f"v_add_f32 v{80+i}, v{80+i}, v{88+i}")
    for i in range(8): k.e(f"v_add_f32 v{64+i}, v{64+i}, v{80+i}")
    for i in range(4): k.e(f"v_cvt_pk_bf16_f32 v{20+i}, v{64+2*i}, v{65+2*i}")
    k.nop(2)
    k.e("v_permlane32_swap_b32 v20, v22")
    k.e("v_permlane32_swap_b32 v21, v23")
    k.nop(1)
    k.e("buffer_store_dwordx4 v[20:23], v18, s[48:51], s31 offen")
    k.stamp()
    k.stamp_flush()
    k.lab("L_end")
    k.e("s_endpgm")
    k.lab("L_fallback")
    k.e("s_mov_b32 s59, 1")
    k.e("s_and_b32 s30, s6, 1")
    k.e("s_cmp_eq_u32 s30, 0")
    k.e("s_cbranch_scc1 L_fbq")
    for i in range(8): k.e(f"v_mov_b32 v{QR+i}, v{QR+8+i}")
    k.lab("L_fbq")
    k.e("s_mov_b64 exec, s[62:63]")
    k.e(f"v_mov_b32 v{QR+6}, 0")
    k.e(f"v_mov_b32 v{QR+7}, 0")
    k.e("s_mov_b64 exec, -1")
    k.e("v_mov_b32 v13, 0xff800000")
    k.e("s_lshl_b32 s64, s3, 18")
    k.e("s_mov_b32 s30, 0")
    k.lab("L_fb1")
    k.e(f"buffer_load_dwordx4 {vr(KR)}, v2, s[36:39], s64 offen sc1")
    k.e(f"buffer_load_dwordx4 {vr(KR+4)}, v2, s[36:39], s64 offen offset:1024 sc1")
    k.e("s_waitcnt vmcnt(0)")
    k.e(mfma(S0, KR, QR, "0"))
    k.e(mfma(S0, KR+4, QR+4))
    k.nop(12)
    for i in range(0, 16, 2): k.e(f"v_max3_f32 v13, v13, v{S0+i}, v{S0+i+1}")
    k.e("s_add_u32 s64, s64, 4096")
    k.e("s_add_u32 s30, s30, 1")
    k.e("s_cmp_lt_u32 s30, 64")
    k.e("s_cbranch_scc1 L_fb1")
    k.e("v_mov_b32 v14, v13")
    k.nop(2)
    k.e("v_permlane32_swap_b32 v13, v14")
    k.nop(1)
    k.e("v_max_f32 v13, v13, v14")
    shift_split(k, 13, 14, 15, 12, QR+6, QR+7)
    for i in range(16): k.e(f"v_mov_b32 v{OA+i}, 0")
    k.e("s_lshl_b32 s64, s3, 18")
    k.e("s_mov_b32 s30, 0")
    k.lab("L_fb2")
    k.e(f"buffer_load_dwordx4 {vr(KR)}, v2, s[36:39], s64 offen sc1")
    k.e(f"buffer_load_dwordx4 {vr(KR+4)}, v2, s[36:39], s64 offen offset:1024 sc1")
    k.e(f"buffer_load_dwordx4 {vr(VR)}, v2, s[36:39], s64 offen offset:2048 sc1")
    k.e(f"buffer_load_dwordx4 {vr(VR+4)}, v2, s[36:39], s64 offen offset:3072 sc1")
    k.e("s_waitcnt vmcnt(0)")
    k.e(mfma(S0, KR, QR, "0"))
    k.e(mfma(S0, KR+4, QR+4))
    k.nop(12)
    for i in range(16): k.e(f"v_exp_f32 v{S0+i}, v{S0+i}")
    k.nop(1)
    for i in range(8): k.e(f"v_cvt_pk_bf16_f32 v{PR+i}, v{S0+2*i}, v{S0+2*i+1}")
    k.nop(2)
    k.e(mfma(OA, VR, PR))
    k.e(mfma(OA, VR+4, PR+4))
    k.e("s_add_u32 s64, s64, 4096")
    k.e("s_add_u32 s30, s30, 1")
    k.e("s_cmp_lt_u32 s30, 64")
    k.e("s_cbranch_scc1 L_fb2")
    k.nop(12)
    k.e("s_branch L_norm")
    return k.l, dict(vgpr=252, sgpr=100, lds=163840, block=512)

def main(outpath):
    l, m = gen()
    o = [f"; gated_mix mha block, fused single launch (projection -> attention -> output projection, flag hand-offs). Generated by my own generator script.",
         f"; @launch grid=(256,1,1) block=({m['block']},1,1) lds={m['lds']}",
         '.amdgcn_target "amdgcn-amd-amdhsa--gfx950"', ".text", f".globl {KNAME}", ".p2align 8", f".type {KNAME},@function"] + l
    acc = (m['vgpr'] + 3) // 4 * 4
    o += ['.section .rodata,"a"', ".p2align 6", f".amdhsa_kernel {KNAME}", f"  .amdhsa_next_free_vgpr {m['vgpr']}", f"  .amdhsa_next_free_sgpr {m['sgpr']}",
          f"  .amdhsa_accum_offset {acc}", "  .amdhsa_group_segment_fixed_size 0", "  .amdhsa_kernarg_size 80",
          "  .amdhsa_user_sgpr_count 2", "  .amdhsa_user_sgpr_kernarg_segment_ptr 1", "  .amdhsa_system_sgpr_workgroup_id_x 1", ".end_amdhsa_kernel"]
    open(outpath, "w").write("\n".join(o) + "\n")

if __name__ == "__main__":
    main(sys.argv[1] if len(sys.argv) > 1 else f"cdna_kernels/{NAME}.s")
```

```python
import sys, math, os, struct

NAME = "gated_mix__mha_block__softmax_full_mha__prompt"
KNAME = NAME + "_kernel"
X_BYTES = 2048 * 448 * 2
W_BYTES = 448 * 1344 * 2
WO_BYTES = 448 * 448 * 2
OUT_BYTES = 2048 * 448 * 2
KV_OFF = 0
OF_OFF = 8 << 20
FL1_OFF = (12 << 20) + 8192
FL2_OFF = (12 << 20) + 16384
STAMP_OFF = 13 << 20
WS_USED = 14 << 20
LOG2E = math.log2(math.e)
CSCALE = (28 ** -0.5) * LOG2E
STAMP = int(os.environ.get("STAMP", "0"))
STAMPSET = os.environ.get("STAMPSET", "all").split(",")
EXP = os.environ.get("EXP", "").split(",")
SPIN_MAX = 1 << 18
def f2u(x): return struct.unpack('<I', struct.pack('<f', x))[0]

class K:
    def __init__(s): s.l = []; s.ns = 0
    def e(s, t):
        if t.endswith(":"): s.l.append(t)
        else: s.l.append("  " + t)
    def ex(s, ts):
        for t in ts: s.e(t)
    def lab(s, t): s.l.append(t + ":")
    def nop(s, n):
        while n > 0:
            k = min(n, 16); s.e(f"s_nop {k-1}"); n -= k
    def stamp(s, tag="all"):
        if not STAMP: return
        if tag not in STAMPSET and s.ns > 0: return
        i = s.ns; s.ns += 1
        assert i < 14
        if i == 0:
            s.e("s_memrealtime s[76:77]"); s.e("s_waitcnt lgkmcnt(0)"); s.e("s_mov_b32 s94, s76")
        s.e("s_memrealtime s[76:77]" if os.environ.get("STAMPRT") else "s_memtime s[76:77]"); s.e("s_waitcnt lgkmcnt(0)"); s.e(f"s_mov_b32 s{80+i}, s76")
    def stamp_list(s, tag):
        save = s.l; s.l = []
        s.stamp(tag)
        out = [x.strip() for x in s.l]; s.l = save
        return out
    def stamp_flush(s):
        if not STAMP: return
        if os.environ.get("STAMPDBG"):
            wgid = int(os.environ["STAMPDBG"])
            s.e(f"s_cmp_lg_u32 s2, {wgid}"); s.e("s_cbranch_scc1 L_nodbg"); s.e("s_cmp_lg_u32 s6, 0"); s.e("s_cbranch_scc1 L_nodbg")
            s.e("s_mov_b32 s72, s24"); s.e("s_mov_b32 s73, s25"); s.e("s_mov_b32 s74, 256"); s.e("s_mov_b32 s75, 0x20000")
            s.e("v_mov_b32 v0, 0"); s.e("s_mov_b64 exec, 1")
            for i in range(14):
                s.e(f"s_sub_u32 s78, s{80+i}, s80")
                s.e(f"v_mov_b32 v1, s78")
                s.e(f"buffer_store_dword v1, v0, s[72:75], 0 offen offset:{8+4*i}")
                s.e("s_nop 1")
            s.e("s_mov_b64 exec, -1")
            s.lab("L_nodbg")
            return
        s.e("s_lshl_b32 s78, s2, 3"); s.e("s_add_u32 s78, s78, s6"); s.e("s_lshl_b32 s78, s78, 6")
        s.e(f"s_add_u32 s78, s78, {STAMP_OFF}")
        s.e("s_memrealtime s[76:77]"); s.e("s_waitcnt lgkmcnt(0)"); s.e("s_mov_b32 s95, s76")
        s.e("v_mov_b32 v0, 0"); s.e("s_mov_b64 exec, 1")
        for i in range(16):
            s.e(f"v_mov_b32 v1, s{80+i}")
            s.e(f"buffer_store_dword v1, v0, s[36:39], s78 offen offset:{4*i}")
            s.e("s_nop 1")
        s.e("s_mov_b64 exec, -1")

def vr(b, n=4): return f"v[{b}:{b+n-1}]"
def mfma(d, a, b, c=None):
    cc = vr(d, 16) if c is None else c
    return f"v_mfma_f32_32x32x16_bf16 {vr(d,16)}, {vr(a)}, {vr(b)}, {cc}"
def srd(k, b, lo, hi, nbytes):
    k.e(f"s_mov_b32 s{b}, {lo}"); k.e(f"s_mov_b32 s{b+1}, {hi}"); k.e(f"s_mov_b32 s{b+2}, {nbytes}"); k.e(f"s_mov_b32 s{b+3}, 0x20000")
def cyc7(r): return [f"s_add_u32 {r}, {r}, 1", f"s_cmp_eq_u32 {r}, 7", f"s_cselect_b32 {r}, 0, {r}"]

def shift_split(k, m, t1, t2, t3, q6, q7):
    k.e(f"v_sub_f32 v{m}, 0, v{m}")
    k.e(f"v_cvt_pk_bf16_f32 v{t1}, v{m}, v{m}")
    k.e(f"v_and_b32 v{t1}, 0xffff0000, v{t1}")
    k.e(f"v_sub_f32 v{t2}, v{m}, v{t1}")
    k.e(f"v_cvt_pk_bf16_f32 v{t3}, v{t2}, v{t2}")
    k.e(f"v_and_b32 v{t3}, 0xffff0000, v{t3}")
    k.e(f"v_sub_f32 v{t2}, v{t2}, v{t3}")
    k.e(f"v_mov_b32 v{m}, 0")
    k.e("s_mov_b64 exec, s[62:63]")
    k.e(f"v_cvt_pk_bf16_f32 v{q6}, v{t1}, v{t3}")
    k.e(f"v_cvt_pk_bf16_f32 v{q7}, v{t2}, v{m}")
    k.e("s_mov_b64 exec, -1")

def poll_list(label, voff, soff, vtmp, first_issued):
    o = ["s_mov_b32 s58, 0"]
    if first_issued: o += [f"s_branch {label}_chk"]
    o += [f"{label}:", f"buffer_load_dwordx2 v[{vtmp}:{vtmp+1}], v{voff}, s[36:39], {soff} offen sc1", f"{label}_chk:",
          "s_waitcnt vmcnt(0)", f"v_cmp_eq_u64 vcc, s[56:57], v[{vtmp}:{vtmp+1}]", "s_add_u32 s58, s58, 1",
          f"s_cmp_ge_u32 s58, {SPIN_MAX}", f"s_cbranch_scc1 {label}_done", "s_cmp_eq_u64 vcc, exec", f"s_cbranch_scc0 {label}", f"{label}_done:"]
    return o

def gen():
    k = K()
    k.lab(KNAME)
    k.e("s_cmp_ge_u32 s2, 256")
    k.e("s_cbranch_scc1 L_end")
    k.e("s_load_dwordx16 s[8:23], s[0:1], 0")
    k.e("s_load_dwordx4 s[24:27], s[0:1], 64")
    k.e("v_and_b32 v1, 63, v0")
    k.e("v_lshrrev_b32 v2, 6, v0")
    k.e("s_and_b32 s69, s2, 7")
    k.e("s_lshr_b32 s70, s2, 3")
    k.e("v_readfirstlane_b32 s6, v2")
    k.e("s_lshr_b32 s3, s69, 1")
    k.e("s_lshl_b32 s3, s3, 3")
    k.e("s_and_b32 s4, s70, 7")
    k.e("s_add_u32 s3, s3, s4")
    k.e("s_and_b32 s5, s69, 1")
    k.e("s_lshl_b32 s5, s5, 2")
    k.e("s_lshr_b32 s4, s70, 3")
    k.e("s_add_u32 s5, s5, s4")
    k.stamp()
    k.e("s_and_b32 s7, s3, 15")
    k.e("v_lshlrev_b32 v2, 4, v1")
    XS, WKV, WQ, WOB = 0, 98304, 32768, 40960
    k.e("v_lshrrev_b32 v3, 3, v1")
    k.e("v_lshrrev_b32 v4, 1, v3")
    k.e("v_and_b32 v5, 7, v1")
    k.e("v_xor_b32 v4, v4, v5")
    k.e("v_lshlrev_b32 v4, 4, v4")
    k.e("v_mul_u32_u24 v3, 896, v3")
    k.e("v_add_u32 v3, v3, v4")
    k.e("v_xor_b32 v4, 64, v3")
    k.e("v_lshrrev_b32 v5, 3, v1")
    k.e("v_bfe_u32 v6, v1, 2, 1")
    k.e("v_bfe_u32 v7, v1, 4, 1")
    k.e("v_xor_b32 v6, v6, v7")
    k.e("v_mul_u32_u24 v6, 896, v6")
    k.e("v_mul_u32_u24 v5, 2688, v5")
    k.e("v_add_u32 v5, v5, v6")
    k.e("v_and_b32 v6, 3, v1")
    k.e("v_lshlrev_b32 v6, 4, v6")
    k.e("v_add_u32 v5, v5, v6")
    k.e("v_add_u32 v5, 896, v5")
    k.e("v_lshrrev_b32 v7, 2, v1")
    k.e("v_mul_u32_u24 v7, 2688, v7")
    k.e("v_add_u32 v6, v7, v6")
    k.e("s_lshl_b32 s40, s6, 12")
    k.e("s_lshl_b32 s61, s6, 10")
    k.e("s_lshl_b32 s41, s5, 3")
    k.e("s_add_u32 s41, s41, s6")
    k.e("s_mul_i32 s42, s41, 28672")
    k.e("s_mul_i32 s43, s7, 56")
    k.e("s_mul_i32 s50, s6, 21504")
    k.e("s_add_u32 s50, s50, s43")
    k.e("s_mul_i32 s51, s6, 172032")
    k.e("s_add_u32 s51, s51, s43")
    k.e("s_and_b32 s71, s70, 7")
    k.e("s_lshr_b32 s68, s70, 3")
    k.e("s_lshl_b32 s68, s68, 1")
    k.e("s_add_u32 s71, s71, s68")
    for _ in range(2):
        k.e("s_cmp_ge_u32 s71, 7")
        k.e("s_cselect_b32 s68, 7, 0")
        k.e("s_sub_u32 s71, s71, s68")
    k.e("s_mov_b32 s59, s71")
    k.e("s_mov_b32 s52, s71")
    k.e("s_waitcnt lgkmcnt(0)")
    k.stamp("pro")
    srd(k, 28, "s8", "s9", X_BYTES)
    k.e("s_cmp_ge_u32 s3, 16")
    k.e("s_cselect_b32 s32, s16, s10")
    k.e("s_cselect_b32 s33, s17, s11")
    k.e(f"s_mov_b32 s34, {W_BYTES}")
    k.e("s_mov_b32 s35, 0x20000")
    k.e("s_cselect_b32 s60, 0, 0x80000000")
    k.e(f"s_xor_b32 s60, s60, {hex(f2u(LOG2E))}")
    def w_dma():
        return ["s_lshl_b32 s64, s52, 13", "s_add_u32 s64, s64, s61", f"s_add_u32 m0, s64, {WKV}", "s_mul_i32 s68, s52, 172032",
                "s_add_u32 s68, s68, s50", "buffer_load_dwordx4 v5, s[32:35], s68 offen lds"] + cyc7("s52")
    def x_dma(i):
        sl = i % 3
        p = []
        for q in range(4):
            o = []
            if q == 0: o += [f"s_add_u32 m0, s40, {XS + sl*32768}", "s_lshl_b32 s65, s71, 7", "s_add_u32 s65, s65, s42"]
            else: o += [f"s_add_u32 m0, s40, {XS + sl*32768}", "s_add_u32 s65, s65, 6144"]
            o += [f"buffer_load_dwordx4 v{3 + (q&1)}, s[28:31], s65 offen offset:{q*1024} lds"]
            if q == 3: o += cyc7("s71")
            p.append(o)
        return p
    k.ex(w_dma())
    for p in x_dma(0): k.ex(p)
    k.ex(w_dma())
    k.e("s_barrier")
    srd(k, 36, "s26", "s27", WS_USED)
    srd(k, 52 + 20, "s24", "s25", 256)
    k.e("s_or_b32 s58, s2, s6")
    k.e("s_cmp_lg_u32 s58, 0")
    k.e("s_cbranch_scc1 L_nononce")
    k.e("s_memrealtime s[56:57]")
    k.e("s_waitcnt lgkmcnt(0)")
    k.e("s_or_b32 s56, s56, 1")
    k.e("v_mov_b32 v8, s56")
    k.e("v_mov_b32 v9, s57")
    k.e("v_mov_b32 v10, 0")
    k.e("s_mov_b64 exec, 1")
    k.e("buffer_store_dwordx2 v[8:9], v10, s[72:75], 0 offen sc1")
    k.e("s_mov_b64 exec, -1")
    k.lab("L_nononce")
    k.ex(w_dma())
    for p in x_dma(1): k.ex(p)
    srd(k, 44, "s20", "s21", 896)
    k.e("v_lshlrev_b32 v8, 1, v0")
    k.e("buffer_load_ushort v216, v8, s[44:47], 0 offen")
    k.stamp("pro")
    k.e("v_and_b32 v16, 31, v1")
    k.e("v_bfe_u32 v17, v1, 1, 3")
    k.e("v_lshrrev_b32 v18, 5, v1")
    k.e("v_lshlrev_b32 v19, 2, v18")
    k.e("v_xor_b32 v17, v17, v19")
    k.e("v_lshlrev_b32 v17, 4, v17")
    k.e("v_lshlrev_b32 v16, 7, v16")
    k.e("v_add_u32 v16, v16, v17")
    k.e("v_add_u32 v8, s40, v16")
    for f in (1, 2, 3): k.e(f"v_xor_b32 v{8+f}, {16*f}, v8")
    for f in range(4): k.e(f"v_add_u32 v{12+f}, 0x10000, v{8+f}")
    k.e("v_lshlrev_b32 v16, 5, v18")
    k.e("v_bfe_u32 v17, v1, 2, 2")
    k.e("v_add_u32 v16, v16, v17")
    k.e("v_bfe_u32 v19, v1, 4, 1")
    k.e("v_lshlrev_b32 v19, 5, v19")
    k.e("v_and_b32 v20, 3, v1")
    k.e("v_lshlrev_b32 v20, 3, v20")
    k.e("v_add_u32 v19, v19, v20")
    k.e("v_lshlrev_b32 v20, 7, v16")
    k.e("v_add_u32 v20, v20, v19")
    k.e("v_bfe_u32 v21, v1, 3, 1")
    k.e("v_lshlrev_b32 v21, 6, v21")
    k.e("v_add_u32 v20, v20, v21")
    k.e(f"v_add_u32 v232, {WKV}, v20")
    k.e("v_xor_b32 v233, 64, v232")
    k.e("v_lshlrev_b32 v20, 6, v16")
    k.e("v_add_u32 v20, v20, v19")
    k.e(f"v_add_u32 v234, {WQ}, v20")
    k.e("v_lshlrev_b32 v217, 6, v0")
    k.e(f"v_add_u32 v217, {WQ + 56}, v217")
    k.e("v_mov_b32 v235, 0")
    k.e("s_mov_b32 s62, 0")
    k.e("s_mov_b32 s63, -1")
    k.e("s_lshr_b32 s7, s6, 1")
    k.e("s_and_b32 s96, s6, 1")
    k.e("s_lshl_b32 s64, s96, 14")
    k.e("v_add_u32 v244, s64, v2")
    k.e("v_add_u32 v245, s40, v2")
    k.e("s_lshl_b32 s66, s7, 12")
    k.e("s_add_u32 s66, s66, 98304")
    k.e("v_add_u32 v248, s66, v2")
    k.e("v_and_b32 v249, 7, v1")
    k.e("v_lshlrev_b32 v249, 3, v249")
    k.e("s_lshl_b32 s97, s3, 7")
    k.e(f"s_add_u32 s97, s97, {FL1_OFF}")
    k.e("s_lshl_b32 s98, s3, 18")
    k.e("s_add_u32 s98, s98, s40")
    k.e("s_add_u32 s99, s5, 1")
    k.e("s_mov_b32 s49, 0")
    k.e("s_lshl_b32 s54, s69, 2")
    k.e("s_and_b32 s55, s70, 3")
    k.e("s_add_u32 s54, s54, s55")
    k.e("s_lshr_b32 s55, s70, 2")
    k.e("v_lshrrev_b32 v251, 3, v1")
    k.e("v_bfe_u32 v16, v251, 1, 1")
    k.e("v_lshlrev_b32 v16, 2, v16")
    k.e("v_and_b32 v17, 7, v1")
    k.e("v_xor_b32 v16, v16, v17")
    k.e("v_lshlrev_b32 v16, 4, v16")
    k.e("v_mul_u32_u24 v251, 896, v251")
    k.e("v_add_u32 v251, v251, v16")
    k.e("s_mul_i32 s100, s55, 112")
    k.e("s_mul_i32 s101, s6, 7168")
    k.e("s_add_u32 s100, s100, s101")
    k.e("s_mov_b32 s101, s100")
    k.e(f"s_add_u32 s43, s61, {WOB + 7*8192}")
    srd(k, 44, "s18", "s19", WO_BYTES)
    k.e("s_lshl_b32 s48, s3, 18")
    k.e("s_lshl_b32 s53, s5, 15")
    k.e("s_add_u32 s48, s48, s53")
    k.e("s_add_u32 s48, s48, s40")
    k.e("s_add_u32 s67, s40, 65536")
    k.e("v_add_u32 v238, s67, v2")
    k.e("s_lshl_b32 s66, s6, 11")
    k.e("s_add_u32 s66, s66, 98304")
    k.e("v_add_u32 v218, s66, v2")
    k.e("v_and_b32 v240, 31, v1")
    k.e("v_mov_b32 v239, 0x3f803f80")
    k.e("v_cmp_eq_u32 vcc, 28, v240")
    k.nop(2)
    k.e("v_cndmask_b32 v239, 0, v239, vcc")
    XR, QA, KA, VA, WF = 64, 16, 32, 48, 176
    KF, VF, QF = 200, 208, 220
    k.stamp("pro")
    WF = 176
    def R(c, vm):
        sl = c % 3
        k.e(f"s_waitcnt vmcnt({vm})")
        k.stamp("pro")
        xb = 8 if sl < 2 else 12
        xo = (sl % 2) * 32768
        for f in range(4):
            k.e(f"ds_read_b128 {vr(XR+(c*4+f)*4)}, v{xb+f} offset:{xo}")
        pieces = []
        if c + 3 <= 6: pieces += x_dma(c + 3)
        if c == 4:
            for n in range(4):
                pieces.append([f"s_add_u32 m0, s40, {WQ + n*1024}", f"s_add_u32 s68, s51, {n*16*2688}", "buffer_load_dwordx4 v6, s[32:35], s68 offen lds"])
            pieces.append(["buffer_load_dwordx2 v[236:237], v235, s[72:75], 0 offen sc1"])
        return pieces
    def wbase():
        k.e("s_lshl_b32 s64, s59, 13")
        k.e("v_add_u32 v242, s64, v232")
        k.e("v_add_u32 v243, s64, v233")
        k.ex(cyc7("s59"))
    def treads(g):
        c, f = divmod(g, 4)
        if f == 0:
            k.e("s_lshl_b32 s64, s59, 13")
            k.e(f"v_add_u32 v{242 + 4*(c&1)}, s64, v232")
            k.e(f"v_add_u32 v{243 + 4*(c&1)}, s64, v233")
            k.ex(cyc7("s59"))
        for seg in range(2):
            for s_ in range(2):
                r = WF + (g % 3)*8 + seg*4 + s_*2
                k.e(f"ds_read_b64_tr_b16 v[{r}:{r+1}], v{242 + 4*(c&1) + seg} offset:{(8*f+4*s_)*128}")
    waits = [6, 6, 5, 5, 5, 5, 5]
    for c in range(7):
        sl = c % 3
        k.e(f"s_waitcnt vmcnt({waits[c]})")
        k.stamp("pro")
        if c <= 5: k.e("s_barrier")
        xb = 8 if sl < 2 else 12
        xo = (sl % 2) * 32768
        if c == 0: treads(0)
        for f in range(4):
            k.e(f"ds_read_b128 {vr(XR+(c*4+f)*4)}, v{xb+f} offset:{xo}")
        if c == 0: treads(1)
        pend = []
        if c <= 3: pend.append(w_dma())
        if c + 2 <= 6: pend += x_dma(c + 2)
        if c == 5:
            for n in range(4):
                pend.append([f"s_add_u32 m0, s40, {WQ + n*1024}", f"s_add_u32 s68, s51, {n*16*2688}", "buffer_load_dwordx4 v6, s[32:35], s68 offen lds"])
        if c == 4:
            pend.append(["buffer_load_dwordx2 v[236:237], v235, s[72:75], 0 offen sc1"])
        n = len(pend); cuts = [(n*i)//4 for i in range(5)]
        per = [pend[cuts[i]:cuts[i+1]] for i in range(4)]
        for p in per[0]: k.ex(p)
        for f in range(4):
            g = c*4 + f
            if g + 2 < 28: treads(g + 2)
            if f == 0:
                later = (4 + 4) if c == 0 else (4 if g + 2 < 28 else 0)
            else:
                later = (4 if g + 1 < 28 else 0) + (4 if g + 2 < 28 else 0)
            k.e(f"s_waitcnt lgkmcnt({later})")
            x = XR + g*4; w = WF + (g % 3)*8
            z = "0" if g == 0 else None
            k.e(mfma(KA, w, x, z))
            k.e(mfma(VA, x, w+4, z))
            if f < 3:
                for p in per[f + 1]: k.ex(p)
    k.stamp("q2")
    k.e("s_waitcnt vmcnt(0)")
    k.e("ds_write_b16 v217, v216")
    k.stamp("all" if "q2" not in STAMPSET else "q2")
    def qreads(n):
        c, f = divmod(n, 4)
        if f == 0:
            k.e("s_lshl_b32 s64, s59, 12")
            k.e(f"v_add_u32 v{242 + 4*(c&1)}, s64, v234")
            k.ex(cyc7("s59"))
        for s_ in range(2):
            r = WF + (n & 3)*4 + s_*2
            k.e(f"ds_read_b64_tr_b16 v[{r}:{r+1}], v{242 + 4*(c&1)} offset:{(8*f + 4*s_)*64}")
    k.e("s_mov_b32 s58, 0")
    k.lab("L_nonce")
    k.e("v_readfirstlane_b32 s56, v236")
    k.e("v_readfirstlane_b32 s57, v237")
    k.e("s_add_u32 s58, s58, 1")
    k.e(f"s_cmp_ge_u32 s58, {SPIN_MAX}")
    k.e("s_cbranch_scc1 L_nonce_ok")
    k.e("s_cmp_lg_u32 s56, 0")
    k.e("s_cbranch_scc1 L_nonce_ok")
    k.e("buffer_load_dwordx2 v[236:237], v235, s[72:75], 0 offen sc1")
    k.e("s_waitcnt vmcnt(0)")
    k.e("s_branch L_nonce")
    k.lab("L_nonce_ok")
    k.e("s_waitcnt lgkmcnt(0)")
    k.e("s_barrier")
    k.stamp("q2")
    qreads(0); qreads(1); qreads(2)
    srd(k, 72, "s12", "s13", WO_BYTES)
    k.e("s_mov_b64 exec, s[62:63]")
    for i in (12,13,14): k.e(f"v_mov_b32 v{KA+i}, 1.0")
    k.e(f"v_mov_b32 v{KA+15}, 0")
    k.e("s_mov_b64 exec, -1")
    epi = []
    epi += [[f"v_cvt_pk_bf16_f32 v{KF+i}, v{KA+2*i}, v{KA+2*i+1}" for i in range(8)]]
    epi += [[f"buffer_store_dwordx4 {vr(KF)}, v2, s[36:39], s48 offen sc1", f"buffer_store_dwordx4 {vr(KF+4)}, v2, s[36:39], s48 offen offset:1024 sc1"] +
            [f"v_cvt_pk_bf16_f32 v{VF+i}, v{VA+2*i}, v{VA+2*i+1}" for i in range(8)]]
    epi += [["s_mov_b32 s64, 0xf0000000", "s_mov_b32 s65, 0xf0000000", "s_mov_b64 exec, s[64:65]"] + [f"v_mov_b32 v{VF+i}, v239" for i in range(8)] + ["s_mov_b64 exec, -1",
            f"buffer_store_dwordx4 {vr(VF)}, v2, s[36:39], s48 offen offset:2048 sc1", f"buffer_store_dwordx4 {vr(VF+4)}, v2, s[36:39], s48 offen offset:3072 sc1"]]
    epi += [[f"ds_write_b128 v238, {vr(r)} offset:{i*1024}" for i, r in enumerate((KF, KF+4, VF, VF+4))]]
    for n in range(28):
        if n + 3 < 28: qreads(n + 3)
        later = 2 * min(3, 27 - n)
        if n in (4, 5, 6): later += 4
        k.e(f"s_waitcnt lgkmcnt({later})")
        k.e(mfma(QA, WF + (n & 3)*4, XR + n*4, "0" if n == 0 else None))
        if n < len(epi):
            blk = epi[n]
            if "nostore" in EXP: blk = [x for x in blk if not x.startswith("buffer_store")]
            if "nodsw" in EXP: blk = [x for x in blk if not x.startswith("ds_write")]
            k.ex(blk)
        if n in (5, 13): k.stamp("q2")
    k.stamp("all" if "q2" not in STAMPSET else "q2")
    QR, OA, OB, S0, S1, PR, KR, VR, ST = 16, 32, 48, 64, 80, 96, 104, 120, 136
    GS = 250
    k.e(f"s_mov_b32 s64, {hex(f2u(CSCALE))}")
    k.e("v_mov_b32 v6, v244")
    k.e("v_mov_b32 v7, v245")
    k.e("v_add_u32 v3, 65536, v244")
    k.e("v_mov_b32 v4, v244")
    k.e("v_mov_b32 v5, v245")
    k.e("v_mov_b32 v9, v248")
    k.e("v_mov_b32 v10, v249")
    k.e("v_mov_b32 v11, v251")
    k.nop(3)
    k.e(f"v_mov_b32 v12, v{QA+12}")
    k.e(f"v_mov_b32 v{GS}, v{QA+12}")
    for i in range(12): k.e(f"v_mul_f32 v{QA+i}, s64, v{QA+i}")
    k.e(f"v_permlane32_swap_b32 v12, v{GS}")
    for i in range(6): k.e(f"v_cvt_pk_bf16_f32 v{QF+i}, v{QA+2*i}, v{QA+2*i+1}")
    k.e(f"v_mov_b32 v{QF+6}, 0")
    k.e(f"v_mov_b32 v{QF+7}, 0")
    k.e("s_mov_b32 exec_hi, 0")
    k.e(f"v_mul_f32 v{QA+12}, s64, v{QA+12}")
    k.e(f"v_mul_f32 v{QA+13}, s64, v{QA+13}")
    k.e(f"v_mul_f32 v{QA+14}, s64, v{QA+14}")
    k.e(f"v_mul_f32 v{QA+15}, s64, v{QA+15}")
    k.e(f"v_cvt_pk_bf16_f32 v{QF+6}, v{QA+12}, v{QA+13}")
    k.e(f"v_cvt_pk_bf16_f32 v{QF+7}, v{QA+14}, v{QA+15}")
    k.e("s_mov_b64 exec, -1")
    SS = 96
    k.e(f"v_mul_f32 v{GS}, s60, v{GS}")
    k.e(f"v_exp_f32 v{GS}, v{GS}")
    k.e(mfma(SS, KF, QF, "0"))
    k.e(mfma(SS, KF+4, QF+4))
    k.e(f"v_add_f32 v{GS}, 1.0, v{GS}")
    k.e(f"v_rcp_f32 v{GS}, v{GS}")
    k.e(f"ds_write_b128 v218, {vr(QF)}")
    k.nop(9)
    k.e(f"v_max3_f32 v12, v{SS}, v{SS+1}, v{SS+2}")
    k.e(f"v_max3_f32 v13, v{SS+3}, v{SS+4}, v{SS+5}")
    k.e(f"v_max3_f32 v12, v12, v{SS+6}, v{SS+7}")
    k.e(f"v_max3_f32 v13, v13, v{SS+8}, v{SS+9}")
    k.e(f"v_max3_f32 v12, v12, v{SS+10}, v{SS+11}")
    k.e(f"v_max3_f32 v13, v13, v{SS+12}, v{SS+13}")
    k.e(f"v_max3_f32 v12, v12, v{SS+14}, v{SS+15}")
    k.e("v_max_f32 v12, v12, v13")
    k.e("v_mov_b32 v13, v12")
    k.nop(2)
    k.e("v_permlane32_swap_b32 v12, v13")
    k.nop(1)
    k.e("v_max_f32 v12, v12, v13")
    shift_split(k, 12, 13, 14, 15, QF+6, QF+7)
    k.e(f"ds_write_b128 v218, {vr(QF+4)} offset:1024")
    k.e("s_waitcnt lgkmcnt(0)")
    k.e("s_barrier")
    k.stamp("all" if "q2" not in STAMPSET else "q2")
    k.e(f"ds_read_b128 {vr(QR)}, v9")
    k.e(f"ds_read_b128 {vr(QR+4)}, v9 offset:1024")
    k.e(f"ds_read_b128 {vr(KR)}, v3")
    k.e(f"ds_read_b128 {vr(KR+4)}, v3 offset:1024")
    k.e(f"ds_read_b128 {vr(QR+8)}, v9 offset:2048")
    k.e(f"ds_read_b128 {vr(QR+12)}, v9 offset:3072")
    k.e("s_waitcnt lgkmcnt(2)")
    k.e(mfma(S0, KR, QR, "0"))
    k.e(mfma(S0, KR+4, QR+4))
    k.e("s_waitcnt lgkmcnt(0)")
    k.nop(11)
    def Lload():
        if "noload" in EXP: return ["s_add_u32 s99, s99, 1"]
        return ["s_and_b32 s53, s99, 7", "s_lshl_b32 s53, s53, 15", "s_add_u32 s53, s53, s98", "s_add_u32 s99, s99, 1"] + \
               [f"buffer_load_dwordx4 {vr(ST+4*i)}, v2, s[36:39], s53 offen offset:{i*1024} sc1" for i in range(4)]
    def slot(Sbuf, pv, sq, extra, pvmode="acc"):
        e = [f"v_exp_f32 v{Sbuf+i}, v{Sbuf+i}" for i in range(16)]
        c = [f"v_cvt_pk_bf16_f32 v{PR+i}, v{Sbuf+2*i}, v{Sbuf+2*i+1}" for i in range(8)]
        O, V = pv; Sd, Kb, Qb = sq
        mPV0 = mfma(O, V, PR, "0" if pvmode == "zero" else None); mPV1 = mfma(O, V+4, PR+4)
        if pvmode == "skip": mPV0 = "s_nop 0"; mPV1 = "s_nop 0"
        mS0 = mfma(Sd, Kb, Qb, "0"); mS1 = mfma(Sd, Kb+4, Qb+4)
        seq = [mPV0, e[0], e[1], e[2], c[0], e[3], e[4], mS0, c[1], e[5], e[6], e[7], c[2], e[8], mS1, e[9], c[3],
               e[10], e[11], e[12], mPV1, e[13], c[4], e[14], c[5], e[15], c[6], c[7]]
        for pos, x in enumerate(seq):
            k.ex(extra.get(pos, []))
            k.e(x)
    def bdma():
        return ["s_mov_b32 m0, s43", "s_add_u32 s43, s43, 8192", "buffer_load_dwordx4 v11, s[44:47], s101 offen lds", f"s_add_u32 s101, s101, {8*7168}"]
    def wr(i): return [f"ds_write_b128 v5, {vr(ST+4*i)} offset:{i*1024}"]
    def body(kind):
        for t in range(4):
            kb = KR + (t & 1) * 8; kn = KR + ((t + 1) & 1) * 8
            vb = VR + (t & 1) * 8; vp = VR + ((t + 1) & 1) * 8
            exA = {}; exB = {0: ["s_waitcnt lgkmcnt(0)"]}
            def add(d, p, l): d.setdefault(p, []); d[p] = d[p] + l
            if t < 3:
                rk = [f"ds_read_b128 {vr(kn)}, v3 offset:{(t+1)*4096}", f"ds_read_b128 {vr(kn+4)}, v3 offset:{(t+1)*4096+1024}"]
            else:
                rk = [f"ds_read_b128 {vr(kn)}, v4", f"ds_read_b128 {vr(kn+4)}, v4 offset:1024"]
            rv = [f"ds_read_b128 {vr(vb)}, v3 offset:{t*4096+2048}", f"ds_read_b128 {vr(vb+4)}, v3 offset:{t*4096+3072}"]
            late_k = (kind == "first" and t == 3)
            if t == 0 and kind == "last":
                add(exA, 0, ["s_barrier"])
                for n in range(7):
                    add(exA, 2 + 3*n, [f"s_add_u32 m0, s61, {WOB + n*8192}", f"s_add_u32 s53, s100, {n*8*7168}", "buffer_load_dwordx4 v11, s[72:75], s53 offen lds"])
            if t == 2 and kind == "c6":
                add(exA, 10, ["v_lshrrev_b32 v12, 3, v1", "v_lshlrev_b32 v12, 6, v12", "v_and_b32 v13, 7, v1", "v_add_u32 v12, v12, v13", "v_mul_u32_u24 v12, 896, v12",
                              "buffer_load_dword v240, v12, s[72:75], s100 offen", "buffer_load_dword v241, v12, s[72:75], s100 offen offset:124"])
            if kind == "first" and t == 1:
                add(exA, 0, k.stamp_list("loop") + ["s_waitcnt vmcnt(0)", "s_barrier"] + k.stamp_list("loop") +
                    ["s_cmp_lg_u32 s6, 0", "s_cbranch_scc1 L_noflag1", "s_lshl_b32 s66, s3, 7", "s_lshl_b32 s67, s5, 3", "s_add_u32 s66, s66, s67",
                     f"s_add_u32 s66, s66, {FL1_OFF}", "v_mov_b32 v236, s56", "v_mov_b32 v237, s57", "s_mov_b64 exec, 1",
                     "buffer_store_dwordx2 v[236:237], v235, s[36:39], s66 offen sc1", "s_mov_b64 exec, -1", "L_noflag1:"])
                add(exB, 14, ["buffer_load_dwordx2 v[152:153], v10, s[36:39], s97 offen sc1"])
            if kind == "first" and t == 2:
                add(exA, 0, k.stamp_list("loop") + poll_list("L_p1", 10, "s97", 152, True) + k.stamp_list("loop") + Lload())
            if t == 3 and kind in ("mid", "c6"):
                add(exA, 0, ["s_waitcnt lgkmcnt(0)"] + ([] if "nobar" in EXP else ["s_barrier"]))
                if kind == "mid":
                    ll = Lload()
                    add(exA, 2, bdma()); add(exA, 4, ll[:5])
                    for p, x in zip((6, 9, 11), ll[5:]): add(exA, p, [x])
            if late_k:
                exB[0] = ["s_waitcnt vmcnt(0) lgkmcnt(0)"] + sum([wr(i) for i in range(4)], []) + ["s_waitcnt lgkmcnt(0)", "s_barrier"] + rk
                ll = Lload()
                add(exB, 2, bdma() + bdma() + bdma()); add(exB, 4, ll[:5])
                add(exB, 7, ["s_waitcnt lgkmcnt(0)"])
                for p, x in zip((8, 9, 11), ll[5:]): add(exB, p, [x])
                add(exA, 5, [rv[0]]); add(exA, 8, [rv[1]])
            else:
                add(exA, 1, [rk[0]]); add(exA, 3, [rk[1]]); add(exA, 5, [rv[0]]); add(exA, 8, [rv[1]])
            wrs = kind in ("mid", "c6")
            if wrs and t == 1: add(exA, 12, ["s_waitcnt vmcnt(0)"] + wr(0)); add(exB, 12, wr(1))
            if wrs and t == 2: add(exA, 12, wr(2)); add(exB, 12, wr(3))
            if t == 3 and kind != "last":
                add(exB, 20, ["v_mov_b32 v3, v4", "s_add_u32 s49, s49, 32768", "s_cmp_eq_u32 s49, 98304", "s_cselect_b32 s49, 0, s49"])
                add(exB, 22, ["v_add_u32 v4, s49, v6", "v_add_u32 v5, s49, v7"])
                if kind == "mid":
                    add(exB, 24, ["s_add_u32 s48, s48, 1"]); add(exB, 26, ["s_cmp_lt_u32 s48, 6"])
            fa = "skip" if (kind == "first" and t == 0) else "zero" if (kind == "first" and t == 1) else "acc"
            fb = "zero" if (kind == "first" and t == 0) else "acc"
            slot(S0, (OB, vp), (S1, kb, QR+8), exA, fa)
            slot(S1, (OA, vb), (S0, kn, QR), exB, fb)
    body("first")
    k.e("s_mov_b32 s48, 1")
    k.e(".p2align 6")
    k.lab("L_loop")
    body("mid")
    k.e("s_cbranch_scc1 L_loop")
    body("c6")
    body("last")
    k.stamp()
    k.nop(2)
    k.e(mfma(OB, VR+8, PR))
    k.e(mfma(OB, VR+12, PR+4))
    k.e("v_add_u32 v11, s40, v2")
    k.e("s_xor_b32 s29, s6, 1")
    k.e("s_lshl_b32 s29, s29, 12")
    k.e("v_add_u32 v12, s29, v2")
    k.e("s_lshl_b32 s29, s41, 16")
    k.e("s_lshl_b32 s30, s3, 11")
    k.e("s_add_u32 s29, s29, s30")
    k.e(f"s_add_u32 s29, s29, {OF_OFF}")
    k.e("s_barrier")
    k.nop(4)
    k.e("s_cmp_eq_u32 s96, 0")
    k.e("s_cbranch_scc0 L_x1")
    for i in range(4): k.e(f"ds_write_b128 v11, {vr(OB+4*i)} offset:{i*1024}")
    k.e("s_waitcnt lgkmcnt(0)")
    k.e("s_barrier")
    for i in range(4): k.e(f"ds_read_b128 {vr(S0+4*i)}, v12 offset:{i*1024}")
    for i in range(16):
        if i % 4 == 0: k.e(f"s_waitcnt lgkmcnt({3 - i//4})")
        k.e(f"v_add_f32 v{OA+i}, v{OA+i}, v{S0+i}")
    k.e("s_branch L_xd")
    k.lab("L_x1")
    for i in range(4): k.e(f"ds_write_b128 v11, {vr(OA+4*i)} offset:{i*1024}")
    k.e("s_waitcnt lgkmcnt(0)")
    k.e("s_barrier")
    for i in range(4): k.e(f"ds_read_b128 {vr(S0+4*i)}, v12 offset:{i*1024}")
    for i in range(16):
        if i % 4 == 0: k.e(f"s_waitcnt lgkmcnt({3 - i//4})")
        k.e(f"v_add_f32 v{OA+i}, v{OB+i}, v{S0+i}")
    k.lab("L_xd")
    k.e("s_mov_b32 s59, 0")
    k.lab("L_norm")
    k.e("s_mov_b32 s64, 0x203")
    k.e(f"v_mov_b32 v13, v{OA+12}")
    k.e(f"v_mov_b32 v14, v{OA+12}")
    k.e(f"v_maximum3_f32 v15, |v{OA}|, |v{OA+1}|, |v{OA+2}|")
    k.e(f"v_maximum3_f32 v15, |v{OA+3}|, |v{OA+4}|, v15")
    k.e("v_permlane32_swap_b32 v13, v14")
    for i in range(5, 15, 2): k.e(f"v_maximum3_f32 v15, |v{OA+i}|, |v{OA+i+1}|, v15")
    k.e("v_rcp_f32 v13, v14")
    k.e(f"v_maximum3_f32 v15, |v{OA+15}|, |v14|, v15")
    k.e(f"v_mul_f32 v13, v13, v{GS}")
    k.e("v_cmp_class_f32 vcc, v15, s64")
    for i in range(12): k.e(f"v_mul_f32 v{OA+i}, v{OA+i}, v13")
    k.e("s_cmp_lg_u32 s59, 0")
    k.e("s_cbranch_scc1 L_norm_ok")
    k.e("s_cmp_lg_u64 vcc, 0")
    k.e("s_cbranch_scc1 L_fallback")
    k.lab("L_norm_ok")
    for i in range(12, 16): k.e(f"v_mul_f32 v{OA+i}, v{OA+i}, v13")
    k.e("s_mov_b64 exec, s[62:63]")
    for i in (12,13,14,15): k.e(f"v_mov_b32 v{OA+i}, 0")
    k.e("s_mov_b64 exec, -1")
    for i in range(4): k.e(f"v_cvt_pk_bf16_f32 v{PR+i}, v{OA+2*i}, v{OA+2*i+1}")
    k.e(f"buffer_store_dwordx4 {vr(PR)}, v2, s[36:39], s29 offen sc1")
    for i in range(4, 8): k.e(f"v_cvt_pk_bf16_f32 v{PR+i}, v{OA+2*i}, v{OA+2*i+1}")
    k.e(f"buffer_store_dwordx4 {vr(PR+4)}, v2, s[36:39], s29 offen offset:1024 sc1")
    k.e("s_lshr_b32 s7, s6, 2")
    k.e("s_and_b32 s28, s6, 3")
    k.e("v_lshrrev_b32 v5, 5, v1")
    k.e("v_lshlrev_b32 v5, 2, v5")
    k.e("v_bfe_u32 v6, v1, 2, 2")
    k.e("v_add_u32 v5, v5, v6")
    k.e("v_lshlrev_b32 v5, 7, v5")
    k.e("v_bfe_u32 v7, v1, 4, 1")
    k.e("v_lshlrev_b32 v7, 1, v7")
    k.e("v_bfe_u32 v8, v1, 1, 1")
    k.e("v_add_u32 v7, v7, v8")
    k.e("v_bfe_u32 v8, v6, 1, 1")
    k.e("v_lshlrev_b32 v8, 2, v8")
    k.e("v_xor_b32 v7, v7, v8")
    k.e("v_lshlrev_b32 v7, 4, v7")
    k.e("v_add_u32 v5, v5, v7")
    k.e("v_and_b32 v7, 1, v1")
    k.e("v_lshlrev_b32 v7, 3, v7")
    k.e("v_add_u32 v5, v5, v7")
    k.e("v_xor_b32 v6, 64, v5")
    k.e("s_mul_i32 s29, s28, 28672")
    k.e(f"s_add_u32 s29, s29, {WOB}")
    k.e("v_add_u32 v5, s29, v5")
    k.e("v_add_u32 v6, s29, v6")
    k.e("v_mov_b32 v13, 0")
    k.e("v_and_b32 v10, 31, v1")
    k.e("v_lshlrev_b32 v11, 3, v10")
    k.e("s_lshr_b32 s66, s54, 2")
    k.e("s_lshl_b32 s66, s66, 8")
    k.e(f"s_add_u32 s66, s66, {FL2_OFF}")
    k.e("s_lshl_b32 s32, s54, 1")
    k.e("s_add_u32 s32, s32, s7")
    k.e("s_lshl_b32 s33, s32, 16")
    k.e("s_lshl_b32 s34, s28, 14")
    k.e("s_add_u32 s33, s33, s34")
    k.e(f"s_add_u32 s33, s33, {OF_OFF}")
    k.e("s_lshl_b32 s29, s7, 15")
    k.e("s_lshl_b32 s30, s28, 12")
    k.e("s_add_u32 s29, s29, s30")
    k.e("v_add_u32 v16, s29, v2")
    k.e("s_bfe_u32 s29, s6, 0x10001")
    k.e("s_and_b32 s30, s6, 1")
    k.e("s_lshl_b32 s31, s7, 15")
    k.e("s_lshl_b32 s34, s29, 14")
    k.e("s_add_u32 s31, s31, s34")
    k.e("s_lshl_b32 s34, s30, 11")
    k.e("s_add_u32 s31, s31, s34")
    k.e("v_add_u32 v17, s31, v2")
    k.e("v_mul_u32_u24 v18, 896, v10")
    k.e("v_lshrrev_b32 v12, 5, v1")
    k.e("v_lshlrev_b32 v12, 4, v12")
    k.e("v_add_u32 v18, v18, v12")
    k.e("s_lshl_b32 s31, s29, 6")
    k.e("s_lshl_b32 s34, s30, 5")
    k.e("s_add_u32 s31, s31, s34")
    k.e("v_add_u32 v12, s31, v12")
    k.e("v_cmp_gt_u32 vcc, 112, v12")
    k.e("s_mul_i32 s34, s55, 112")
    k.e("s_add_u32 s31, s31, s34")
    k.e("s_mul_i32 s34, s32, 28672")
    k.e("s_add_u32 s31, s31, s34")
    k.e("v_mov_b32 v19, 0x7fffffff")
    k.e("v_cndmask_b32 v18, v19, v18, vcc")
    srd(k, 48, "s22", "s23", OUT_BYTES)
    k.e("s_waitcnt vmcnt(0)")
    k.e("s_barrier")
    k.stamp()
    k.e("s_cmp_lg_u32 s6, 0")
    k.e("s_cbranch_scc1 L_noflag2")
    k.e("s_lshl_b32 s64, s5, 8")
    k.e("s_lshl_b32 s67, s3, 3")
    k.e("s_add_u32 s64, s64, s67")
    k.e(f"s_add_u32 s64, s64, {FL2_OFF}")
    k.e("v_mov_b32 v14, s56")
    k.e("v_mov_b32 v15, s57")
    k.e("s_mov_b64 exec, 1")
    k.e("buffer_store_dwordx2 v[14:15], v13, s[36:39], s64 offen sc1")
    k.e("s_mov_b64 exec, -1")
    k.lab("L_noflag2")
    k.ex(poll_list("L_p2", 11, "s66", 14, False))
    k.stamp()
    OR = 64
    for i in range(16):
        if i % 4 == 0 and i > 0: k.e("s_add_u32 s33, s33, 4096")
        k.e(f"buffer_load_dwordx4 {vr(OR+4*i)}, v2, s[36:39], s33 offen offset:{(i%4)*1024} sc1")
    A0, A1, WF3 = 32, 48, 128
    steps = [(hh, m) for hh in range(8) for m in range(2)]
    def treads3(hh, m, buf):
        for ct in range(2):
            for s_ in range(2):
                r = WF3 + buf*8 + ct*4 + s_*2
                k.e(f"ds_read_b64_tr_b16 v[{r}:{r+1}], v{5+ct} offset:{(hh*28 + 16*m + 8*s_) * 128}")
    treads3(*steps[0], 0)
    for i, (hh, m) in enumerate(steps):
        if i + 1 < len(steps):
            treads3(*steps[i+1], (i+1) & 1)
            k.e(f"s_waitcnt vmcnt({15-i}) lgkmcnt(4)")
        else:
            k.e(f"s_waitcnt vmcnt({15-i}) lgkmcnt(0)")
        w = WF3 + (i & 1)*8
        z = "0" if i == 0 else None
        k.e(mfma(A0, w, OR+4*i, z))
        k.e(mfma(A1, w+4, OR+4*i, z))
    k.stamp()
    k.e("s_barrier")
    k.nop(10)
    for q in range(4): k.e(f"ds_write_b128 v16, {vr(A0+4*q)} offset:{q*1024}")
    for q in range(4): k.e(f"ds_write_b128 v16, {vr(A1+4*q)} offset:{16384+q*1024}")
    k.e("s_waitcnt lgkmcnt(0)")
    k.e("s_barrier")
    for kq in range(4):
        for q in range(2):
            k.e(f"ds_read_b128 {vr(64+kq*8+q*4)}, v17 offset:{kq*4096+q*1024}")
    k.e("s_waitcnt lgkmcnt(4)")
    for i in range(8): k.e(f"v_add_f32 v{64+i}, v{64+i}, v{72+i}")
    k.e("s_waitcnt lgkmcnt(0)")
    for i in range(8): k.e(f"v_add_f32 v{80+i}, v{80+i}, v{88+i}")
    for i in range(8): k.e(f"v_add_f32 v{64+i}, v{64+i}, v{80+i}")
    for i in range(4): k.e(f"v_cvt_pk_bf16_f32 v{20+i}, v{64+2*i}, v{65+2*i}")
    k.nop(2)
    k.e("v_permlane32_swap_b32 v20, v22")
    k.e("v_permlane32_swap_b32 v21, v23")
    k.nop(1)
    k.e("buffer_store_dwordx4 v[20:23], v18, s[48:51], s31 offen")
    k.stamp()
    k.stamp_flush()
    k.lab("L_end")
    k.e("s_endpgm")
    k.lab("L_fallback")
    k.e("s_mov_b32 s59, 1")
    k.e("s_and_b32 s30, s6, 1")
    k.e("s_cmp_eq_u32 s30, 0")
    k.e("s_cbranch_scc1 L_fbq")
    for i in range(8): k.e(f"v_mov_b32 v{QR+i}, v{QR+8+i}")
    k.lab("L_fbq")
    k.e("s_mov_b64 exec, s[62:63]")
    k.e(f"v_mov_b32 v{QR+6}, 0")
    k.e(f"v_mov_b32 v{QR+7}, 0")
    k.e("s_mov_b64 exec, -1")
    k.e("v_mov_b32 v13, 0xff800000")
    k.e("s_lshl_b32 s64, s3, 18")
    k.e("s_mov_b32 s30, 0")
    k.lab("L_fb1")
    k.e(f"buffer_load_dwordx4 {vr(KR)}, v2, s[36:39], s64 offen sc1")
    k.e(f"buffer_load_dwordx4 {vr(KR+4)}, v2, s[36:39], s64 offen offset:1024 sc1")
    k.e("s_waitcnt vmcnt(0)")
    k.e(mfma(S0, KR, QR, "0"))
    k.e(mfma(S0, KR+4, QR+4))
    k.nop(12)
    for i in range(0, 16, 2): k.e(f"v_max3_f32 v13, v13, v{S0+i}, v{S0+i+1}")
    k.e("s_add_u32 s64, s64, 4096")
    k.e("s_add_u32 s30, s30, 1")
    k.e("s_cmp_lt_u32 s30, 64")
    k.e("s_cbranch_scc1 L_fb1")
    k.e("v_mov_b32 v14, v13")
    k.nop(2)
    k.e("v_permlane32_swap_b32 v13, v14")
    k.nop(1)
    k.e("v_max_f32 v13, v13, v14")
    shift_split(k, 13, 14, 15, 12, QR+6, QR+7)
    for i in range(16): k.e(f"v_mov_b32 v{OA+i}, 0")
    k.e("s_lshl_b32 s64, s3, 18")
    k.e("s_mov_b32 s30, 0")
    k.lab("L_fb2")
    k.e(f"buffer_load_dwordx4 {vr(KR)}, v2, s[36:39], s64 offen sc1")
    k.e(f"buffer_load_dwordx4 {vr(KR+4)}, v2, s[36:39], s64 offen offset:1024 sc1")
    k.e(f"buffer_load_dwordx4 {vr(VR)}, v2, s[36:39], s64 offen offset:2048 sc1")
    k.e(f"buffer_load_dwordx4 {vr(VR+4)}, v2, s[36:39], s64 offen offset:3072 sc1")
    k.e("s_waitcnt vmcnt(0)")
    k.e(mfma(S0, KR, QR, "0"))
    k.e(mfma(S0, KR+4, QR+4))
    k.nop(12)
    for i in range(16): k.e(f"v_exp_f32 v{S0+i}, v{S0+i}")
    k.nop(1)
    for i in range(8): k.e(f"v_cvt_pk_bf16_f32 v{PR+i}, v{S0+2*i}, v{S0+2*i+1}")
    k.nop(2)
    k.e(mfma(OA, VR, PR))
    k.e(mfma(OA, VR+4, PR+4))
    k.e("s_add_u32 s64, s64, 4096")
    k.e("s_add_u32 s30, s30, 1")
    k.e("s_cmp_lt_u32 s30, 64")
    k.e("s_cbranch_scc1 L_fb2")
    k.nop(12)
    k.e("s_branch L_norm")
    return k.l, dict(vgpr=252, sgpr=100, lds=163840, block=512)

def main(outpath):
    l, m = gen()
    o = [f"; gated_mix mha block, fused single launch (projection -> attention -> output projection, flag hand-offs). Generated by my own generator script.",
         f"; @launch grid=(256,1,1) block=({m['block']},1,1) lds={m['lds']}",
         '.amdgcn_target "amdgcn-amd-amdhsa--gfx950"', ".text", f".globl {KNAME}", ".p2align 8", f".type {KNAME},@function"] + l
    acc = (m['vgpr'] + 3) // 4 * 4
    o += ['.section .rodata,"a"', ".p2align 6", f".amdhsa_kernel {KNAME}", f"  .amdhsa_next_free_vgpr {m['vgpr']}", f"  .amdhsa_next_free_sgpr {m['sgpr']}",
          f"  .amdhsa_accum_offset {acc}", "  .amdhsa_group_segment_fixed_size 0", "  .amdhsa_kernarg_size 80",
          "  .amdhsa_user_sgpr_count 2", "  .amdhsa_user_sgpr_kernarg_segment_ptr 1", "  .amdhsa_system_sgpr_workgroup_id_x 1", ".end_amdhsa_kernel"]
    open(outpath, "w").write("\n".join(o) + "\n")

if __name__ == "__main__":
    main(sys.argv[1] if len(sys.argv) > 1 else f"cdna_kernels/{NAME}.s")
```

```python
import sys, math, os, struct

NAME = "gated_mix__mha_block__softmax_full_mha__prompt"
KNAME = NAME + "_kernel"
X_BYTES = 2048 * 448 * 2
W_BYTES = 448 * 1344 * 2
WO_BYTES = 448 * 448 * 2
OUT_BYTES = 2048 * 448 * 2
KV_OFF = 0
OF_OFF = 8 << 20
FL1_OFF = (12 << 20) + 8192
FL2_OFF = (12 << 20) + 16384
STAMP_OFF = 13 << 20
WS_USED = 14 << 20
LOG2E = math.log2(math.e)
CSCALE = (28 ** -0.5) * LOG2E
STAMP = int(os.environ.get("STAMP", "0"))
STAMPSET = os.environ.get("STAMPSET", "all").split(",")
EXP = os.environ.get("EXP", "").split(",")
SPIN_MAX = 1 << 18
def f2u(x): return struct.unpack('<I', struct.pack('<f', x))[0]

class K:
    def __init__(s): s.l = []; s.ns = 0
    def e(s, t):
        if t.endswith(":"): s.l.append(t)
        else: s.l.append("  " + t)
    def ex(s, ts):
        for t in ts: s.e(t)
    def lab(s, t): s.l.append(t + ":")
    def nop(s, n):
        while n > 0:
            k = min(n, 16); s.e(f"s_nop {k-1}"); n -= k
    def stamp(s, tag="all"):
        if not STAMP: return
        if tag not in STAMPSET and s.ns > 0: return
        i = s.ns; s.ns += 1
        assert i < 14
        if i == 0:
            s.e("s_memrealtime s[76:77]"); s.e("s_waitcnt lgkmcnt(0)"); s.e("s_mov_b32 s94, s76")
        s.e("s_memrealtime s[76:77]" if os.environ.get("STAMPRT") else "s_memtime s[76:77]"); s.e("s_waitcnt lgkmcnt(0)"); s.e(f"s_mov_b32 s{80+i}, s76")
    def stamp_list(s, tag):
        save = s.l; s.l = []
        s.stamp(tag)
        out = [x.strip() for x in s.l]; s.l = save
        return out
    def stamp_flush(s):
        if not STAMP: return
        if os.environ.get("STAMPDBG") == "multi":
            ia, ib = [int(x) for x in os.environ.get("STAMPIDX", "0,7").split(",")]
            base = int(os.environ.get("STAMPBASE", "248"))
            s.e(f"s_sub_u32 s78, s2, {base+1}"); s.e("s_cmp_ge_u32 s78, 7"); s.e("s_cbranch_scc1 L_nodbg"); s.e("s_cmp_lg_u32 s6, 0"); s.e("s_cbranch_scc1 L_nodbg")
            s.e("s_mov_b32 s72, s24"); s.e("s_mov_b32 s73, s25"); s.e("s_mov_b32 s74, 256"); s.e("s_mov_b32 s75, 0x20000")
            s.e("s_lshl_b32 s78, s78, 3"); s.e("s_add_u32 s78, s78, 8")
            s.e("v_mov_b32 v0, 0"); s.e("s_mov_b64 exec, 1")
            s.e(f"s_sub_u32 s79, s{80+ia}, s56"); s.e("v_mov_b32 v2, s79"); s.e(f"s_sub_u32 s79, s{80+ib}, s56"); s.e("v_mov_b32 v3, s79")
            s.e("buffer_store_dwordx2 v[2:3], v0, s[72:75], s78 offen")
            s.e("s_mov_b64 exec, -1")
            s.lab("L_nodbg")
            return
        if os.environ.get("STAMPDBG"):
            wgid = int(os.environ["STAMPDBG"])
            s.e(f"s_cmp_lg_u32 s2, {wgid}"); s.e("s_cbranch_scc1 L_nodbg"); s.e("s_cmp_lg_u32 s6, 0"); s.e("s_cbranch_scc1 L_nodbg")
            s.e("s_mov_b32 s72, s24"); s.e("s_mov_b32 s73, s25"); s.e("s_mov_b32 s74, 256"); s.e("s_mov_b32 s75, 0x20000")
            s.e("v_mov_b32 v0, 0"); s.e("s_mov_b64 exec, 1")
            for i in range(14):
                s.e(f"s_sub_u32 s78, s{80+i}, s80")
                s.e(f"v_mov_b32 v1, s78")
                s.e(f"buffer_store_dword v1, v0, s[72:75], 0 offen offset:{8+4*i}")
                s.e("s_nop 1")
            s.e("s_mov_b64 exec, -1")
            s.lab("L_nodbg")
            return
        s.e("s_lshl_b32 s78, s2, 3"); s.e("s_add_u32 s78, s78, s6"); s.e("s_lshl_b32 s78, s78, 6")
        s.e(f"s_add_u32 s78, s78, {STAMP_OFF}")
        s.e("s_memrealtime s[76:77]"); s.e("s_waitcnt lgkmcnt(0)"); s.e("s_mov_b32 s95, s76")
        s.e("v_mov_b32 v0, 0"); s.e("s_mov_b64 exec, 1")
        for i in range(16):
            s.e(f"v_mov_b32 v1, s{80+i}")
            s.e(f"buffer_store_dword v1, v0, s[36:39], s78 offen offset:{4*i}")
            s.e("s_nop 1")
        s.e("s_mov_b64 exec, -1")

def vr(b, n=4): return f"v[{b}:{b+n-1}]"
def mfma(d, a, b, c=None):
    cc = vr(d, 16) if c is None else c
    return f"v_mfma_f32_32x32x16_bf16 {vr(d,16)}, {vr(a)}, {vr(b)}, {cc}"
def srd(k, b, lo, hi, nbytes):
    k.e(f"s_mov_b32 s{b}, {lo}"); k.e(f"s_mov_b32 s{b+1}, {hi}"); k.e(f"s_mov_b32 s{b+2}, {nbytes}"); k.e(f"s_mov_b32 s{b+3}, 0x20000")
def cyc7(r): return [f"s_add_u32 {r}, {r}, 1", f"s_cmp_eq_u32 {r}, 7", f"s_cselect_b32 {r}, 0, {r}"]

def shift_split(k, m, t1, t2, t3, q6, q7):
    k.e(f"v_sub_f32 v{m}, 0, v{m}")
    k.e(f"v_cvt_pk_bf16_f32 v{t1}, v{m}, v{m}")
    k.e(f"v_and_b32 v{t1}, 0xffff0000, v{t1}")
    k.e(f"v_sub_f32 v{t2}, v{m}, v{t1}")
    k.e(f"v_cvt_pk_bf16_f32 v{t3}, v{t2}, v{t2}")
    k.e(f"v_and_b32 v{t3}, 0xffff0000, v{t3}")
    k.e(f"v_sub_f32 v{t2}, v{t2}, v{t3}")
    k.e(f"v_mov_b32 v{m}, 0")
    k.e("s_mov_b64 exec, s[62:63]")
    k.e(f"v_cvt_pk_bf16_f32 v{q6}, v{t1}, v{t3}")
    k.e(f"v_cvt_pk_bf16_f32 v{q7}, v{t2}, v{m}")
    k.e("s_mov_b64 exec, -1")

def poll_list(label, voff, soff, vtmp, first_issued):
    o = ["s_mov_b32 s58, 0"]
    if first_issued: o += [f"s_branch {label}_chk"]
    o += [f"{label}:", f"buffer_load_dwordx2 v[{vtmp}:{vtmp+1}], v{voff}, s[36:39], {soff} offen sc1", f"{label}_chk:",
          "s_waitcnt vmcnt(0)", f"v_cmp_eq_u64 vcc, s[56:57], v[{vtmp}:{vtmp+1}]", "s_add_u32 s58, s58, 1",
          f"s_cmp_ge_u32 s58, {SPIN_MAX}", f"s_cbranch_scc1 {label}_done", "s_cmp_eq_u64 vcc, exec", f"s_cbranch_scc0 {label}", f"{label}_done:"]
    return o

def gen():
    k = K()
    k.lab(KNAME)
    k.e("s_cmp_ge_u32 s2, 256")
    k.e("s_cbranch_scc1 L_end")
    k.e("s_load_dwordx16 s[8:23], s[0:1], 0")
    k.e("s_load_dwordx4 s[24:27], s[0:1], 64")
    k.e("v_and_b32 v1, 63, v0")
    k.e("v_lshrrev_b32 v2, 6, v0")
    k.e("s_and_b32 s69, s2, 7")
    k.e("s_lshr_b32 s70, s2, 3")
    k.e("v_readfirstlane_b32 s6, v2")
    k.e("s_lshr_b32 s3, s69, 1")
    k.e("s_lshl_b32 s3, s3, 3")
    k.e("s_and_b32 s4, s70, 7")
    k.e("s_add_u32 s3, s3, s4")
    k.e("s_and_b32 s5, s69, 1")
    k.e("s_lshl_b32 s5, s5, 2")
    k.e("s_lshr_b32 s4, s70, 3")
    k.e("s_add_u32 s5, s5, s4")
    k.stamp()
    k.e("s_and_b32 s7, s3, 15")
    k.e("v_lshlrev_b32 v2, 4, v1")
    XS, WKV, WQ, WOB = 0, 98304, 32768, 40960
    k.e("v_lshrrev_b32 v3, 3, v1")
    k.e("v_lshrrev_b32 v4, 1, v3")
    k.e("v_and_b32 v5, 7, v1")
    k.e("v_xor_b32 v4, v4, v5")
    k.e("v_lshlrev_b32 v4, 4, v4")
    k.e("v_mul_u32_u24 v3, 896, v3")
    k.e("v_add_u32 v3, v3, v4")
    k.e("v_xor_b32 v4, 64, v3")
    k.e("v_lshrrev_b32 v5, 3, v1")
    k.e("v_bfe_u32 v6, v1, 2, 1")
    k.e("v_bfe_u32 v7, v1, 4, 1")
    k.e("v_xor_b32 v6, v6, v7")
    k.e("v_mul_u32_u24 v6, 896, v6")
    k.e("v_mul_u32_u24 v5, 2688, v5")
    k.e("v_add_u32 v5, v5, v6")
    k.e("v_and_b32 v6, 3, v1")
    k.e("v_lshlrev_b32 v6, 4, v6")
    k.e("v_add_u32 v5, v5, v6")
    k.e("v_add_u32 v5, 896, v5")
    k.e("v_lshrrev_b32 v7, 2, v1")
    k.e("v_mul_u32_u24 v7, 2688, v7")
    k.e("v_add_u32 v6, v7, v6")
    k.e("s_lshl_b32 s40, s6, 12")
    k.e("s_lshl_b32 s61, s6, 10")
    k.e("s_lshl_b32 s41, s5, 3")
    k.e("s_add_u32 s41, s41, s6")
    k.e("s_mul_i32 s42, s41, 28672")
    k.e("s_mul_i32 s43, s7, 56")
    k.e("s_mul_i32 s50, s6, 21504")
    k.e("s_add_u32 s50, s50, s43")
    k.e("s_mul_i32 s51, s6, 172032")
    k.e("s_add_u32 s51, s51, s43")
    k.e("s_and_b32 s71, s70, 7")
    k.e("s_lshr_b32 s68, s70, 3")
    k.e("s_lshl_b32 s68, s68, 1")
    k.e("s_add_u32 s71, s71, s68")
    for _ in range(2):
        k.e("s_cmp_ge_u32 s71, 7")
        k.e("s_cselect_b32 s68, 7, 0")
        k.e("s_sub_u32 s71, s71, s68")
    k.e("s_mov_b32 s59, s71")
    k.e("s_mov_b32 s52, s71")
    k.e("s_waitcnt lgkmcnt(0)")
    k.stamp("pro")
    srd(k, 28, "s8", "s9", X_BYTES)
    k.e("s_cmp_ge_u32 s3, 16")
    k.e("s_cselect_b32 s32, s16, s10")
    k.e("s_cselect_b32 s33, s17, s11")
    k.e(f"s_mov_b32 s34, {W_BYTES}")
    k.e("s_mov_b32 s35, 0x20000")
    k.e("s_cselect_b32 s60, 0, 0x80000000")
    k.e(f"s_xor_b32 s60, s60, {hex(f2u(LOG2E))}")
    def w_dma():
        return ["s_lshl_b32 s64, s52, 13", "s_add_u32 s64, s64, s61", f"s_add_u32 m0, s64, {WKV}", "s_mul_i32 s68, s52, 172032",
                "s_add_u32 s68, s68, s50", "buffer_load_dwordx4 v5, s[32:35], s68 offen lds"] + cyc7("s52")
    def x_dma(i):
        sl = i % 3
        p = []
        for q in range(4):
            o = []
            if q == 0: o += [f"s_add_u32 m0, s40, {XS + sl*32768}", "s_lshl_b32 s65, s71, 7", "s_add_u32 s65, s65, s42"]
            else: o += [f"s_add_u32 m0, s40, {XS + sl*32768}", "s_add_u32 s65, s65, 6144"]
            o += [f"buffer_load_dwordx4 v{3 + (q&1)}, s[28:31], s65 offen offset:{q*1024} lds"]
            if q == 3: o += cyc7("s71")
            p.append(o)
        return p
    k.ex(w_dma())
    for p in x_dma(0): k.ex(p)
    k.ex(w_dma())
    k.e("s_barrier")
    srd(k, 36, "s26", "s27", WS_USED)
    srd(k, 52 + 20, "s24", "s25", 256)
    k.e("s_or_b32 s58, s2, s6")
    k.e("s_cmp_lg_u32 s58, 0")
    k.e("s_cbranch_scc1 L_nononce")
    k.e("s_memrealtime s[56:57]")
    k.e("s_waitcnt lgkmcnt(0)")
    k.e("s_or_b32 s56, s56, 1")
    k.e("v_mov_b32 v8, s56")
    k.e("v_mov_b32 v9, s57")
    k.e("v_mov_b32 v10, 0")
    k.e("s_mov_b64 exec, 1")
    k.e("buffer_store_dwordx2 v[8:9], v10, s[72:75], 0 offen sc1")
    k.e("s_mov_b64 exec, -1")
    k.lab("L_nononce")
    k.ex(w_dma())
    for p in x_dma(1): k.ex(p)
    srd(k, 44, "s20", "s21", 896)
    k.e("v_lshlrev_b32 v8, 1, v0")
    k.e("buffer_load_ushort v216, v8, s[44:47], 0 offen")
    k.stamp("pro")
    k.e("v_and_b32 v16, 31, v1")
    k.e("v_bfe_u32 v17, v1, 1, 3")
    k.e("v_lshrrev_b32 v18, 5, v1")
    k.e("v_lshlrev_b32 v19, 2, v18")
    k.e("v_xor_b32 v17, v17, v19")
    k.e("v_lshlrev_b32 v17, 4, v17")
    k.e("v_lshlrev_b32 v16, 7, v16")
    k.e("v_add_u32 v16, v16, v17")
    k.e("v_add_u32 v8, s40, v16")
    for f in (1, 2, 3): k.e(f"v_xor_b32 v{8+f}, {16*f}, v8")
    for f in range(4): k.e(f"v_add_u32 v{12+f}, 0x10000, v{8+f}")
    k.e("v_lshlrev_b32 v16, 5, v18")
    k.e("v_bfe_u32 v17, v1, 2, 2")
    k.e("v_add_u32 v16, v16, v17")
    k.e("v_bfe_u32 v19, v1, 4, 1")
    k.e("v_lshlrev_b32 v19, 5, v19")
    k.e("v_and_b32 v20, 3, v1")
    k.e("v_lshlrev_b32 v20, 3, v20")
    k.e("v_add_u32 v19, v19, v20")
    k.e("v_lshlrev_b32 v20, 7, v16")
    k.e("v_add_u32 v20, v20, v19")
    k.e("v_bfe_u32 v21, v1, 3, 1")
    k.e("v_lshlrev_b32 v21, 6, v21")
    k.e("v_add_u32 v20, v20, v21")
    k.e(f"v_add_u32 v232, {WKV}, v20")
    k.e("v_xor_b32 v233, 64, v232")
    k.e("v_lshlrev_b32 v20, 6, v16")
    k.e("v_add_u32 v20, v20, v19")
    k.e(f"v_add_u32 v234, {WQ}, v20")
    k.e("v_lshlrev_b32 v217, 6, v0")
    k.e(f"v_add_u32 v217, {WQ + 56}, v217")
    k.e("s_mov_b32 s62, 0")
    k.e("s_mov_b32 s63, -1")
    k.e("v_mov_b32 v235, 0")
    if "notlb" not in EXP:
        k.e("s_lshl_b32 s64, s3, 18"); k.e("s_lshl_b32 s66, s5, 15"); k.e("s_add_u32 s64, s64, s66")
        k.e("s_lshl_b32 s66, s41, 16"); k.e(f"s_add_u32 s66, s66, {OF_OFF}")
        k.e("s_and_b32 s67, s6, 3")
        k.e("s_cmp_eq_u32 s67, 1"); k.e("s_cselect_b32 s64, s66, s64")
        k.e("s_cmp_eq_u32 s67, 2"); k.e(f"s_cselect_b32 s64, {FL1_OFF}, s64")
        k.e("s_lshl_b32 s66, s69, 19"); k.e(f"s_add_u32 s66, s66, {OF_OFF}")
        k.e("s_cmp_eq_u32 s67, 3"); k.e("s_cselect_b32 s64, s66, s64")
        k.e("buffer_load_dword v219, v235, s[36:39], s64 offen")
        k.e("s_mul_i32 s53, s69, 229376")
        srd(k, 64, "s22", "s23", OUT_BYTES)
        k.e("buffer_load_dword v219, v235, s[64:67], s53 offen")
    k.e("s_lshr_b32 s7, s6, 1")
    k.e("s_and_b32 s96, s6, 1")
    k.e("s_lshl_b32 s64, s96, 14")
    k.e("v_add_u32 v244, s64, v2")
    k.e("v_add_u32 v245, s40, v2")
    k.e("s_lshl_b32 s66, s7, 12")
    k.e("s_add_u32 s66, s66, 98304")
    k.e("v_add_u32 v248, s66, v2")
    k.e("v_and_b32 v249, 7, v1")
    k.e("v_lshlrev_b32 v249, 3, v249")
    k.e("s_lshl_b32 s97, s3, 7")
    k.e(f"s_add_u32 s97, s97, {FL1_OFF}")
    k.e("s_lshl_b32 s98, s3, 18")
    k.e("s_add_u32 s98, s98, s40")
    k.e("s_add_u32 s99, s5, 1")
    k.e("s_mov_b32 s49, 0")
    k.e("s_lshl_b32 s54, s69, 2")
    k.e("s_and_b32 s55, s70, 3")
    k.e("s_add_u32 s54, s54, s55")
    k.e("s_lshr_b32 s55, s70, 2")
    k.e("v_lshrrev_b32 v251, 3, v1")
    k.e("v_bfe_u32 v16, v251, 1, 1")
    k.e("v_lshlrev_b32 v16, 2, v16")
    k.e("v_and_b32 v17, 7, v1")
    k.e("v_xor_b32 v16, v16, v17")
    k.e("v_lshlrev_b32 v16, 4, v16")
    k.e("v_mul_u32_u24 v251, 896, v251")
    k.e("v_add_u32 v251, v251, v16")
    k.e("s_mul_i32 s100, s55, 112")
    k.e("s_mul_i32 s101, s6, 7168")
    k.e("s_add_u32 s100, s100, s101")
    k.e("s_mov_b32 s101, s100")
    k.e(f"s_add_u32 s43, s61, {WOB + 7*8192}")
    srd(k, 44, "s18", "s19", WO_BYTES)
    k.e("s_lshl_b32 s48, s3, 18")
    k.e("s_lshl_b32 s53, s5, 15")
    k.e("s_add_u32 s48, s48, s53")
    k.e("s_add_u32 s48, s48, s40")
    k.e("s_add_u32 s67, s40, 65536")
    k.e("v_add_u32 v238, s67, v2")
    k.e("s_lshl_b32 s66, s6, 11")
    k.e("s_add_u32 s66, s66, 98304")
    k.e("v_add_u32 v218, s66, v2")
    k.e("v_and_b32 v240, 31, v1")
    k.e("v_mov_b32 v239, 0x3f803f80")
    k.e("v_cmp_eq_u32 vcc, 28, v240")
    k.nop(2)
    k.e("v_cndmask_b32 v239, 0, v239, vcc")
    XR, QA, KA, VA, WF = 64, 16, 32, 48, 176
    KF, VF, QF = 200, 208, 220
    k.stamp("pro")
    WF = 176
    def R(c, vm):
        sl = c % 3
        k.e(f"s_waitcnt vmcnt({vm})")
        k.stamp("pro")
        xb = 8 if sl < 2 else 12
        xo = (sl % 2) * 32768
        for f in range(4):
            k.e(f"ds_read_b128 {vr(XR+(c*4+f)*4)}, v{xb+f} offset:{xo}")
        pieces = []
        if c + 3 <= 6: pieces += x_dma(c + 3)
        if c == 4:
            for n in range(4):
                pieces.append([f"s_add_u32 m0, s40, {WQ + n*1024}", f"s_add_u32 s68, s51, {n*16*2688}", "buffer_load_dwordx4 v6, s[32:35], s68 offen lds"])
            pieces.append(["buffer_load_dwordx2 v[236:237], v235, s[72:75], 0 offen sc1"])
        return pieces
    def wbase():
        k.e("s_lshl_b32 s64, s59, 13")
        k.e("v_add_u32 v242, s64, v232")
        k.e("v_add_u32 v243, s64, v233")
        k.ex(cyc7("s59"))
    def treads(g):
        c, f = divmod(g, 4)
        if f == 0:
            k.e("s_lshl_b32 s64, s59, 13")
            k.e(f"v_add_u32 v{242 + 4*(c&1)}, s64, v232")
            k.e(f"v_add_u32 v{243 + 4*(c&1)}, s64, v233")
            k.ex(cyc7("s59"))
        for seg in range(2):
            for s_ in range(2):
                r = WF + (g % 3)*8 + seg*4 + s_*2
                k.e(f"ds_read_b64_tr_b16 v[{r}:{r+1}], v{242 + 4*(c&1) + seg} offset:{(8*f+4*s_)*128}")
    waits = [6, 6, 5, 5, 5, 5, 5]
    if "notlb" not in EXP: waits = [8, 8, 5, 5, 5, 5, 5]
    for c in range(7):
        sl = c % 3
        k.e(f"s_waitcnt vmcnt({waits[c]})")
        k.stamp("pro")
        if c <= 5: k.e("s_barrier")
        xb = 8 if sl < 2 else 12
        xo = (sl % 2) * 32768
        if c == 0: treads(0)
        for f in range(4):
            k.e(f"ds_read_b128 {vr(XR+(c*4+f)*4)}, v{xb+f} offset:{xo}")
        if c == 0: treads(1)
        pend = []
        if c <= 3: pend.append(w_dma())
        if c + 2 <= 6: pend += x_dma(c + 2)
        if c == 5:
            for n in range(4):
                pend.append([f"s_add_u32 m0, s40, {WQ + n*1024}", f"s_add_u32 s68, s51, {n*16*2688}", "buffer_load_dwordx4 v6, s[32:35], s68 offen lds"])
        if c == 4:
            pend.append(["buffer_load_dwordx2 v[236:237], v235, s[72:75], 0 offen sc1"])
        n = len(pend); cuts = [(n*i)//4 for i in range(5)]
        per = [pend[cuts[i]:cuts[i+1]] for i in range(4)]
        for p in per[0]: k.ex(p)
        for f in range(4):
            g = c*4 + f
            if g + 2 < 28: treads(g + 2)
            if f == 0:
                later = (4 + 4) if c == 0 else (4 if g + 2 < 28 else 0)
            else:
                later = (4 if g + 1 < 28 else 0) + (4 if g + 2 < 28 else 0)
            k.e(f"s_waitcnt lgkmcnt({later})")
            x = XR + g*4; w = WF + (g % 3)*8
            z = "0" if g == 0 else None
            k.e(mfma(KA, w, x, z))
            k.e(mfma(VA, x, w+4, z))
            if f < 3:
                for p in per[f + 1]: k.ex(p)
    k.stamp("q2")
    k.e("s_waitcnt vmcnt(0)")
    k.e("ds_write_b16 v217, v216")
    k.stamp("all" if "q2" not in STAMPSET else "q2")
    def qreads(n):
        c, f = divmod(n, 4)
        if f == 0:
            k.e("s_lshl_b32 s64, s59, 12")
            k.e(f"v_add_u32 v{242 + 4*(c&1)}, s64, v234")
            k.ex(cyc7("s59"))
        for s_ in range(2):
            r = WF + (n & 3)*4 + s_*2
            k.e(f"ds_read_b64_tr_b16 v[{r}:{r+1}], v{242 + 4*(c&1)} offset:{(8*f + 4*s_)*64}")
    k.e("s_mov_b32 s58, 0")
    k.lab("L_nonce")
    k.e("v_readfirstlane_b32 s56, v236")
    k.e("v_readfirstlane_b32 s57, v237")
    k.e("s_add_u32 s58, s58, 1")
    k.e(f"s_cmp_ge_u32 s58, {SPIN_MAX}")
    k.e("s_cbranch_scc1 L_nonce_ok")
    k.e("s_cmp_lg_u32 s56, 0")
    k.e("s_cbranch_scc1 L_nonce_ok")
    k.e("buffer_load_dwordx2 v[236:237], v235, s[72:75], 0 offen sc1")
    k.e("s_waitcnt vmcnt(0)")
    k.e("s_branch L_nonce")
    k.lab("L_nonce_ok")
    k.e("s_waitcnt lgkmcnt(0)")
    k.e("s_barrier")
    k.stamp("q2")
    qreads(0); qreads(1); qreads(2)
    srd(k, 72, "s12", "s13", WO_BYTES)
    k.e("s_mov_b64 exec, s[62:63]")
    for i in (12,13,14): k.e(f"v_mov_b32 v{KA+i}, 1.0")
    k.e(f"v_mov_b32 v{KA+15}, 0")
    k.e("s_mov_b64 exec, -1")
    epi = []
    epi += [[f"v_cvt_pk_bf16_f32 v{KF+i}, v{KA+2*i}, v{KA+2*i+1}" for i in range(8)]]
    epi += [[f"buffer_store_dwordx4 {vr(KF)}, v2, s[36:39], s48 offen sc1", f"buffer_store_dwordx4 {vr(KF+4)}, v2, s[36:39], s48 offen offset:1024 sc1"] +
            [f"v_cvt_pk_bf16_f32 v{VF+i}, v{VA+2*i}, v{VA+2*i+1}" for i in range(8)]]
    epi += [["s_mov_b32 s64, 0xf0000000", "s_mov_b32 s65, 0xf0000000", "s_mov_b64 exec, s[64:65]"] + [f"v_mov_b32 v{VF+i}, v239" for i in range(8)] + ["s_mov_b64 exec, -1",
            f"buffer_store_dwordx4 {vr(VF)}, v2, s[36:39], s48 offen offset:2048 sc1", f"buffer_store_dwordx4 {vr(VF+4)}, v2, s[36:39], s48 offen offset:3072 sc1"]]
    epi += [[f"ds_write_b128 v238, {vr(r)} offset:{i*1024}" for i, r in enumerate((KF, KF+4, VF, VF+4))]]
    for n in range(28):
        if n + 3 < 28: qreads(n + 3)
        later = 2 * min(3, 27 - n)
        if n in (4, 5, 6): later += 4
        k.e(f"s_waitcnt lgkmcnt({later})")
        k.e(mfma(QA, WF + (n & 3)*4, XR + n*4, "0" if n == 0 else None))
        if n < len(epi):
            blk = epi[n]
            if "nostore" in EXP: blk = [x for x in blk if not x.startswith("buffer_store")]
            if "nodsw" in EXP: blk = [x for x in blk if not x.startswith("ds_write")]
            k.ex(blk)
        if n in (5, 13): k.stamp("q2")
    k.stamp("all" if "q2" not in STAMPSET else "q2")
    QR, OA, OB, S0, S1, PR, KR, VR, ST = 16, 32, 48, 64, 80, 96, 104, 120, 136
    GS = 250
    k.e(f"s_mov_b32 s64, {hex(f2u(CSCALE))}")
    k.e("v_mov_b32 v6, v244")
    k.e("v_mov_b32 v7, v245")
    k.e("v_add_u32 v3, 65536, v244")
    k.e("v_mov_b32 v4, v244")
    k.e("v_mov_b32 v5, v245")
    k.e("v_mov_b32 v9, v248")
    k.e("v_mov_b32 v10, v249")
    k.e("v_mov_b32 v11, v251")
    k.nop(3)
    k.e(f"v_mov_b32 v12, v{QA+12}")
    k.e(f"v_mov_b32 v{GS}, v{QA+12}")
    for i in range(12): k.e(f"v_mul_f32 v{QA+i}, s64, v{QA+i}")
    k.e(f"v_permlane32_swap_b32 v12, v{GS}")
    for i in range(6): k.e(f"v_cvt_pk_bf16_f32 v{QF+i}, v{QA+2*i}, v{QA+2*i+1}")
    k.e(f"v_mov_b32 v{QF+6}, 0")
    k.e(f"v_mov_b32 v{QF+7}, 0")
    k.e("s_mov_b32 exec_hi, 0")
    k.e(f"v_mul_f32 v{QA+12}, s64, v{QA+12}")
    k.e(f"v_mul_f32 v{QA+13}, s64, v{QA+13}")
    k.e(f"v_mul_f32 v{QA+14}, s64, v{QA+14}")
    k.e(f"v_mul_f32 v{QA+15}, s64, v{QA+15}")
    k.e(f"v_cvt_pk_bf16_f32 v{QF+6}, v{QA+12}, v{QA+13}")
    k.e(f"v_cvt_pk_bf16_f32 v{QF+7}, v{QA+14}, v{QA+15}")
    k.e("s_mov_b64 exec, -1")
    SS = 96
    k.e(f"v_mul_f32 v{GS}, s60, v{GS}")
    k.e(f"v_exp_f32 v{GS}, v{GS}")
    k.e(mfma(SS, KF, QF, "0"))
    k.e(mfma(SS, KF+4, QF+4))
    k.e(f"v_add_f32 v{GS}, 1.0, v{GS}")
    k.e(f"v_rcp_f32 v{GS}, v{GS}")
    k.e(f"ds_write_b128 v218, {vr(QF)}")
    k.nop(9)
    k.e(f"v_max3_f32 v12, v{SS}, v{SS+1}, v{SS+2}")
    k.e(f"v_max3_f32 v13, v{SS+3}, v{SS+4}, v{SS+5}")
    k.e(f"v_max3_f32 v12, v12, v{SS+6}, v{SS+7}")
    k.e(f"v_max3_f32 v13, v13, v{SS+8}, v{SS+9}")
    k.e(f"v_max3_f32 v12, v12, v{SS+10}, v{SS+11}")
    k.e(f"v_max3_f32 v13, v13, v{SS+12}, v{SS+13}")
    k.e(f"v_max3_f32 v12, v12, v{SS+14}, v{SS+15}")
    k.e("v_max_f32 v12, v12, v13")
    k.e("v_mov_b32 v13, v12")
    k.nop(2)
    k.e("v_permlane32_swap_b32 v12, v13")
    k.nop(1)
    k.e("v_max_f32 v12, v12, v13")
    shift_split(k, 12, 13, 14, 15, QF+6, QF+7)
    k.e(f"ds_write_b128 v218, {vr(QF+4)} offset:1024")
    k.e("s_waitcnt vmcnt(0) lgkmcnt(0)")
    k.e("s_barrier")
    k.e("s_cmp_lg_u32 s6, 0")
    k.e("s_cbranch_scc1 L_noflag1")
    k.e("s_lshl_b32 s66, s3, 7")
    k.e("s_lshl_b32 s67, s5, 3")
    k.e("s_add_u32 s66, s66, s67")
    k.e(f"s_add_u32 s66, s66, {FL1_OFF}")
    k.e("v_mov_b32 v236, s56")
    k.e("v_mov_b32 v237, s57")
    k.e("s_mov_b64 exec, 1")
    k.e("buffer_store_dwordx2 v[236:237], v235, s[36:39], s66 offen sc1")
    k.e("s_mov_b64 exec, -1")
    k.lab("L_noflag1")
    k.stamp("all" if "q2" not in STAMPSET else "q2")
    k.e(f"ds_read_b128 {vr(QR)}, v9")
    k.e(f"ds_read_b128 {vr(QR+4)}, v9 offset:1024")
    k.e(f"ds_read_b128 {vr(KR)}, v3")
    k.e(f"ds_read_b128 {vr(KR+4)}, v3 offset:1024")
    k.e(f"ds_read_b128 {vr(QR+8)}, v9 offset:2048")
    k.e(f"ds_read_b128 {vr(QR+12)}, v9 offset:3072")
    k.e("s_waitcnt lgkmcnt(2)")
    k.e(mfma(S0, KR, QR, "0"))
    k.e(mfma(S0, KR+4, QR+4))
    k.e("s_waitcnt lgkmcnt(0)")
    k.nop(11)
    def Lload():
        if "noload" in EXP: return ["s_add_u32 s99, s99, 1"]
        return ["s_and_b32 s53, s99, 7", "s_lshl_b32 s53, s53, 15", "s_add_u32 s53, s53, s98", "s_add_u32 s99, s99, 1"] + \
               [f"buffer_load_dwordx4 {vr(ST+4*i)}, v2, s[36:39], s53 offen offset:{i*1024} sc1" for i in range(4)]
    def slot(Sbuf, pv, sq, extra, pvmode="acc"):
        e = [f"v_exp_f32 v{Sbuf+i}, v{Sbuf+i}" for i in range(16)]
        c = [f"v_cvt_pk_bf16_f32 v{PR+i}, v{Sbuf+2*i}, v{Sbuf+2*i+1}" for i in range(8)]
        O, V = pv; Sd, Kb, Qb = sq
        mPV0 = mfma(O, V, PR, "0" if pvmode == "zero" else None); mPV1 = mfma(O, V+4, PR+4)
        if pvmode == "skip": mPV0 = "s_nop 0"; mPV1 = "s_nop 0"
        mS0 = mfma(Sd, Kb, Qb, "0"); mS1 = mfma(Sd, Kb+4, Qb+4)
        seq = [mPV0, e[0], e[1], e[2], c[0], e[3], e[4], mS0, c[1], e[5], e[6], e[7], c[2], e[8], mS1, e[9], c[3],
               e[10], e[11], e[12], mPV1, e[13], c[4], e[14], c[5], e[15], c[6], c[7]]
        for pos, x in enumerate(seq):
            k.ex(extra.get(pos, []))
            k.e(x)
    def bdma():
        if "nowo" in EXP: return []
        return ["s_mov_b32 m0, s43", "s_add_u32 s43, s43, 8192", "buffer_load_dwordx4 v11, s[44:47], s101 offen lds", f"s_add_u32 s101, s101, {8*7168}"]
    def wr(i):
        if "nowrite" in EXP: return []
        return [f"ds_write_b128 v5, {vr(ST+4*i)} offset:{i*1024}"]
    def Laddr(): return ["s_and_b32 s53, s99, 7", "s_lshl_b32 s53, s53, 15", "s_add_u32 s53, s53, s98", "s_add_u32 s99, s99, 1"]
    def Lp(i):
        if "noload" in EXP: return []
        return [f"buffer_load_dwordx4 {vr(ST+4*i)}, v2, s[36:39], s53 offen offset:{i*1024} sc1"]
    def body(kind):
        for t in range(4):
            kb = KR + (t & 1) * 8; kn = KR + ((t + 1) & 1) * 8
            vb = VR + (t & 1) * 8; vp = VR + ((t + 1) & 1) * 8
            exA = {}; exB = {0: ["s_waitcnt lgkmcnt(0)"]}
            def add(d, p, l): d.setdefault(p, []); d[p] = d[p] + l
            if t < 3:
                rk = [f"ds_read_b128 {vr(kn)}, v3 offset:{(t+1)*4096}", f"ds_read_b128 {vr(kn+4)}, v3 offset:{(t+1)*4096+1024}"]
            else:
                rk = [f"ds_read_b128 {vr(kn)}, v4", f"ds_read_b128 {vr(kn+4)}, v4 offset:1024"]
            rv = [f"ds_read_b128 {vr(vb)}, v3 offset:{t*4096+2048}", f"ds_read_b128 {vr(vb+4)}, v3 offset:{t*4096+3072}"]
            late_k = (kind == "first" and t == 3)
            if t == 0 and kind == "last":
                add(exA, 0, ["s_barrier"])
                for n in range(4):
                    add(exA, 4 + 6*n, [f"s_add_u32 m0, s61, {WOB + n*8192}", f"s_add_u32 s53, s100, {n*8*7168}", "buffer_load_dwordx4 v11, s[72:75], s53 offen lds"])
                for n in range(4, 7):
                    add(exB, 4 + 6*(n-4), [f"s_add_u32 m0, s61, {WOB + n*8192}", f"s_add_u32 s53, s100, {n*8*7168}", "buffer_load_dwordx4 v11, s[72:75], s53 offen lds"])
            if kind == "first" and t == 1:
                add(exB, 14, ["buffer_load_dwordx2 v[152:153], v10, s[36:39], s97 offen sc1"])
            if kind == "first" and t == 2:
                add(exA, 0, k.stamp_list("loop") + poll_list("L_p1", 10, "s97", 152, True) + k.stamp_list("loop") + Laddr() + Lp(0))
                add(exA, 10, Lp(1)); add(exA, 20, Lp(2)); add(exB, 6, Lp(3))
            if late_k:
                exB[0] = ["s_waitcnt vmcnt(0) lgkmcnt(0)"] + sum([wr(i) for i in range(4)], []) + ["s_waitcnt lgkmcnt(0)", "s_barrier"] + rk
                add(exB, 2, bdma()); add(exB, 4, bdma())
                add(exB, 7, ["s_waitcnt lgkmcnt(0)"])
                add(exB, 9, Laddr() + Lp(0)); add(exB, 13, Lp(1)); add(exB, 17, Lp(2)); add(exB, 21, Lp(3)); add(exB, 25, bdma())
                add(exA, 5, [rv[0]]); add(exA, 8, [rv[1]])
            else:
                add(exA, 1, [rk[0]]); add(exA, 3, [rk[1]]); add(exA, 5, [rv[0]]); add(exA, 8, [rv[1]])
            if kind in ("mid", "c6"):
                m = kind == "mid"
                if t == 1:
                    add(exA, 12, ["s_waitcnt vmcnt(4)"] + wr(0))
                    add(exB, 4, ["s_waitcnt vmcnt(3)"] + wr(1))
                    if m: add(exB, 16, Laddr() + Lp(0))
                if t == 2:
                    add(exA, 12, [f"s_waitcnt vmcnt({3 if m else 2})"] + wr(2))
                    if m: add(exA, 20, Lp(1))
                    add(exB, 4, [f"s_waitcnt vmcnt({3 if m else 1})"] + wr(3))
                    if m: add(exB, 16, Lp(2))
                if t == 3:
                    add(exA, 0, ["s_waitcnt lgkmcnt(0)"] + ([] if "nobar" in EXP else ["s_barrier"]))
                    if m: add(exA, 16, Lp(3)); add(exB, 10, bdma())
                    if not m:
                        add(exA, 10, ["v_lshrrev_b32 v12, 3, v1", "v_lshlrev_b32 v12, 6, v12", "v_and_b32 v13, 7, v1", "v_add_u32 v12, v12, v13", "v_mul_u32_u24 v12, 896, v12",
                                      "buffer_load_dword v240, v12, s[72:75], s100 offen"])
                        add(exB, 10, ["buffer_load_dword v241, v12, s[72:75], s100 offen offset:124"])
            if t == 3 and kind != "last":
                add(exB, 20, ["v_mov_b32 v3, v4", "s_add_u32 s49, s49, 32768", "s_cmp_eq_u32 s49, 98304", "s_cselect_b32 s49, 0, s49"])
                add(exB, 22, ["v_add_u32 v4, s49, v6", "v_add_u32 v5, s49, v7"])
                if kind == "mid":
                    add(exB, 24, ["s_add_u32 s48, s48, 1"]); add(exB, 26, ["s_cmp_lt_u32 s48, 6"])
            fa = "skip" if (kind == "first" and t == 0) else "zero" if (kind == "first" and t == 1) else "acc"
            fb = "zero" if (kind == "first" and t == 0) else "acc"
            slot(S0, (OB, vp), (S1, kb, QR+8), exA, fa)
            slot(S1, (OA, vb), (S0, kn, QR), exB, fb)
    body("first")
    k.stamp("loop2")
    k.e("s_mov_b32 s48, 1")
    k.e(".p2align 6")
    k.lab("L_loop")
    body("mid")
    k.e("s_cbranch_scc1 L_loop")
    k.stamp("loop2")
    body("c6")
    k.stamp("loop2")
    body("last")
    k.stamp()
    k.nop(2)
    k.e(mfma(OB, VR+8, PR))
    k.e(mfma(OB, VR+12, PR+4))
    k.e("v_add_u32 v11, s40, v2")
    k.e("s_xor_b32 s29, s6, 1")
    k.e("s_lshl_b32 s29, s29, 12")
    k.e("v_add_u32 v12, s29, v2")
    k.e("s_lshl_b32 s29, s41, 16")
    k.e("s_lshl_b32 s30, s3, 11")
    k.e("s_add_u32 s29, s29, s30")
    k.e(f"s_add_u32 s29, s29, {OF_OFF}")
    k.e("s_barrier")
    k.nop(4)
    k.e("s_cmp_eq_u32 s96, 0")
    k.e("s_cbranch_scc0 L_x1")
    for i in range(4): k.e(f"ds_write_b128 v11, {vr(OB+4*i)} offset:{i*1024}")
    k.e("s_waitcnt lgkmcnt(0)")
    k.e("s_barrier")
    for i in range(4): k.e(f"ds_read_b128 {vr(S0+4*i)}, v12 offset:{i*1024}")
    for i in range(16):
        if i % 4 == 0: k.e(f"s_waitcnt lgkmcnt({3 - i//4})")
        k.e(f"v_add_f32 v{OA+i}, v{OA+i}, v{S0+i}")
    k.e("s_branch L_xd")
    k.lab("L_x1")
    for i in range(4): k.e(f"ds_write_b128 v11, {vr(OA+4*i)} offset:{i*1024}")
    k.e("s_waitcnt lgkmcnt(0)")
    k.e("s_barrier")
    for i in range(4): k.e(f"ds_read_b128 {vr(S0+4*i)}, v12 offset:{i*1024}")
    for i in range(16):
        if i % 4 == 0: k.e(f"s_waitcnt lgkmcnt({3 - i//4})")
        k.e(f"v_add_f32 v{OA+i}, v{OB+i}, v{S0+i}")
    k.lab("L_xd")
    k.e("s_mov_b32 s59, 0")
    k.lab("L_norm")
    k.e("s_mov_b32 s64, 0x203")
    k.e(f"v_mov_b32 v13, v{OA+12}")
    k.e(f"v_mov_b32 v14, v{OA+12}")
    k.e(f"v_maximum3_f32 v15, |v{OA}|, |v{OA+1}|, |v{OA+2}|")
    k.e(f"v_maximum3_f32 v15, |v{OA+3}|, |v{OA+4}|, v15")
    k.e("v_permlane32_swap_b32 v13, v14")
    for i in range(5, 15, 2): k.e(f"v_maximum3_f32 v15, |v{OA+i}|, |v{OA+i+1}|, v15")
    k.e("v_rcp_f32 v13, v14")
    k.e(f"v_maximum3_f32 v15, |v{OA+15}|, |v14|, v15")
    k.e(f"v_mul_f32 v13, v13, v{GS}")
    k.e("v_cmp_class_f32 vcc, v15, s64")
    for i in range(12): k.e(f"v_mul_f32 v{OA+i}, v{OA+i}, v13")
    k.e("s_cmp_lg_u32 s59, 0")
    k.e("s_cbranch_scc1 L_norm_ok")
    k.e("s_cmp_lg_u64 vcc, 0")
    k.e("s_cbranch_scc1 L_fallback")
    k.lab("L_norm_ok")
    for i in range(12, 16): k.e(f"v_mul_f32 v{OA+i}, v{OA+i}, v13")
    k.e("s_mov_b64 exec, s[62:63]")
    for i in (12,13,14,15): k.e(f"v_mov_b32 v{OA+i}, 0")
    k.e("s_mov_b64 exec, -1")
    for i in range(4): k.e(f"v_cvt_pk_bf16_f32 v{PR+i}, v{OA+2*i}, v{OA+2*i+1}")
    k.e(f"buffer_store_dwordx4 {vr(PR)}, v2, s[36:39], s29 offen sc1")
    for i in range(4, 8): k.e(f"v_cvt_pk_bf16_f32 v{PR+i}, v{OA+2*i}, v{OA+2*i+1}")
    k.e(f"buffer_store_dwordx4 {vr(PR+4)}, v2, s[36:39], s29 offen offset:1024 sc1")
    k.e("s_lshr_b32 s7, s6, 2")
    k.e("s_and_b32 s28, s6, 3")
    k.e("v_lshrrev_b32 v5, 5, v1")
    k.e("v_lshlrev_b32 v5, 2, v5")
    k.e("v_bfe_u32 v6, v1, 2, 2")
    k.e("v_add_u32 v5, v5, v6")
    k.e("v_lshlrev_b32 v5, 7, v5")
    k.e("v_bfe_u32 v7, v1, 4, 1")
    k.e("v_lshlrev_b32 v7, 1, v7")
    k.e("v_bfe_u32 v8, v1, 1, 1")
    k.e("v_add_u32 v7, v7, v8")
    k.e("v_bfe_u32 v8, v6, 1, 1")
    k.e("v_lshlrev_b32 v8, 2, v8")
    k.e("v_xor_b32 v7, v7, v8")
    k.e("v_lshlrev_b32 v7, 4, v7")
    k.e("v_add_u32 v5, v5, v7")
    k.e("v_and_b32 v7, 1, v1")
    k.e("v_lshlrev_b32 v7, 3, v7")
    k.e("v_add_u32 v5, v5, v7")
    k.e("v_xor_b32 v6, 64, v5")
    k.e("s_mul_i32 s29, s28, 28672")
    k.e(f"s_add_u32 s29, s29, {WOB}")
    k.e("v_add_u32 v5, s29, v5")
    k.e("v_add_u32 v6, s29, v6")
    k.e("v_mov_b32 v13, 0")
    k.e("v_and_b32 v10, 31, v1")
    k.e("v_lshlrev_b32 v11, 3, v10")
    k.e("s_lshr_b32 s66, s54, 2")
    k.e("s_lshl_b32 s66, s66, 8")
    k.e(f"s_add_u32 s66, s66, {FL2_OFF}")
    k.e("s_lshl_b32 s32, s54, 1")
    k.e("s_add_u32 s32, s32, s7")
    k.e("s_lshl_b32 s33, s32, 16")
    k.e("s_lshl_b32 s34, s28, 14")
    k.e("s_add_u32 s33, s33, s34")
    k.e(f"s_add_u32 s33, s33, {OF_OFF}")
    k.e("s_lshl_b32 s29, s7, 15")
    k.e("s_lshl_b32 s30, s28, 12")
    k.e("s_add_u32 s29, s29, s30")
    k.e("v_add_u32 v16, s29, v2")
    k.e("s_bfe_u32 s29, s6, 0x10001")
    k.e("s_and_b32 s30, s6, 1")
    k.e("s_lshl_b32 s31, s7, 15")
    k.e("s_lshl_b32 s34, s29, 14")
    k.e("s_add_u32 s31, s31, s34")
    k.e("s_lshl_b32 s34, s30, 11")
    k.e("s_add_u32 s31, s31, s34")
    k.e("v_add_u32 v17, s31, v2")
    k.e("v_mul_u32_u24 v18, 896, v10")
    k.e("v_lshrrev_b32 v12, 5, v1")
    k.e("v_lshlrev_b32 v12, 4, v12")
    k.e("v_add_u32 v18, v18, v12")
    k.e("s_lshl_b32 s31, s29, 6")
    k.e("s_lshl_b32 s34, s30, 5")
    k.e("s_add_u32 s31, s31, s34")
    k.e("v_add_u32 v12, s31, v12")
    k.e("v_cmp_gt_u32 vcc, 112, v12")
    k.e("s_mul_i32 s34, s55, 112")
    k.e("s_add_u32 s31, s31, s34")
    k.e("s_mul_i32 s34, s32, 28672")
    k.e("s_add_u32 s31, s31, s34")
    k.e("v_mov_b32 v19, 0x7fffffff")
    k.e("v_cndmask_b32 v18, v19, v18, vcc")
    srd(k, 48, "s22", "s23", OUT_BYTES)
    k.e("s_waitcnt vmcnt(0)")
    k.e("s_barrier")
    k.stamp()
    k.e("s_cmp_lg_u32 s6, 0")
    k.e("s_cbranch_scc1 L_noflag2")
    k.e("s_lshl_b32 s64, s5, 8")
    k.e("s_lshl_b32 s67, s3, 3")
    k.e("s_add_u32 s64, s64, s67")
    k.e(f"s_add_u32 s64, s64, {FL2_OFF}")
    k.e("v_mov_b32 v14, s56")
    k.e("v_mov_b32 v15, s57")
    k.e("s_mov_b64 exec, 1")
    k.e("buffer_store_dwordx2 v[14:15], v13, s[36:39], s64 offen sc1")
    k.e("s_mov_b64 exec, -1")
    k.lab("L_noflag2")
    k.ex(poll_list("L_p2", 11, "s66", 14, False))
    k.stamp()
    OR = 64
    for i in range(16):
        if i % 4 == 0 and i > 0: k.e("s_add_u32 s33, s33, 4096")
        k.e(f"buffer_load_dwordx4 {vr(OR+4*i)}, v2, s[36:39], s33 offen offset:{(i%4)*1024} sc1")
    A0, A1, WF3 = 32, 48, 128
    steps = [(hh, m) for hh in range(8) for m in range(2)]
    def treads3(hh, m, buf):
        for ct in range(2):
            for s_ in range(2):
                r = WF3 + buf*8 + ct*4 + s_*2
                k.e(f"ds_read_b64_tr_b16 v[{r}:{r+1}], v{5+ct} offset:{(hh*28 + 16*m + 8*s_) * 128}")
    treads3(*steps[0], 0)
    for i, (hh, m) in enumerate(steps):
        if i + 1 < len(steps):
            treads3(*steps[i+1], (i+1) & 1)
            k.e(f"s_waitcnt vmcnt({15-i}) lgkmcnt(4)")
        else:
            k.e(f"s_waitcnt vmcnt({15-i}) lgkmcnt(0)")
        w = WF3 + (i & 1)*8
        z = "0" if i == 0 else None
        k.e(mfma(A0, w, OR+4*i, z))
        k.e(mfma(A1, w+4, OR+4*i, z))
    k.stamp()
    k.e("s_barrier")
    k.nop(10)
    for q in range(4): k.e(f"ds_write_b128 v16, {vr(A0+4*q)} offset:{q*1024}")
    for q in range(4): k.e(f"ds_write_b128 v16, {vr(A1+4*q)} offset:{16384+q*1024}")
    k.e("s_waitcnt lgkmcnt(0)")
    k.e("s_barrier")
    for kq in range(4):
        for q in range(2):
            k.e(f"ds_read_b128 {vr(64+kq*8+q*4)}, v17 offset:{kq*4096+q*1024}")
    k.e("s_waitcnt lgkmcnt(4)")
    for i in range(8): k.e(f"v_add_f32 v{64+i}, v{64+i}, v{72+i}")
    k.e("s_waitcnt lgkmcnt(0)")
    for i in range(8): k.e(f"v_add_f32 v{80+i}, v{80+i}, v{88+i}")
    for i in range(8): k.e(f"v_add_f32 v{64+i}, v{64+i}, v{80+i}")
    for i in range(4): k.e(f"v_cvt_pk_bf16_f32 v{20+i}, v{64+2*i}, v{65+2*i}")
    k.nop(2)
    k.e("v_permlane32_swap_b32 v20, v22")
    k.e("v_permlane32_swap_b32 v21, v23")
    k.nop(1)
    k.e("buffer_store_dwordx4 v[20:23], v18, s[48:51], s31 offen")
    k.stamp()
    k.stamp_flush()
    k.lab("L_end")
    k.e("s_endpgm")
    k.lab("L_fallback")
    k.e("s_mov_b32 s59, 1")
    k.e("s_and_b32 s30, s6, 1")
    k.e("s_cmp_eq_u32 s30, 0")
    k.e("s_cbranch_scc1 L_fbq")
    for i in range(8): k.e(f"v_mov_b32 v{QR+i}, v{QR+8+i}")
    k.lab("L_fbq")
    k.e("s_mov_b64 exec, s[62:63]")
    k.e(f"v_mov_b32 v{QR+6}, 0")
    k.e(f"v_mov_b32 v{QR+7}, 0")
    k.e("s_mov_b64 exec, -1")
    k.e("v_mov_b32 v13, 0xff800000")
    k.e("s_lshl_b32 s64, s3, 18")
    k.e("s_mov_b32 s30, 0")
    k.lab("L_fb1")
    k.e(f"buffer_load_dwordx4 {vr(KR)}, v2, s[36:39], s64 offen sc1")
    k.e(f"buffer_load_dwordx4 {vr(KR+4)}, v2, s[36:39], s64 offen offset:1024 sc1")
    k.e("s_waitcnt vmcnt(0)")
    k.e(mfma(S0, KR, QR, "0"))
    k.e(mfma(S0, KR+4, QR+4))
    k.nop(12)
    for i in range(0, 16, 2): k.e(f"v_max3_f32 v13, v13, v{S0+i}, v{S0+i+1}")
    k.e("s_add_u32 s64, s64, 4096")
    k.e("s_add_u32 s30, s30, 1")
    k.e("s_cmp_lt_u32 s30, 64")
    k.e("s_cbranch_scc1 L_fb1")
    k.e("v_mov_b32 v14, v13")
    k.nop(2)
    k.e("v_permlane32_swap_b32 v13, v14")
    k.nop(1)
    k.e("v_max_f32 v13, v13, v14")
    shift_split(k, 13, 14, 15, 12, QR+6, QR+7)
    for i in range(16): k.e(f"v_mov_b32 v{OA+i}, 0")
    k.e("s_lshl_b32 s64, s3, 18")
    k.e("s_mov_b32 s30, 0")
    k.lab("L_fb2")
    k.e(f"buffer_load_dwordx4 {vr(KR)}, v2, s[36:39], s64 offen sc1")
    k.e(f"buffer_load_dwordx4 {vr(KR+4)}, v2, s[36:39], s64 offen offset:1024 sc1")
    k.e(f"buffer_load_dwordx4 {vr(VR)}, v2, s[36:39], s64 offen offset:2048 sc1")
    k.e(f"buffer_load_dwordx4 {vr(VR+4)}, v2, s[36:39], s64 offen offset:3072 sc1")
    k.e("s_waitcnt vmcnt(0)")
    k.e(mfma(S0, KR, QR, "0"))
    k.e(mfma(S0, KR+4, QR+4))
    k.nop(12)
    for i in range(16): k.e(f"v_exp_f32 v{S0+i}, v{S0+i}")
    k.nop(1)
    for i in range(8): k.e(f"v_cvt_pk_bf16_f32 v{PR+i}, v{S0+2*i}, v{S0+2*i+1}")
    k.nop(2)
    k.e(mfma(OA, VR, PR))
    k.e(mfma(OA, VR+4, PR+4))
    k.e("s_add_u32 s64, s64, 4096")
    k.e("s_add_u32 s30, s30, 1")
    k.e("s_cmp_lt_u32 s30, 64")
    k.e("s_cbranch_scc1 L_fb2")
    k.nop(12)
    k.e("s_branch L_norm")
    return k.l, dict(vgpr=252, sgpr=100, lds=163840, block=512)

def main(outpath):
    l, m = gen()
    o = [f"; gated_mix mha block, fused single launch (projection -> attention -> output projection, flag hand-offs). Generated by my own generator script.",
         f"; @launch grid=(256,1,1) block=({m['block']},1,1) lds={m['lds']}",
         '.amdgcn_target "amdgcn-amd-amdhsa--gfx950"', ".text", f".globl {KNAME}", ".p2align 8", f".type {KNAME},@function"] + l
    acc = (m['vgpr'] + 3) // 4 * 4
    o += ['.section .rodata,"a"', ".p2align 6", f".amdhsa_kernel {KNAME}", f"  .amdhsa_next_free_vgpr {m['vgpr']}", f"  .amdhsa_next_free_sgpr {m['sgpr']}",
          f"  .amdhsa_accum_offset {acc}", "  .amdhsa_group_segment_fixed_size 0", "  .amdhsa_kernarg_size 80",
          "  .amdhsa_user_sgpr_count 2", "  .amdhsa_user_sgpr_kernarg_segment_ptr 1", "  .amdhsa_system_sgpr_workgroup_id_x 1", ".end_amdhsa_kernel"]
    open(outpath, "w").write("\n".join(o) + "\n")

if __name__ == "__main__":
    main(sys.argv[1] if len(sys.argv) > 1 else f"cdna_kernels/{NAME}.s")
```

```python
import sys, math, os, struct

NAME = "gated_mix__mha_block__softmax_full_mha__prompt"
KNAME = NAME + "_kernel"
X_BYTES = 2048 * 448 * 2
W_BYTES = 448 * 1344 * 2
WO_BYTES = 448 * 448 * 2
OUT_BYTES = 2048 * 448 * 2
KV_OFF = 0
OF_OFF = 8 << 20
FL1_OFF = (12 << 20) + 8192
FL2_OFF = (12 << 20) + 16384
STAMP_OFF = 13 << 20
WS_USED = 14 << 20
LOG2E = math.log2(math.e)
CSCALE = (28 ** -0.5) * LOG2E
STAMP = int(os.environ.get("STAMP", "0"))
STAMPSET = os.environ.get("STAMPSET", "all").split(",")
EXP = os.environ.get("EXP", "").split(",")
SPIN_MAX = 1 << 18
def f2u(x): return struct.unpack('<I', struct.pack('<f', x))[0]

class K:
    def __init__(s): s.l = []; s.ns = 0
    def e(s, t):
        if t.endswith(":"): s.l.append(t)
        else: s.l.append("  " + t)
    def ex(s, ts):
        for t in ts: s.e(t)
    def lab(s, t): s.l.append(t + ":")
    def nop(s, n):
        while n > 0:
            k = min(n, 16); s.e(f"s_nop {k-1}"); n -= k
    def stamp(s, tag="all"):
        if not STAMP: return
        if tag not in STAMPSET and s.ns > 0: return
        i = s.ns; s.ns += 1
        assert i < 14
        if i == 0:
            s.e("s_memrealtime s[76:77]"); s.e("s_waitcnt lgkmcnt(0)"); s.e("s_mov_b32 s94, s76")
        s.e("s_memrealtime s[76:77]" if os.environ.get("STAMPRT") else "s_memtime s[76:77]"); s.e("s_waitcnt lgkmcnt(0)"); s.e(f"s_mov_b32 s{80+i}, s76")
    def stamp_list(s, tag):
        save = s.l; s.l = []
        s.stamp(tag)
        out = [x.strip() for x in s.l]; s.l = save
        return out
    def stamp_flush(s):
        if not STAMP: return
        if os.environ.get("STAMPDBG") == "multi":
            ia, ib = [int(x) for x in os.environ.get("STAMPIDX", "0,7").split(",")]
            base = int(os.environ.get("STAMPBASE", "248"))
            s.e(f"s_sub_u32 s78, s2, {base+1}"); s.e("s_cmp_ge_u32 s78, 7"); s.e("s_cbranch_scc1 L_nodbg"); s.e("s_cmp_lg_u32 s6, 0"); s.e("s_cbranch_scc1 L_nodbg")
            s.e("s_mov_b32 s72, s24"); s.e("s_mov_b32 s73, s25"); s.e("s_mov_b32 s74, 256"); s.e("s_mov_b32 s75, 0x20000")
            s.e("s_lshl_b32 s78, s78, 3"); s.e("s_add_u32 s78, s78, 8")
            s.e("v_mov_b32 v0, 0"); s.e("s_mov_b64 exec, 1")
            s.e(f"s_sub_u32 s79, s{80+ia}, s56"); s.e("v_mov_b32 v2, s79"); s.e(f"s_sub_u32 s79, s{80+ib}, s56"); s.e("v_mov_b32 v3, s79")
            s.e("buffer_store_dwordx2 v[2:3], v0, s[72:75], s78 offen")
            s.e("s_mov_b64 exec, -1")
            s.lab("L_nodbg")
            return
        if os.environ.get("STAMPDBG"):
            wgid = int(os.environ["STAMPDBG"])
            s.e(f"s_cmp_lg_u32 s2, {wgid}"); s.e("s_cbranch_scc1 L_nodbg"); s.e("s_cmp_lg_u32 s6, 0"); s.e("s_cbranch_scc1 L_nodbg")
            s.e("s_mov_b32 s72, s24"); s.e("s_mov_b32 s73, s25"); s.e("s_mov_b32 s74, 256"); s.e("s_mov_b32 s75, 0x20000")
            s.e("v_mov_b32 v0, 0"); s.e("s_mov_b64 exec, 1")
            for i in range(14):
                s.e(f"s_sub_u32 s78, s{80+i}, s80")
                s.e(f"v_mov_b32 v1, s78")
                s.e(f"buffer_store_dword v1, v0, s[72:75], 0 offen offset:{8+4*i}")
                s.e("s_nop 1")
            s.e("s_mov_b64 exec, -1")
            s.lab("L_nodbg")
            return
        s.e("s_lshl_b32 s78, s2, 3"); s.e("s_add_u32 s78, s78, s6"); s.e("s_lshl_b32 s78, s78, 6")
        s.e(f"s_add_u32 s78, s78, {STAMP_OFF}")
        s.e("s_memrealtime s[76:77]"); s.e("s_waitcnt lgkmcnt(0)"); s.e("s_mov_b32 s95, s76")
        s.e("v_mov_b32 v0, 0"); s.e("s_mov_b64 exec, 1")
        for i in range(16):
            s.e(f"v_mov_b32 v1, s{80+i}")
            s.e(f"buffer_store_dword v1, v0, s[36:39], s78 offen offset:{4*i}")
            s.e("s_nop 1")
        s.e("s_mov_b64 exec, -1")

def vr(b, n=4): return f"v[{b}:{b+n-1}]"
def mfma(d, a, b, c=None):
    cc = vr(d, 16) if c is None else c
    return f"v_mfma_f32_32x32x16_bf16 {vr(d,16)}, {vr(a)}, {vr(b)}, {cc}"
def srd(k, b, lo, hi, nbytes):
    k.e(f"s_mov_b32 s{b}, {lo}"); k.e(f"s_mov_b32 s{b+1}, {hi}"); k.e(f"s_mov_b32 s{b+2}, {nbytes}"); k.e(f"s_mov_b32 s{b+3}, 0x20000")
def cyc7(r): return [f"s_add_u32 {r}, {r}, 1", f"s_cmp_eq_u32 {r}, 7", f"s_cselect_b32 {r}, 0, {r}"]

def shift_split(k, m, t1, t2, t3, q6, q7):
    k.e(f"v_sub_f32 v{m}, 0, v{m}")
    k.e(f"v_cvt_pk_bf16_f32 v{t1}, v{m}, v{m}")
    k.e(f"v_and_b32 v{t1}, 0xffff0000, v{t1}")
    k.e(f"v_sub_f32 v{t2}, v{m}, v{t1}")
    k.e(f"v_cvt_pk_bf16_f32 v{t3}, v{t2}, v{t2}")
    k.e(f"v_and_b32 v{t3}, 0xffff0000, v{t3}")
    k.e(f"v_sub_f32 v{t2}, v{t2}, v{t3}")
    k.e(f"v_mov_b32 v{m}, 0")
    k.e("s_mov_b64 exec, s[62:63]")
    k.e(f"v_cvt_pk_bf16_f32 v{q6}, v{t1}, v{t3}")
    k.e(f"v_cvt_pk_bf16_f32 v{q7}, v{t2}, v{m}")
    k.e("s_mov_b64 exec, -1")

def poll_list(label, voff, soff, vtmp, first_issued):
    o = ["s_cmp_lg_u32 s6, 0", f"s_cbranch_scc1 {label}_done", "s_mov_b32 s58, 0", f"{label}:",
         f"buffer_load_dwordx2 v[{vtmp}:{vtmp+1}], v{voff}, s[36:39], {soff} offen sc1",
         "s_waitcnt vmcnt(0)", f"v_cmp_eq_u64 vcc, s[56:57], v[{vtmp}:{vtmp+1}]", "s_add_u32 s58, s58, 1",
         f"s_cmp_ge_u32 s58, {SPIN_MAX}", f"s_cbranch_scc1 {label}_done", "s_cmp_eq_u64 vcc, exec", f"s_cbranch_scc1 {label}_done",
         "s_sleep 1", f"s_branch {label}", f"{label}_done:", "s_barrier"]
    return o

def gen():
    k = K()
    k.lab(KNAME)
    k.e("s_cmp_ge_u32 s2, 256")
    k.e("s_cbranch_scc1 L_end")
    k.e("s_load_dwordx16 s[8:23], s[0:1], 0")
    k.e("s_load_dwordx4 s[24:27], s[0:1], 64")
    k.e("v_and_b32 v1, 63, v0")
    k.e("v_lshrrev_b32 v2, 6, v0")
    k.e("s_and_b32 s69, s2, 7")
    k.e("s_lshr_b32 s70, s2, 3")
    k.e("v_readfirstlane_b32 s6, v2")
    k.e("s_lshr_b32 s3, s69, 1")
    k.e("s_lshl_b32 s3, s3, 3")
    k.e("s_and_b32 s4, s70, 7")
    k.e("s_add_u32 s3, s3, s4")
    k.e("s_and_b32 s5, s69, 1")
    k.e("s_lshl_b32 s5, s5, 2")
    k.e("s_lshr_b32 s4, s70, 3")
    k.e("s_add_u32 s5, s5, s4")
    k.stamp()
    k.e("s_and_b32 s7, s3, 15")
    k.e("v_lshlrev_b32 v2, 4, v1")
    XS, WKV, WQ, WOB = 0, 98304, 32768, 40960
    k.e("v_lshrrev_b32 v3, 3, v1")
    k.e("v_lshrrev_b32 v4, 1, v3")
    k.e("v_and_b32 v5, 7, v1")
    k.e("v_xor_b32 v4, v4, v5")
    k.e("v_lshlrev_b32 v4, 4, v4")
    k.e("v_mul_u32_u24 v3, 896, v3")
    k.e("v_add_u32 v3, v3, v4")
    k.e("v_xor_b32 v4, 64, v3")
    k.e("v_lshrrev_b32 v5, 3, v1")
    k.e("v_bfe_u32 v6, v1, 2, 1")
    k.e("v_bfe_u32 v7, v1, 4, 1")
    k.e("v_xor_b32 v6, v6, v7")
    k.e("v_mul_u32_u24 v6, 896, v6")
    k.e("v_mul_u32_u24 v5, 2688, v5")
    k.e("v_add_u32 v5, v5, v6")
    k.e("v_and_b32 v6, 3, v1")
    k.e("v_lshlrev_b32 v6, 4, v6")
    k.e("v_add_u32 v5, v5, v6")
    k.e("v_add_u32 v5, 896, v5")
    k.e("v_lshrrev_b32 v7, 2, v1")
    k.e("v_mul_u32_u24 v7, 2688, v7")
    k.e("v_add_u32 v6, v7, v6")
    k.e("s_lshl_b32 s40, s6, 12")
    k.e("s_lshl_b32 s61, s6, 10")
    k.e("s_lshl_b32 s41, s5, 3")
    k.e("s_add_u32 s41, s41, s6")
    k.e("s_mul_i32 s42, s41, 28672")
    k.e("s_mul_i32 s43, s7, 56")
    k.e("s_mul_i32 s50, s6, 21504")
    k.e("s_add_u32 s50, s50, s43")
    k.e("s_mul_i32 s51, s6, 172032")
    k.e("s_add_u32 s51, s51, s43")
    k.e("s_and_b32 s71, s70, 7")
    k.e("s_lshr_b32 s68, s70, 3")
    k.e("s_lshl_b32 s68, s68, 1")
    k.e("s_add_u32 s71, s71, s68")
    for _ in range(2):
        k.e("s_cmp_ge_u32 s71, 7")
        k.e("s_cselect_b32 s68, 7, 0")
        k.e("s_sub_u32 s71, s71, s68")
    k.e("s_mov_b32 s59, s71")
    k.e("s_mov_b32 s52, s71")
    k.e("s_waitcnt lgkmcnt(0)")
    k.stamp("pro")
    srd(k, 28, "s8", "s9", X_BYTES)
    k.e("s_cmp_ge_u32 s3, 16")
    k.e("s_cselect_b32 s32, s16, s10")
    k.e("s_cselect_b32 s33, s17, s11")
    k.e(f"s_mov_b32 s34, {W_BYTES}")
    k.e("s_mov_b32 s35, 0x20000")
    k.e("s_cselect_b32 s60, 0, 0x80000000")
    k.e(f"s_xor_b32 s60, s60, {hex(f2u(LOG2E))}")
    def w_dma():
        return ["s_lshl_b32 s64, s52, 13", "s_add_u32 s64, s64, s61", f"s_add_u32 m0, s64, {WKV}", "s_mul_i32 s68, s52, 172032",
                "s_add_u32 s68, s68, s50", "buffer_load_dwordx4 v5, s[32:35], s68 offen lds"] + cyc7("s52")
    def x_dma(i):
        sl = i % 3
        p = []
        for q in range(4):
            o = []
            if q == 0: o += [f"s_add_u32 m0, s40, {XS + sl*32768}", "s_lshl_b32 s65, s71, 7", "s_add_u32 s65, s65, s42"]
            else: o += [f"s_add_u32 m0, s40, {XS + sl*32768}", "s_add_u32 s65, s65, 6144"]
            o += [f"buffer_load_dwordx4 v{3 + (q&1)}, s[28:31], s65 offen offset:{q*1024} lds"]
            if q == 3: o += cyc7("s71")
            p.append(o)
        return p
    k.ex(w_dma())
    for p in x_dma(0): k.ex(p)
    k.ex(w_dma())
    k.e("s_barrier")
    srd(k, 36, "s26", "s27", WS_USED)
    srd(k, 52 + 20, "s24", "s25", 256)
    k.e("s_or_b32 s58, s2, s6")
    k.e("s_cmp_lg_u32 s58, 0")
    k.e("s_cbranch_scc1 L_nononce")
    k.e("s_memrealtime s[56:57]")
    k.e("s_waitcnt lgkmcnt(0)")
    k.e("s_or_b32 s56, s56, 1")
    k.e("v_mov_b32 v8, s56")
    k.e("v_mov_b32 v9, s57")
    k.e("v_mov_b32 v10, 0")
    k.e("s_mov_b64 exec, 1")
    k.e("buffer_store_dwordx2 v[8:9], v10, s[72:75], 0 offen sc1")
    k.e("s_mov_b64 exec, -1")
    k.lab("L_nononce")
    k.ex(w_dma())
    for p in x_dma(1): k.ex(p)
    srd(k, 44, "s20", "s21", 896)
    k.e("v_lshlrev_b32 v8, 1, v0")
    k.e("buffer_load_ushort v216, v8, s[44:47], 0 offen")
    k.stamp("pro")
    k.e("v_and_b32 v16, 31, v1")
    k.e("v_bfe_u32 v17, v1, 1, 3")
    k.e("v_lshrrev_b32 v18, 5, v1")
    k.e("v_lshlrev_b32 v19, 2, v18")
    k.e("v_xor_b32 v17, v17, v19")
    k.e("v_lshlrev_b32 v17, 4, v17")
    k.e("v_lshlrev_b32 v16, 7, v16")
    k.e("v_add_u32 v16, v16, v17")
    k.e("v_add_u32 v8, s40, v16")
    for f in (1, 2, 3): k.e(f"v_xor_b32 v{8+f}, {16*f}, v8")
    for f in range(4): k.e(f"v_add_u32 v{12+f}, 0x10000, v{8+f}")
    k.e("v_lshlrev_b32 v16, 5, v18")
    k.e("v_bfe_u32 v17, v1, 2, 2")
    k.e("v_add_u32 v16, v16, v17")
    k.e("v_bfe_u32 v19, v1, 4, 1")
    k.e("v_lshlrev_b32 v19, 5, v19")
    k.e("v_and_b32 v20, 3, v1")
    k.e("v_lshlrev_b32 v20, 3, v20")
    k.e("v_add_u32 v19, v19, v20")
    k.e("v_lshlrev_b32 v20, 7, v16")
    k.e("v_add_u32 v20, v20, v19")
    k.e("v_bfe_u32 v21, v1, 3, 1")
    k.e("v_lshlrev_b32 v21, 6, v21")
    k.e("v_add_u32 v20, v20, v21")
    k.e(f"v_add_u32 v232, {WKV}, v20")
    k.e("v_xor_b32 v233, 64, v232")
    k.e("v_lshlrev_b32 v20, 6, v16")
    k.e("v_add_u32 v20, v20, v19")
    k.e(f"v_add_u32 v234, {WQ}, v20")
    k.e("v_lshlrev_b32 v217, 6, v0")
    k.e(f"v_add_u32 v217, {WQ + 56}, v217")
    k.e("s_mov_b32 s62, 0")
    k.e("s_mov_b32 s63, -1")
    k.e("v_mov_b32 v235, 0")
    if "notlb" not in EXP:
        k.e("s_lshl_b32 s64, s3, 18"); k.e("s_lshl_b32 s66, s5, 15"); k.e("s_add_u32 s64, s64, s66")
        k.e("s_lshl_b32 s66, s41, 16"); k.e(f"s_add_u32 s66, s66, {OF_OFF}")
        k.e("s_and_b32 s67, s6, 3")
        k.e("s_cmp_eq_u32 s67, 1"); k.e("s_cselect_b32 s64, s66, s64")
        k.e("s_cmp_eq_u32 s67, 2"); k.e(f"s_cselect_b32 s64, {FL1_OFF}, s64")
        k.e("s_lshl_b32 s66, s69, 19"); k.e(f"s_add_u32 s66, s66, {OF_OFF}")
        k.e("s_cmp_eq_u32 s67, 3"); k.e("s_cselect_b32 s64, s66, s64")
        k.e("buffer_load_dword v219, v235, s[36:39], s64 offen")
        k.e("s_mul_i32 s53, s69, 229376")
        srd(k, 64, "s22", "s23", OUT_BYTES)
        k.e("buffer_load_dword v219, v235, s[64:67], s53 offen")
    k.e("s_lshr_b32 s7, s6, 1")
    k.e("s_and_b32 s96, s6, 1")
    k.e("s_lshl_b32 s64, s96, 14")
    k.e("v_add_u32 v244, s64, v2")
    k.e("v_add_u32 v245, s40, v2")
    k.e("s_lshl_b32 s66, s7, 12")
    k.e("s_add_u32 s66, s66, 98304")
    k.e("v_add_u32 v248, s66, v2")
    k.e("v_and_b32 v249, 7, v1")
    k.e("v_lshlrev_b32 v249, 3, v249")
    k.e("s_lshl_b32 s97, s3, 7")
    k.e(f"s_add_u32 s97, s97, {FL1_OFF}")
    k.e("s_lshl_b32 s98, s3, 18")
    k.e("s_add_u32 s98, s98, s40")
    k.e("s_add_u32 s99, s5, 1")
    k.e("s_mov_b32 s49, 0")
    k.e("s_lshl_b32 s54, s69, 2")
    k.e("s_and_b32 s55, s70, 3")
    k.e("s_add_u32 s54, s54, s55")
    k.e("s_lshr_b32 s55, s70, 2")
    k.e("v_lshrrev_b32 v251, 3, v1")
    k.e("v_bfe_u32 v16, v251, 1, 1")
    k.e("v_lshlrev_b32 v16, 2, v16")
    k.e("v_and_b32 v17, 7, v1")
    k.e("v_xor_b32 v16, v16, v17")
    k.e("v_lshlrev_b32 v16, 4, v16")
    k.e("v_mul_u32_u24 v251, 896, v251")
    k.e("v_add_u32 v251, v251, v16")
    k.e("s_mul_i32 s100, s55, 112")
    k.e("s_mul_i32 s101, s6, 7168")
    k.e("s_add_u32 s100, s100, s101")
    k.e("s_mov_b32 s101, s100")
    k.e(f"s_add_u32 s43, s61, {WOB + 7*8192}")
    srd(k, 44, "s18", "s19", WO_BYTES)
    k.e("s_lshl_b32 s48, s3, 18")
    k.e("s_lshl_b32 s53, s5, 15")
    k.e("s_add_u32 s48, s48, s53")
    k.e("s_add_u32 s48, s48, s40")
    k.e("s_add_u32 s67, s40, 65536")
    k.e("v_add_u32 v238, s67, v2")
    k.e("s_lshl_b32 s66, s6, 11")
    k.e("s_add_u32 s66, s66, 98304")
    k.e("v_add_u32 v218, s66, v2")
    k.e("v_and_b32 v240, 31, v1")
    k.e("v_mov_b32 v239, 0x3f803f80")
    k.e("v_cmp_eq_u32 vcc, 28, v240")
    k.nop(2)
    k.e("v_cndmask_b32 v239, 0, v239, vcc")
    XR, QA, KA, VA, WF = 64, 16, 32, 48, 176
    KF, VF, QF = 200, 208, 220
    k.stamp("pro")
    WF = 176
    def R(c, vm):
        sl = c % 3
        k.e(f"s_waitcnt vmcnt({vm})")
        k.stamp("pro")
        xb = 8 if sl < 2 else 12
        xo = (sl % 2) * 32768
        for f in range(4):
            k.e(f"ds_read_b128 {vr(XR+(c*4+f)*4)}, v{xb+f} offset:{xo}")
        pieces = []
        if c + 3 <= 6: pieces += x_dma(c + 3)
        if c == 4:
            for n in range(4):
                pieces.append([f"s_add_u32 m0, s40, {WQ + n*1024}", f"s_add_u32 s68, s51, {n*16*2688}", "buffer_load_dwordx4 v6, s[32:35], s68 offen lds"])
            pieces.append(["buffer_load_dwordx2 v[236:237], v235, s[72:75], 0 offen sc1"])
        return pieces
    def wbase():
        k.e("s_lshl_b32 s64, s59, 13")
        k.e("v_add_u32 v242, s64, v232")
        k.e("v_add_u32 v243, s64, v233")
        k.ex(cyc7("s59"))
    def treads(g):
        c, f = divmod(g, 4)
        if f == 0:
            k.e("s_lshl_b32 s64, s59, 13")
            k.e(f"v_add_u32 v{242 + 4*(c&1)}, s64, v232")
            k.e(f"v_add_u32 v{243 + 4*(c&1)}, s64, v233")
            k.ex(cyc7("s59"))
        for seg in range(2):
            for s_ in range(2):
                r = WF + (g % 3)*8 + seg*4 + s_*2
                k.e(f"ds_read_b64_tr_b16 v[{r}:{r+1}], v{242 + 4*(c&1) + seg} offset:{(8*f+4*s_)*128}")
    waits = [6, 6, 5, 5, 5, 5, 5]
    if "notlb" not in EXP: waits = [8, 8, 5, 5, 5, 5, 5]
    for c in range(7):
        sl = c % 3
        k.e(f"s_waitcnt vmcnt({waits[c]})")
        k.stamp("pro")
        if c <= 5: k.e("s_barrier")
        xb = 8 if sl < 2 else 12
        xo = (sl % 2) * 32768
        if c == 0: treads(0)
        for f in range(4):
            k.e(f"ds_read_b128 {vr(XR+(c*4+f)*4)}, v{xb+f} offset:{xo}")
        if c == 0: treads(1)
        pend = []
        if c <= 3: pend.append(w_dma())
        if c + 2 <= 6: pend += x_dma(c + 2)
        if c == 5:
            for n in range(4):
                pend.append([f"s_add_u32 m0, s40, {WQ + n*1024}", f"s_add_u32 s68, s51, {n*16*2688}", "buffer_load_dwordx4 v6, s[32:35], s68 offen lds"])
        if c == 4:
            pend.append(["buffer_load_dwordx2 v[236:237], v235, s[72:75], 0 offen sc1"])
        n = len(pend); cuts = [(n*i)//4 for i in range(5)]
        per = [pend[cuts[i]:cuts[i+1]] for i in range(4)]
        for p in per[0]: k.ex(p)
        for f in range(4):
            g = c*4 + f
            if g + 2 < 28: treads(g + 2)
            if f == 0:
                later = (4 + 4) if c == 0 else (4 if g + 2 < 28 else 0)
            else:
                later = (4 if g + 1 < 28 else 0) + (4 if g + 2 < 28 else 0)
            k.e(f"s_waitcnt lgkmcnt({later})")
            x = XR + g*4; w = WF + (g % 3)*8
            z = "0" if g == 0 else None
            k.e(mfma(KA, w, x, z))
            k.e(mfma(VA, x, w+4, z))
            if f < 3:
                for p in per[f + 1]: k.ex(p)
    k.stamp("q2")
    k.e("s_waitcnt vmcnt(0)")
    k.e("ds_write_b16 v217, v216")
    k.stamp("all" if "q2" not in STAMPSET else "q2")
    def qreads(n):
        c, f = divmod(n, 4)
        if f == 0:
            k.e("s_lshl_b32 s64, s59, 12")
            k.e(f"v_add_u32 v{242 + 4*(c&1)}, s64, v234")
            k.ex(cyc7("s59"))
        for s_ in range(2):
            r = WF + (n & 3)*4 + s_*2
            k.e(f"ds_read_b64_tr_b16 v[{r}:{r+1}], v{242 + 4*(c&1)} offset:{(8*f + 4*s_)*64}")
    k.e("s_mov_b32 s58, 0")
    k.lab("L_nonce")
    k.e("v_readfirstlane_b32 s56, v236")
    k.e("v_readfirstlane_b32 s57, v237")
    k.e("s_add_u32 s58, s58, 1")
    k.e(f"s_cmp_ge_u32 s58, {SPIN_MAX}")
    k.e("s_cbranch_scc1 L_nonce_ok")
    k.e("s_cmp_lg_u32 s56, 0")
    k.e("s_cbranch_scc1 L_nonce_ok")
    k.e("buffer_load_dwordx2 v[236:237], v235, s[72:75], 0 offen sc1")
    k.e("s_waitcnt vmcnt(0)")
    k.e("s_branch L_nonce")
    k.lab("L_nonce_ok")
    k.e("s_waitcnt lgkmcnt(0)")
    k.e("s_barrier")
    k.stamp("q2")
    qreads(0); qreads(1); qreads(2)
    srd(k, 72, "s12", "s13", WO_BYTES)
    k.e("s_mov_b64 exec, s[62:63]")
    for i in (12,13,14): k.e(f"v_mov_b32 v{KA+i}, 1.0")
    k.e(f"v_mov_b32 v{KA+15}, 0")
    k.e("s_mov_b64 exec, -1")
    epi = []
    epi += [[f"v_cvt_pk_bf16_f32 v{KF+i}, v{KA+2*i}, v{KA+2*i+1}" for i in range(8)]]
    epi += [[f"buffer_store_dwordx4 {vr(KF)}, v2, s[36:39], s48 offen sc1", f"buffer_store_dwordx4 {vr(KF+4)}, v2, s[36:39], s48 offen offset:1024 sc1"] +
            [f"v_cvt_pk_bf16_f32 v{VF+i}, v{VA+2*i}, v{VA+2*i+1}" for i in range(8)]]
    epi += [["s_mov_b32 s64, 0xf0000000", "s_mov_b32 s65, 0xf0000000", "s_mov_b64 exec, s[64:65]"] + [f"v_mov_b32 v{VF+i}, v239" for i in range(8)] + ["s_mov_b64 exec, -1",
            f"buffer_store_dwordx4 {vr(VF)}, v2, s[36:39], s48 offen offset:2048 sc1", f"buffer_store_dwordx4 {vr(VF+4)}, v2, s[36:39], s48 offen offset:3072 sc1"]]
    epi += [[f"ds_write_b128 v238, {vr(r)} offset:{i*1024}" for i, r in enumerate((KF, KF+4, VF, VF+4))]]
    for n in range(28):
        if n + 3 < 28: qreads(n + 3)
        later = 2 * min(3, 27 - n)
        if n in (4, 5, 6): later += 4
        k.e(f"s_waitcnt lgkmcnt({later})")
        k.e(mfma(QA, WF + (n & 3)*4, XR + n*4, "0" if n == 0 else None))
        if n < len(epi):
            blk = epi[n]
            if "nostore" in EXP: blk = [x for x in blk if not x.startswith("buffer_store")]
            if "nodsw" in EXP: blk = [x for x in blk if not x.startswith("ds_write")]
            k.ex(blk)
        if n in (5, 13): k.stamp("q2")
    k.stamp("all" if "q2" not in STAMPSET else "q2")
    QR, OA, OB, S0, S1, PR, KR, VR, ST = 16, 32, 48, 64, 80, 96, 104, 120, 136
    GS = 250
    k.e(f"s_mov_b32 s64, {hex(f2u(CSCALE))}")
    k.e("v_mov_b32 v6, v244")
    k.e("v_mov_b32 v7, v245")
    k.e("v_add_u32 v3, 65536, v244")
    k.e("v_mov_b32 v4, v244")
    k.e("v_mov_b32 v5, v245")
    k.e("v_mov_b32 v9, v248")
    k.e("v_mov_b32 v10, v249")
    k.e("v_mov_b32 v11, v251")
    k.nop(3)
    k.e(f"v_mov_b32 v12, v{QA+12}")
    k.e(f"v_mov_b32 v{GS}, v{QA+12}")
    for i in range(12): k.e(f"v_mul_f32 v{QA+i}, s64, v{QA+i}")
    k.e(f"v_permlane32_swap_b32 v12, v{GS}")
    for i in range(6): k.e(f"v_cvt_pk_bf16_f32 v{QF+i}, v{QA+2*i}, v{QA+2*i+1}")
    k.e(f"v_mov_b32 v{QF+6}, 0")
    k.e(f"v_mov_b32 v{QF+7}, 0")
    k.e("s_mov_b32 exec_hi, 0")
    k.e(f"v_mul_f32 v{QA+12}, s64, v{QA+12}")
    k.e(f"v_mul_f32 v{QA+13}, s64, v{QA+13}")
    k.e(f"v_mul_f32 v{QA+14}, s64, v{QA+14}")
    k.e(f"v_mul_f32 v{QA+15}, s64, v{QA+15}")
    k.e(f"v_cvt_pk_bf16_f32 v{QF+6}, v{QA+12}, v{QA+13}")
    k.e(f"v_cvt_pk_bf16_f32 v{QF+7}, v{QA+14}, v{QA+15}")
    k.e("s_mov_b64 exec, -1")
    SS = 96
    k.e(f"v_mul_f32 v{GS}, s60, v{GS}")
    k.e(f"v_exp_f32 v{GS}, v{GS}")
    k.e(mfma(SS, KF, QF, "0"))
    k.e(mfma(SS, KF+4, QF+4))
    k.e(f"v_add_f32 v{GS}, 1.0, v{GS}")
    k.e(f"v_rcp_f32 v{GS}, v{GS}")
    k.e(f"ds_write_b128 v218, {vr(QF)}")
    k.nop(9)
    k.e(f"v_max3_f32 v12, v{SS}, v{SS+1}, v{SS+2}")
    k.e(f"v_max3_f32 v13, v{SS+3}, v{SS+4}, v{SS+5}")
    k.e(f"v_max3_f32 v12, v12, v{SS+6}, v{SS+7}")
    k.e(f"v_max3_f32 v13, v13, v{SS+8}, v{SS+9}")
    k.e(f"v_max3_f32 v12, v12, v{SS+10}, v{SS+11}")
    k.e(f"v_max3_f32 v13, v13, v{SS+12}, v{SS+13}")
    k.e(f"v_max3_f32 v12, v12, v{SS+14}, v{SS+15}")
    k.e("v_max_f32 v12, v12, v13")
    k.e("v_mov_b32 v13, v12")
    k.nop(2)
    k.e("v_permlane32_swap_b32 v12, v13")
    k.nop(1)
    k.e("v_max_f32 v12, v12, v13")
    shift_split(k, 12, 13, 14, 15, QF+6, QF+7)
    k.e(f"ds_write_b128 v218, {vr(QF+4)} offset:1024")
    k.e("s_waitcnt vmcnt(0) lgkmcnt(0)")
    k.e("s_barrier")
    k.e("s_cmp_lg_u32 s6, 0")
    k.e("s_cbranch_scc1 L_noflag1")
    k.e("s_lshl_b32 s66, s3, 7")
    k.e("s_lshl_b32 s67, s5, 3")
    k.e("s_add_u32 s66, s66, s67")
    k.e(f"s_add_u32 s66, s66, {FL1_OFF}")
    k.e("v_mov_b32 v236, s56")
    k.e("v_mov_b32 v237, s57")
    k.e("s_mov_b64 exec, 1")
    k.e("buffer_store_dwordx2 v[236:237], v235, s[36:39], s66 offen sc1")
    k.e("s_mov_b64 exec, -1")
    k.lab("L_noflag1")
    k.stamp("all" if "q2" not in STAMPSET else "q2")
    k.e(f"ds_read_b128 {vr(QR)}, v9")
    k.e(f"ds_read_b128 {vr(QR+4)}, v9 offset:1024")
    k.e(f"ds_read_b128 {vr(KR)}, v3")
    k.e(f"ds_read_b128 {vr(KR+4)}, v3 offset:1024")
    k.e(f"ds_read_b128 {vr(QR+8)}, v9 offset:2048")
    k.e(f"ds_read_b128 {vr(QR+12)}, v9 offset:3072")
    k.e("s_waitcnt lgkmcnt(2)")
    k.e(mfma(S0, KR, QR, "0"))
    k.e(mfma(S0, KR+4, QR+4))
    k.e("s_waitcnt lgkmcnt(0)")
    k.nop(11)
    def Lload():
        if "noload" in EXP: return ["s_add_u32 s99, s99, 1"]
        return ["s_and_b32 s53, s99, 7", "s_lshl_b32 s53, s53, 15", "s_add_u32 s53, s53, s98", "s_add_u32 s99, s99, 1"] + \
               [f"buffer_load_dwordx4 {vr(ST+4*i)}, v2, s[36:39], s53 offen offset:{i*1024} sc1" for i in range(4)]
    def slot(Sbuf, pv, sq, extra, pvmode="acc"):
        e = [f"v_exp_f32 v{Sbuf+i}, v{Sbuf+i}" for i in range(16)]
        c = [f"v_cvt_pk_bf16_f32 v{PR+i}, v{Sbuf+2*i}, v{Sbuf+2*i+1}" for i in range(8)]
        O, V = pv; Sd, Kb, Qb = sq
        mPV0 = mfma(O, V, PR, "0" if pvmode == "zero" else None); mPV1 = mfma(O, V+4, PR+4)
        if pvmode == "skip": mPV0 = "s_nop 0"; mPV1 = "s_nop 0"
        mS0 = mfma(Sd, Kb, Qb, "0"); mS1 = mfma(Sd, Kb+4, Qb+4)
        seq = [mPV0, e[0], e[1], e[2], c[0], e[3], e[4], mS0, c[1], e[5], e[6], e[7], c[2], e[8], mS1, e[9], c[3],
               e[10], e[11], e[12], mPV1, e[13], c[4], e[14], c[5], e[15], c[6], c[7]]
        for pos, x in enumerate(seq):
            k.ex(extra.get(pos, []))
            k.e(x)
    def bdma():
        if "nowo" in EXP: return []
        return ["s_mov_b32 m0, s43", "s_add_u32 s43, s43, 8192", "buffer_load_dwordx4 v11, s[44:47], s101 offen lds", f"s_add_u32 s101, s101, {8*7168}"]
    def wr(i):
        if "nowrite" in EXP: return []
        return [f"ds_write_b128 v5, {vr(ST+4*i)} offset:{i*1024}"]
    def Laddr(): return ["s_and_b32 s53, s99, 7", "s_lshl_b32 s53, s53, 15", "s_add_u32 s53, s53, s98", "s_add_u32 s99, s99, 1"]
    def Lp(i):
        if "noload" in EXP: return []
        return [f"buffer_load_dwordx4 {vr(ST+4*i)}, v2, s[36:39], s53 offen offset:{i*1024} sc1"]
    def body(kind):
        for t in range(4):
            kb = KR + (t & 1) * 8; kn = KR + ((t + 1) & 1) * 8
            vb = VR + (t & 1) * 8; vp = VR + ((t + 1) & 1) * 8
            exA = {}; exB = {0: ["s_waitcnt lgkmcnt(0)"]}
            def add(d, p, l): d.setdefault(p, []); d[p] = d[p] + l
            if t < 3:
                rk = [f"ds_read_b128 {vr(kn)}, v3 offset:{(t+1)*4096}", f"ds_read_b128 {vr(kn+4)}, v3 offset:{(t+1)*4096+1024}"]
            else:
                rk = [f"ds_read_b128 {vr(kn)}, v4", f"ds_read_b128 {vr(kn+4)}, v4 offset:1024"]
            rv = [f"ds_read_b128 {vr(vb)}, v3 offset:{t*4096+2048}", f"ds_read_b128 {vr(vb+4)}, v3 offset:{t*4096+3072}"]
            late_k = (kind == "first" and t == 3)
            if kind == "first" and t == 2:
                add(exA, 0, k.stamp_list("loop") + poll_list("L_p1", 10, "s97", 152, True) + k.stamp_list("loop") + Laddr() + Lp(0))
                add(exA, 10, Lp(1)); add(exA, 20, Lp(2)); add(exB, 6, Lp(3))
            if late_k:
                exB[0] = ["s_waitcnt vmcnt(0) lgkmcnt(0)"] + sum([wr(i) for i in range(4)], []) + ["s_waitcnt lgkmcnt(0)", "s_barrier"] + rk
                add(exB, 2, bdma()); add(exB, 4, bdma())
                add(exB, 7, ["s_waitcnt lgkmcnt(0)"])
                add(exB, 9, Laddr() + Lp(0)); add(exB, 13, Lp(1)); add(exB, 17, Lp(2)); add(exB, 21, Lp(3)); add(exB, 25, bdma())
                add(exA, 5, [rv[0]]); add(exA, 8, [rv[1]])
            else:
                add(exA, 1, [rk[0]]); add(exA, 3, [rk[1]]); add(exA, 5, [rv[0]]); add(exA, 8, [rv[1]])
            if kind in ("mid", "c6"):
                m = kind == "mid"
                if t == 1:
                    add(exA, 12, ["s_waitcnt vmcnt(4)"] + wr(0))
                    add(exB, 4, ["s_waitcnt vmcnt(3)"] + wr(1))
                    if m: add(exB, 16, Laddr() + Lp(0))
                if t == 2:
                    add(exA, 12, [f"s_waitcnt vmcnt({3 if m else 2})"] + wr(2))
                    if m: add(exA, 20, Lp(1))
                    add(exB, 4, [f"s_waitcnt vmcnt({3 if m else 1})"] + wr(3))
                    if m: add(exB, 16, Lp(2))
                if t == 3:
                    add(exA, 0, ["s_waitcnt lgkmcnt(0)"] + ([] if "nobar" in EXP else ["s_barrier"]))
                    if m: add(exA, 16, Lp(3)); add(exB, 10, bdma())
                    if not m:
                        add(exA, 10, ["v_lshrrev_b32 v12, 3, v1", "v_lshlrev_b32 v12, 6, v12", "v_and_b32 v13, 7, v1", "v_add_u32 v12, v12, v13", "v_mul_u32_u24 v12, 896, v12",
                                      "buffer_load_dword v240, v12, s[72:75], s100 offen"])
                        add(exB, 10, ["buffer_load_dword v241, v12, s[72:75], s100 offen offset:124"])
            if t == 3 and kind != "last":
                add(exB, 20, ["v_mov_b32 v3, v4", "s_add_u32 s49, s49, 32768", "s_cmp_eq_u32 s49, 98304", "s_cselect_b32 s49, 0, s49"])
                add(exB, 22, ["v_add_u32 v4, s49, v6", "v_add_u32 v5, s49, v7"])
                if kind == "mid":
                    add(exB, 24, ["s_add_u32 s48, s48, 1"]); add(exB, 26, ["s_cmp_lt_u32 s48, 6"])
            fa = "skip" if (kind == "first" and t == 0) else "zero" if (kind == "first" and t == 1) else "acc"
            fb = "zero" if (kind == "first" and t == 0) else "acc"
            slot(S0, (OB, vp), (S1, kb, QR+8), exA, fa)
            slot(S1, (OA, vb), (S0, kn, QR), exB, fb)
    body("first")
    k.stamp("loop2")
    k.e("s_mov_b32 s48, 1")
    k.e(".p2align 6")
    k.lab("L_loop")
    body("mid")
    k.e("s_cbranch_scc1 L_loop")
    k.stamp("loop2")
    body("c6")
    k.stamp("loop2")
    body("last")
    k.stamp()
    k.nop(2)
    k.e(mfma(OB, VR+8, PR))
    k.e(mfma(OB, VR+12, PR+4))
    k.e("v_add_u32 v11, s40, v2")
    k.e("s_xor_b32 s29, s6, 1")
    k.e("s_lshl_b32 s29, s29, 12")
    k.e("v_add_u32 v12, s29, v2")
    k.e("s_lshl_b32 s29, s41, 16")
    k.e("s_lshl_b32 s30, s3, 11")
    k.e("s_add_u32 s29, s29, s30")
    k.e(f"s_add_u32 s29, s29, {OF_OFF}")
    k.e("s_barrier")
    k.nop(4)
    k.e("s_cmp_eq_u32 s96, 0")
    k.e("s_cbranch_scc0 L_x1")
    for i in range(4): k.e(f"ds_write_b128 v11, {vr(OB+4*i)} offset:{i*1024}")
    k.e("s_waitcnt lgkmcnt(0)")
    k.e("s_barrier")
    for i in range(4): k.e(f"ds_read_b128 {vr(S0+4*i)}, v12 offset:{i*1024}")
    for i in range(16):
        if i % 4 == 0: k.e(f"s_waitcnt lgkmcnt({3 - i//4})")
        k.e(f"v_add_f32 v{OA+i}, v{OA+i}, v{S0+i}")
    k.e("s_branch L_xd")
    k.lab("L_x1")
    for i in range(4): k.e(f"ds_write_b128 v11, {vr(OA+4*i)} offset:{i*1024}")
    k.e("s_waitcnt lgkmcnt(0)")
    k.e("s_barrier")
    for i in range(4): k.e(f"ds_read_b128 {vr(S0+4*i)}, v12 offset:{i*1024}")
    for i in range(16):
        if i % 4 == 0: k.e(f"s_waitcnt lgkmcnt({3 - i//4})")
        k.e(f"v_add_f32 v{OA+i}, v{OB+i}, v{S0+i}")
    k.lab("L_xd")
    k.e("s_mov_b32 s59, 0")
    k.lab("L_norm")
    k.e("s_mov_b32 s64, 0x203")
    k.e(f"v_mov_b32 v13, v{OA+12}")
    k.e(f"v_mov_b32 v14, v{OA+12}")
    k.e(f"v_maximum3_f32 v15, |v{OA}|, |v{OA+1}|, |v{OA+2}|")
    k.e(f"v_maximum3_f32 v15, |v{OA+3}|, |v{OA+4}|, v15")
    k.e("v_permlane32_swap_b32 v13, v14")
    for i in range(5, 15, 2): k.e(f"v_maximum3_f32 v15, |v{OA+i}|, |v{OA+i+1}|, v15")
    k.e("v_rcp_f32 v13, v14")
    k.e(f"v_maximum3_f32 v15, |v{OA+15}|, |v14|, v15")
    k.e(f"v_mul_f32 v13, v13, v{GS}")
    k.e("v_cmp_class_f32 vcc, v15, s64")
    for i in range(12): k.e(f"v_mul_f32 v{OA+i}, v{OA+i}, v13")
    k.e("s_cmp_lg_u32 s59, 0")
    k.e("s_cbranch_scc1 L_norm_ok")
    k.e("s_cmp_lg_u64 vcc, 0")
    k.e("s_cbranch_scc1 L_fallback")
    k.lab("L_norm_ok")
    for i in range(12, 16): k.e(f"v_mul_f32 v{OA+i}, v{OA+i}, v13")
    k.e("s_mov_b64 exec, s[62:63]")
    for i in (12,13,14,15): k.e(f"v_mov_b32 v{OA+i}, 0")
    k.e("s_mov_b64 exec, -1")
    for i in range(4): k.e(f"v_cvt_pk_bf16_f32 v{PR+i}, v{OA+2*i}, v{OA+2*i+1}")
    k.e(f"buffer_store_dwordx4 {vr(PR)}, v2, s[36:39], s29 offen sc1")
    for i in range(4, 8): k.e(f"v_cvt_pk_bf16_f32 v{PR+i}, v{OA+2*i}, v{OA+2*i+1}")
    k.e(f"buffer_store_dwordx4 {vr(PR+4)}, v2, s[36:39], s29 offen offset:1024 sc1")
    for n in range(7):
        k.e(f"s_add_u32 m0, s61, {WOB + n*8192}")
        k.e(f"s_add_u32 s53, s100, {n*8*7168}")
        k.e("buffer_load_dwordx4 v251, s[72:75], s53 offen lds")
    k.e("s_lshr_b32 s7, s6, 2")
    k.e("s_and_b32 s28, s6, 3")
    k.e("v_lshrrev_b32 v5, 5, v1")
    k.e("v_lshlrev_b32 v5, 2, v5")
    k.e("v_bfe_u32 v6, v1, 2, 2")
    k.e("v_add_u32 v5, v5, v6")
    k.e("v_lshlrev_b32 v5, 7, v5")
    k.e("v_bfe_u32 v7, v1, 4, 1")
    k.e("v_lshlrev_b32 v7, 1, v7")
    k.e("v_bfe_u32 v8, v1, 1, 1")
    k.e("v_add_u32 v7, v7, v8")
    k.e("v_bfe_u32 v8, v6, 1, 1")
    k.e("v_lshlrev_b32 v8, 2, v8")
    k.e("v_xor_b32 v7, v7, v8")
    k.e("v_lshlrev_b32 v7, 4, v7")
    k.e("v_add_u32 v5, v5, v7")
    k.e("v_and_b32 v7, 1, v1")
    k.e("v_lshlrev_b32 v7, 3, v7")
    k.e("v_add_u32 v5, v5, v7")
    k.e("v_xor_b32 v6, 64, v5")
    k.e("s_mul_i32 s29, s28, 28672")
    k.e(f"s_add_u32 s29, s29, {WOB}")
    k.e("v_add_u32 v5, s29, v5")
    k.e("v_add_u32 v6, s29, v6")
    k.e("v_mov_b32 v13, 0")
    k.e("v_and_b32 v10, 31, v1")
    k.e("v_lshlrev_b32 v11, 3, v10")
    k.e("s_lshr_b32 s66, s54, 2")
    k.e("s_lshl_b32 s66, s66, 8")
    k.e(f"s_add_u32 s66, s66, {FL2_OFF}")
    k.e("s_lshl_b32 s32, s54, 1")
    k.e("s_add_u32 s32, s32, s7")
    k.e("s_lshl_b32 s33, s32, 16")
    k.e("s_lshl_b32 s34, s28, 14")
    k.e("s_add_u32 s33, s33, s34")
    k.e(f"s_add_u32 s33, s33, {OF_OFF}")
    k.e("s_lshl_b32 s29, s7, 15")
    k.e("s_lshl_b32 s30, s28, 12")
    k.e("s_add_u32 s29, s29, s30")
    k.e("v_add_u32 v16, s29, v2")
    k.e("s_bfe_u32 s29, s6, 0x10001")
    k.e("s_and_b32 s30, s6, 1")
    k.e("s_lshl_b32 s31, s7, 15")
    k.e("s_lshl_b32 s34, s29, 14")
    k.e("s_add_u32 s31, s31, s34")
    k.e("s_lshl_b32 s34, s30, 11")
    k.e("s_add_u32 s31, s31, s34")
    k.e("v_add_u32 v17, s31, v2")
    k.e("v_mul_u32_u24 v18, 896, v10")
    k.e("v_lshrrev_b32 v12, 5, v1")
    k.e("v_lshlrev_b32 v12, 4, v12")
    k.e("v_add_u32 v18, v18, v12")
    k.e("s_lshl_b32 s31, s29, 6")
    k.e("s_lshl_b32 s34, s30, 5")
    k.e("s_add_u32 s31, s31, s34")
    k.e("v_add_u32 v12, s31, v12")
    k.e("v_cmp_gt_u32 vcc, 112, v12")
    k.e("s_mul_i32 s34, s55, 112")
    k.e("s_add_u32 s31, s31, s34")
    k.e("s_mul_i32 s34, s32, 28672")
    k.e("s_add_u32 s31, s31, s34")
    k.e("v_mov_b32 v19, 0x7fffffff")
    k.e("v_cndmask_b32 v18, v19, v18, vcc")
    srd(k, 48, "s22", "s23", OUT_BYTES)
    k.e("s_waitcnt vmcnt(7)")
    k.e("s_barrier")
    k.stamp()
    k.e("s_cmp_lg_u32 s6, 0")
    k.e("s_cbranch_scc1 L_noflag2")
    k.e("s_lshl_b32 s64, s5, 8")
    k.e("s_lshl_b32 s67, s3, 3")
    k.e("s_add_u32 s64, s64, s67")
    k.e(f"s_add_u32 s64, s64, {FL2_OFF}")
    k.e("v_mov_b32 v14, s56")
    k.e("v_mov_b32 v15, s57")
    k.e("s_mov_b64 exec, 1")
    k.e("buffer_store_dwordx2 v[14:15], v13, s[36:39], s64 offen sc1")
    k.e("s_mov_b64 exec, -1")
    k.lab("L_noflag2")
    k.e("s_waitcnt vmcnt(0)")
    k.ex(poll_list("L_p2", 11, "s66", 14, False))
    k.stamp()
    OR = 64
    for i in range(16):
        if i % 4 == 0 and i > 0: k.e("s_add_u32 s33, s33, 4096")
        k.e(f"buffer_load_dwordx4 {vr(OR+4*i)}, v2, s[36:39], s33 offen offset:{(i%4)*1024} sc1")
    A0, A1, WF3 = 32, 48, 128
    steps = [(hh, m) for hh in range(8) for m in range(2)]
    def treads3(hh, m, buf):
        for ct in range(2):
            for s_ in range(2):
                r = WF3 + buf*8 + ct*4 + s_*2
                k.e(f"ds_read_b64_tr_b16 v[{r}:{r+1}], v{5+ct} offset:{(hh*28 + 16*m + 8*s_) * 128}")
    treads3(*steps[0], 0)
    for i, (hh, m) in enumerate(steps):
        if i + 1 < len(steps):
            treads3(*steps[i+1], (i+1) & 1)
            k.e(f"s_waitcnt vmcnt({15-i}) lgkmcnt(4)")
        else:
            k.e(f"s_waitcnt vmcnt({15-i}) lgkmcnt(0)")
        w = WF3 + (i & 1)*8
        z = "0" if i == 0 else None
        k.e(mfma(A0, w, OR+4*i, z))
        k.e(mfma(A1, w+4, OR+4*i, z))
    k.stamp()
    k.e("s_barrier")
    k.nop(10)
    for q in range(4): k.e(f"ds_write_b128 v16, {vr(A0+4*q)} offset:{q*1024}")
    for q in range(4): k.e(f"ds_write_b128 v16, {vr(A1+4*q)} offset:{16384+q*1024}")
    k.e("s_waitcnt lgkmcnt(0)")
    k.e("s_barrier")
    for kq in range(4):
        for q in range(2):
            k.e(f"ds_read_b128 {vr(64+kq*8+q*4)}, v17 offset:{kq*4096+q*1024}")
    k.e("s_waitcnt lgkmcnt(4)")
    for i in range(8): k.e(f"v_add_f32 v{64+i}, v{64+i}, v{72+i}")
    k.e("s_waitcnt lgkmcnt(0)")
    for i in range(8): k.e(f"v_add_f32 v{80+i}, v{80+i}, v{88+i}")
    for i in range(8): k.e(f"v_add_f32 v{64+i}, v{64+i}, v{80+i}")
    for i in range(4): k.e(f"v_cvt_pk_bf16_f32 v{20+i}, v{64+2*i}, v{65+2*i}")
    k.nop(2)
    k.e("v_permlane32_swap_b32 v20, v22")
    k.e("v_permlane32_swap_b32 v21, v23")
    k.nop(1)
    k.e("buffer_store_dwordx4 v[20:23], v18, s[48:51], s31 offen")
    k.stamp()
    k.stamp_flush()
    k.lab("L_end")
    k.e("s_endpgm")
    k.lab("L_fallback")
    k.e("s_mov_b32 s59, 1")
    k.e("s_and_b32 s30, s6, 1")
    k.e("s_cmp_eq_u32 s30, 0")
    k.e("s_cbranch_scc1 L_fbq")
    for i in range(8): k.e(f"v_mov_b32 v{QR+i}, v{QR+8+i}")
    k.lab("L_fbq")
    k.e("s_mov_b64 exec, s[62:63]")
    k.e(f"v_mov_b32 v{QR+6}, 0")
    k.e(f"v_mov_b32 v{QR+7}, 0")
    k.e("s_mov_b64 exec, -1")
    k.e("v_mov_b32 v13, 0xff800000")
    k.e("s_lshl_b32 s64, s3, 18")
    k.e("s_mov_b32 s30, 0")
    k.lab("L_fb1")
    k.e(f"buffer_load_dwordx4 {vr(KR)}, v2, s[36:39], s64 offen sc1")
    k.e(f"buffer_load_dwordx4 {vr(KR+4)}, v2, s[36:39], s64 offen offset:1024 sc1")
    k.e("s_waitcnt vmcnt(0)")
    k.e(mfma(S0, KR, QR, "0"))
    k.e(mfma(S0, KR+4, QR+4))
    k.nop(12)
    for i in range(0, 16, 2): k.e(f"v_max3_f32 v13, v13, v{S0+i}, v{S0+i+1}")
    k.e("s_add_u32 s64, s64, 4096")
    k.e("s_add_u32 s30, s30, 1")
    k.e("s_cmp_lt_u32 s30, 64")
    k.e("s_cbranch_scc1 L_fb1")
    k.e("v_mov_b32 v14, v13")
    k.nop(2)
    k.e("v_permlane32_swap_b32 v13, v14")
    k.nop(1)
    k.e("v_max_f32 v13, v13, v14")
    shift_split(k, 13, 14, 15, 12, QR+6, QR+7)
    for i in range(16): k.e(f"v_mov_b32 v{OA+i}, 0")
    k.e("s_lshl_b32 s64, s3, 18")
    k.e("s_mov_b32 s30, 0")
    k.lab("L_fb2")
    k.e(f"buffer_load_dwordx4 {vr(KR)}, v2, s[36:39], s64 offen sc1")
    k.e(f"buffer_load_dwordx4 {vr(KR+4)}, v2, s[36:39], s64 offen offset:1024 sc1")
    k.e(f"buffer_load_dwordx4 {vr(VR)}, v2, s[36:39], s64 offen offset:2048 sc1")
    k.e(f"buffer_load_dwordx4 {vr(VR+4)}, v2, s[36:39], s64 offen offset:3072 sc1")
    k.e("s_waitcnt vmcnt(0)")
    k.e(mfma(S0, KR, QR, "0"))
    k.e(mfma(S0, KR+4, QR+4))
    k.nop(12)
    for i in range(16): k.e(f"v_exp_f32 v{S0+i}, v{S0+i}")
    k.nop(1)
    for i in range(8): k.e(f"v_cvt_pk_bf16_f32 v{PR+i}, v{S0+2*i}, v{S0+2*i+1}")
    k.nop(2)
    k.e(mfma(OA, VR, PR))
    k.e(mfma(OA, VR+4, PR+4))
    k.e("s_add_u32 s64, s64, 4096")
    k.e("s_add_u32 s30, s30, 1")
    k.e("s_cmp_lt_u32 s30, 64")
    k.e("s_cbranch_scc1 L_fb2")
    k.nop(12)
    k.e("s_branch L_norm")
    return k.l, dict(vgpr=252, sgpr=100, lds=163840, block=512)

def main(outpath):
    l, m = gen()
    o = [f"; gated_mix mha block, fused single launch (projection -> attention -> output projection, flag hand-offs). Generated by my own generator script.",
         f"; @launch grid=(256,1,1) block=({m['block']},1,1) lds={m['lds']}",
         '.amdgcn_target "amdgcn-amd-amdhsa--gfx950"', ".text", f".globl {KNAME}", ".p2align 8", f".type {KNAME},@function"] + l
    acc = (m['vgpr'] + 3) // 4 * 4
    o += ['.section .rodata,"a"', ".p2align 6", f".amdhsa_kernel {KNAME}", f"  .amdhsa_next_free_vgpr {m['vgpr']}", f"  .amdhsa_next_free_sgpr {m['sgpr']}",
          f"  .amdhsa_accum_offset {acc}", "  .amdhsa_group_segment_fixed_size 0", "  .amdhsa_kernarg_size 80",
          "  .amdhsa_user_sgpr_count 2", "  .amdhsa_user_sgpr_kernarg_segment_ptr 1", "  .amdhsa_system_sgpr_workgroup_id_x 1", ".end_amdhsa_kernel"]
    open(outpath, "w").write("\n".join(o) + "\n")

if __name__ == "__main__":
    main(sys.argv[1] if len(sys.argv) > 1 else f"cdna_kernels/{NAME}.s")
```

```python
import sys, math, os, struct

NAME = "gated_mix__mha_block__softmax_full_mha__prompt"
KNAME = NAME + "_kernel"
X_BYTES = 2048 * 448 * 2
W_BYTES = 448 * 1344 * 2
WO_BYTES = 448 * 448 * 2
OUT_BYTES = 2048 * 448 * 2
KV_OFF = 0
OF_OFF = 8 << 20
FL1_OFF = (12 << 20) + 8192
FL2_OFF = (12 << 20) + 16384
STAMP_OFF = 13 << 20
WS_USED = 14 << 20
LOG2E = math.log2(math.e)
CSCALE = (28 ** -0.5) * LOG2E
STAMP = int(os.environ.get("STAMP", "0"))
STAMPSET = os.environ.get("STAMPSET", "all").split(",")
EXP = os.environ.get("EXP", "").split(",")
SPIN_MAX = 1 << 18
def f2u(x): return struct.unpack('<I', struct.pack('<f', x))[0]

class K:
    def __init__(s): s.l = []; s.ns = 0
    def e(s, t):
        if t.endswith(":"): s.l.append(t)
        else: s.l.append("  " + t)
    def ex(s, ts):
        for t in ts: s.e(t)
    def lab(s, t): s.l.append(t + ":")
    def nop(s, n):
        while n > 0:
            k = min(n, 16); s.e(f"s_nop {k-1}"); n -= k
    def stamp(s, tag="all"):
        if not STAMP: return
        if tag not in STAMPSET and s.ns > 0: return
        i = s.ns; s.ns += 1
        assert i < 14
        if i == 0:
            s.e("s_memrealtime s[76:77]"); s.e("s_waitcnt lgkmcnt(0)"); s.e("s_mov_b32 s94, s76")
        s.e("s_memrealtime s[76:77]" if os.environ.get("STAMPRT") else "s_memtime s[76:77]"); s.e("s_waitcnt lgkmcnt(0)"); s.e(f"s_mov_b32 s{80+i}, s76")
    def stamp_list(s, tag):
        save = s.l; s.l = []
        s.stamp(tag)
        out = [x.strip() for x in s.l]; s.l = save
        return out
    def stamp_flush(s):
        if not STAMP: return
        if os.environ.get("STAMPDBG") == "multi":
            ia, ib = [int(x) for x in os.environ.get("STAMPIDX", "0,7").split(",")]
            base = int(os.environ.get("STAMPBASE", "248"))
            s.e(f"s_sub_u32 s78, s2, {base+1}"); s.e("s_cmp_ge_u32 s78, 7"); s.e("s_cbranch_scc1 L_nodbg"); s.e("s_cmp_lg_u32 s6, 0"); s.e("s_cbranch_scc1 L_nodbg")
            s.e("s_mov_b32 s72, s24"); s.e("s_mov_b32 s73, s25"); s.e("s_mov_b32 s74, 256"); s.e("s_mov_b32 s75, 0x20000")
            s.e("s_lshl_b32 s78, s78, 3"); s.e("s_add_u32 s78, s78, 8")
            s.e("v_mov_b32 v0, 0"); s.e("s_mov_b64 exec, 1")
            s.e(f"s_sub_u32 s79, s{80+ia}, s56"); s.e("v_mov_b32 v2, s79"); s.e(f"s_sub_u32 s79, s{80+ib}, s56"); s.e("v_mov_b32 v3, s79")
            s.e("buffer_store_dwordx2 v[2:3], v0, s[72:75], s78 offen")
            s.e("s_mov_b64 exec, -1")
            s.lab("L_nodbg")
            return
        if os.environ.get("STAMPDBG"):
            wgid = int(os.environ["STAMPDBG"])
            s.e(f"s_cmp_lg_u32 s2, {wgid}"); s.e("s_cbranch_scc1 L_nodbg"); s.e("s_cmp_lg_u32 s6, 0"); s.e("s_cbranch_scc1 L_nodbg")
            s.e("s_mov_b32 s72, s24"); s.e("s_mov_b32 s73, s25"); s.e("s_mov_b32 s74, 256"); s.e("s_mov_b32 s75, 0x20000")
            s.e("v_mov_b32 v0, 0"); s.e("s_mov_b64 exec, 1")
            for i in range(14):
                s.e(f"s_sub_u32 s78, s{80+i}, s80")
                s.e(f"v_mov_b32 v1, s78")
                s.e(f"buffer_store_dword v1, v0, s[72:75], 0 offen offset:{8+4*i}")
                s.e("s_nop 1")
            s.e("s_mov_b64 exec, -1")
            s.lab("L_nodbg")
            return
        s.e("s_lshl_b32 s78, s2, 3"); s.e("s_add_u32 s78, s78, s6"); s.e("s_lshl_b32 s78, s78, 6")
        s.e(f"s_add_u32 s78, s78, {STAMP_OFF}")
        s.e("s_memrealtime s[76:77]"); s.e("s_waitcnt lgkmcnt(0)"); s.e("s_mov_b32 s95, s76")
        s.e("v_mov_b32 v0, 0"); s.e("s_mov_b64 exec, 1")
        for i in range(16):
            s.e(f"v_mov_b32 v1, s{80+i}")
            s.e(f"buffer_store_dword v1, v0, s[36:39], s78 offen offset:{4*i}")
            s.e("s_nop 1")
        s.e("s_mov_b64 exec, -1")

def vr(b, n=4): return f"v[{b}:{b+n-1}]"
def mfma(d, a, b, c=None):
    cc = vr(d, 16) if c is None else c
    return f"v_mfma_f32_32x32x16_bf16 {vr(d,16)}, {vr(a)}, {vr(b)}, {cc}"
def srd(k, b, lo, hi, nbytes):
    k.e(f"s_mov_b32 s{b}, {lo}"); k.e(f"s_mov_b32 s{b+1}, {hi}"); k.e(f"s_mov_b32 s{b+2}, {nbytes}"); k.e(f"s_mov_b32 s{b+3}, 0x20000")
def cyc7(r): return [f"s_add_u32 {r}, {r}, 1", f"s_cmp_eq_u32 {r}, 7", f"s_cselect_b32 {r}, 0, {r}"]

def shift_split(k, m, t1, t2, t3, q6, q7):
    k.e(f"v_sub_f32 v{m}, 0, v{m}")
    k.e(f"v_cvt_pk_bf16_f32 v{t1}, v{m}, v{m}")
    k.e(f"v_and_b32 v{t1}, 0xffff0000, v{t1}")
    k.e(f"v_sub_f32 v{t2}, v{m}, v{t1}")
    k.e(f"v_cvt_pk_bf16_f32 v{t3}, v{t2}, v{t2}")
    k.e(f"v_and_b32 v{t3}, 0xffff0000, v{t3}")
    k.e(f"v_sub_f32 v{t2}, v{t2}, v{t3}")
    k.e(f"v_mov_b32 v{m}, 0")
    k.e("s_mov_b64 exec, s[62:63]")
    k.e(f"v_cvt_pk_bf16_f32 v{q6}, v{t1}, v{t3}")
    k.e(f"v_cvt_pk_bf16_f32 v{q7}, v{t2}, v{m}")
    k.e("s_mov_b64 exec, -1")

def poll_list(label, voff, soff, vtmp, first_issued):
    o = ["s_cmp_lg_u32 s6, 0", f"s_cbranch_scc1 {label}_done", "s_mov_b32 s58, 0", f"{label}:",
         f"buffer_load_dwordx2 v[{vtmp}:{vtmp+1}], v{voff}, s[36:39], {soff} offen sc1",
         "s_waitcnt vmcnt(0)", f"v_cmp_eq_u64 vcc, s[56:57], v[{vtmp}:{vtmp+1}]", "s_add_u32 s58, s58, 1",
         f"s_cmp_ge_u32 s58, {SPIN_MAX}", f"s_cbranch_scc1 {label}_done", "s_cmp_eq_u64 vcc, exec", f"s_cbranch_scc1 {label}_done",
         "s_sleep 1", f"s_branch {label}", f"{label}_done:", "s_barrier"]
    return o

def gen():
    k = K()
    k.lab(KNAME)
    k.e("s_cmp_ge_u32 s2, 256")
    k.e("s_cbranch_scc1 L_end")
    k.e("s_load_dwordx16 s[8:23], s[0:1], 0")
    k.e("s_load_dwordx4 s[24:27], s[0:1], 64")
    k.e("v_and_b32 v1, 63, v0")
    k.e("v_lshrrev_b32 v2, 6, v0")
    k.e("s_and_b32 s69, s2, 7")
    k.e("s_lshr_b32 s70, s2, 3")
    k.e("v_readfirstlane_b32 s6, v2")
    k.e("s_lshr_b32 s3, s69, 1")
    k.e("s_lshl_b32 s3, s3, 3")
    k.e("s_and_b32 s4, s70, 7")
    k.e("s_add_u32 s3, s3, s4")
    k.e("s_and_b32 s5, s69, 1")
    k.e("s_lshl_b32 s5, s5, 2")
    k.e("s_lshr_b32 s4, s70, 3")
    k.e("s_add_u32 s5, s5, s4")
    k.stamp()
    k.e("s_and_b32 s7, s3, 15")
    k.e("v_lshlrev_b32 v2, 4, v1")
    XS, WKV, WQ, WOB = 0, 98304, 32768, 40960
    k.e("v_lshrrev_b32 v3, 3, v1")
    k.e("v_lshrrev_b32 v4, 1, v3")
    k.e("v_and_b32 v5, 7, v1")
    k.e("v_xor_b32 v4, v4, v5")
    k.e("v_lshlrev_b32 v4, 4, v4")
    k.e("v_mul_u32_u24 v3, 896, v3")
    k.e("v_add_u32 v3, v3, v4")
    k.e("v_xor_b32 v4, 64, v3")
    k.e("v_lshrrev_b32 v5, 3, v1")
    k.e("v_bfe_u32 v6, v1, 2, 1")
    k.e("v_bfe_u32 v7, v1, 4, 1")
    k.e("v_xor_b32 v6, v6, v7")
    k.e("v_mul_u32_u24 v6, 896, v6")
    k.e("v_mul_u32_u24 v5, 2688, v5")
    k.e("v_add_u32 v5, v5, v6")
    k.e("v_and_b32 v6, 3, v1")
    k.e("v_lshlrev_b32 v6, 4, v6")
    k.e("v_add_u32 v5, v5, v6")
    k.e("v_add_u32 v5, 896, v5")
    k.e("v_lshrrev_b32 v7, 2, v1")
    k.e("v_mul_u32_u24 v7, 2688, v7")
    k.e("v_add_u32 v6, v7, v6")
    k.e("s_lshl_b32 s40, s6, 12")
    k.e("s_lshl_b32 s61, s6, 10")
    k.e("s_lshl_b32 s41, s5, 3")
    k.e("s_add_u32 s41, s41, s6")
    k.e("s_mul_i32 s42, s41, 28672")
    k.e("s_mul_i32 s43, s7, 56")
    k.e("s_mul_i32 s50, s6, 21504")
    k.e("s_add_u32 s50, s50, s43")
    k.e("s_mul_i32 s51, s6, 172032")
    k.e("s_add_u32 s51, s51, s43")
    k.e("s_and_b32 s71, s70, 7")
    k.e("s_lshr_b32 s68, s70, 3")
    k.e("s_lshl_b32 s68, s68, 1")
    k.e("s_add_u32 s71, s71, s68")
    for _ in range(2):
        k.e("s_cmp_ge_u32 s71, 7")
        k.e("s_cselect_b32 s68, 7, 0")
        k.e("s_sub_u32 s71, s71, s68")
    k.e("s_mov_b32 s59, s71")
    k.e("s_mov_b32 s52, s71")
    k.e("s_waitcnt lgkmcnt(0)")
    k.stamp("pro")
    srd(k, 28, "s8", "s9", X_BYTES)
    k.e("s_cmp_ge_u32 s3, 16")
    k.e("s_cselect_b32 s32, s16, s10")
    k.e("s_cselect_b32 s33, s17, s11")
    k.e(f"s_mov_b32 s34, {W_BYTES}")
    k.e("s_mov_b32 s35, 0x20000")
    k.e("s_cselect_b32 s60, 0, 0x80000000")
    k.e(f"s_xor_b32 s60, s60, {hex(f2u(LOG2E))}")
    def w_dma():
        return ["s_lshl_b32 s64, s52, 13", "s_add_u32 s64, s64, s61", f"s_add_u32 m0, s64, {WKV}", "s_mul_i32 s68, s52, 172032",
                "s_add_u32 s68, s68, s50", "buffer_load_dwordx4 v5, s[32:35], s68 offen lds"] + cyc7("s52")
    def x_dma(i):
        sl = i % 3
        p = []
        for q in range(4):
            o = []
            if q == 0: o += [f"s_add_u32 m0, s40, {XS + sl*32768}", "s_lshl_b32 s65, s71, 7", "s_add_u32 s65, s65, s42"]
            else: o += [f"s_add_u32 m0, s40, {XS + sl*32768}", "s_add_u32 s65, s65, 6144"]
            o += [f"buffer_load_dwordx4 v{3 + (q&1)}, s[28:31], s65 offen offset:{q*1024} lds"]
            if q == 3: o += cyc7("s71")
            p.append(o)
        return p
    k.ex(w_dma())
    for p in x_dma(0): k.ex(p)
    k.ex(w_dma())
    k.e("s_barrier")
    srd(k, 36, "s26", "s27", WS_USED)
    srd(k, 52 + 20, "s24", "s25", 256)
    k.e("s_or_b32 s58, s2, s6")
    k.e("s_cmp_lg_u32 s58, 0")
    k.e("s_cbranch_scc1 L_nononce")
    k.e("s_memrealtime s[56:57]")
    k.e("s_waitcnt lgkmcnt(0)")
    k.e("s_or_b32 s56, s56, 1")
    k.e("v_mov_b32 v8, s56")
    k.e("v_mov_b32 v9, s57")
    k.e("v_mov_b32 v10, 0")
    k.e("s_mov_b64 exec, 1")
    k.e("buffer_store_dwordx2 v[8:9], v10, s[72:75], 0 offen sc1")
    k.e("s_mov_b64 exec, -1")
    k.lab("L_nononce")
    k.ex(w_dma())
    for p in x_dma(1): k.ex(p)
    srd(k, 44, "s20", "s21", 896)
    k.e("v_lshlrev_b32 v8, 1, v0")
    k.e("buffer_load_ushort v216, v8, s[44:47], 0 offen")
    k.stamp("pro")
    k.e("v_and_b32 v16, 31, v1")
    k.e("v_bfe_u32 v17, v1, 1, 3")
    k.e("v_lshrrev_b32 v18, 5, v1")
    k.e("v_lshlrev_b32 v19, 2, v18")
    k.e("v_xor_b32 v17, v17, v19")
    k.e("v_lshlrev_b32 v17, 4, v17")
    k.e("v_lshlrev_b32 v16, 7, v16")
    k.e("v_add_u32 v16, v16, v17")
    k.e("v_add_u32 v8, s40, v16")
    for f in (1, 2, 3): k.e(f"v_xor_b32 v{8+f}, {16*f}, v8")
    for f in range(4): k.e(f"v_add_u32 v{12+f}, 0x10000, v{8+f}")
    k.e("v_lshlrev_b32 v16, 5, v18")
    k.e("v_bfe_u32 v17, v1, 2, 2")
    k.e("v_add_u32 v16, v16, v17")
    k.e("v_bfe_u32 v19, v1, 4, 1")
    k.e("v_lshlrev_b32 v19, 5, v19")
    k.e("v_and_b32 v20, 3, v1")
    k.e("v_lshlrev_b32 v20, 3, v20")
    k.e("v_add_u32 v19, v19, v20")
    k.e("v_lshlrev_b32 v20, 7, v16")
    k.e("v_add_u32 v20, v20, v19")
    k.e("v_bfe_u32 v21, v1, 3, 1")
    k.e("v_lshlrev_b32 v21, 6, v21")
    k.e("v_add_u32 v20, v20, v21")
    k.e(f"v_add_u32 v232, {WKV}, v20")
    k.e("v_xor_b32 v233, 64, v232")
    k.e("v_lshlrev_b32 v20, 6, v16")
    k.e("v_add_u32 v20, v20, v19")
    k.e(f"v_add_u32 v234, {WQ}, v20")
    k.e("v_lshlrev_b32 v217, 6, v0")
    k.e(f"v_add_u32 v217, {WQ + 56}, v217")
    k.e("s_mov_b32 s62, 0")
    k.e("s_mov_b32 s63, -1")
    k.e("v_mov_b32 v235, 0")
    if "notlb" not in EXP:
        k.e("s_lshl_b32 s64, s3, 18"); k.e("s_lshl_b32 s66, s5, 15"); k.e("s_add_u32 s64, s64, s66")
        k.e("s_lshl_b32 s66, s41, 16"); k.e(f"s_add_u32 s66, s66, {OF_OFF}")
        k.e("s_and_b32 s67, s6, 3")
        k.e("s_cmp_eq_u32 s67, 1"); k.e("s_cselect_b32 s64, s66, s64")
        k.e("s_cmp_eq_u32 s67, 2"); k.e(f"s_cselect_b32 s64, {FL1_OFF}, s64")
        k.e("s_lshl_b32 s66, s69, 19"); k.e(f"s_add_u32 s66, s66, {OF_OFF}")
        k.e("s_cmp_eq_u32 s67, 3"); k.e("s_cselect_b32 s64, s66, s64")
        k.e("buffer_load_dword v219, v235, s[36:39], s64 offen")
        k.e("s_mul_i32 s53, s69, 229376")
        srd(k, 64, "s22", "s23", OUT_BYTES)
        k.e("buffer_load_dword v219, v235, s[64:67], s53 offen")
    k.e("s_lshr_b32 s7, s6, 1")
    k.e("s_and_b32 s96, s6, 1")
    k.e("s_lshl_b32 s64, s96, 14")
    k.e("v_add_u32 v244, s64, v2")
    k.e("v_add_u32 v245, s40, v2")
    k.e("s_lshl_b32 s66, s7, 12")
    k.e("s_add_u32 s66, s66, 98304")
    k.e("v_add_u32 v248, s66, v2")
    k.e("v_and_b32 v249, 7, v1")
    k.e("v_lshlrev_b32 v249, 3, v249")
    k.e("s_lshl_b32 s97, s3, 7")
    k.e(f"s_add_u32 s97, s97, {FL1_OFF}")
    k.e("s_lshl_b32 s98, s3, 18")
    k.e("s_add_u32 s98, s98, s40")
    k.e("s_add_u32 s99, s5, 1")
    k.e("s_mov_b32 s49, 0")
    k.e("s_lshl_b32 s54, s69, 2")
    k.e("s_and_b32 s55, s70, 3")
    k.e("s_add_u32 s54, s54, s55")
    k.e("s_lshr_b32 s55, s70, 2")
    k.e("v_lshrrev_b32 v251, 3, v1")
    k.e("v_bfe_u32 v16, v251, 1, 1")
    k.e("v_lshlrev_b32 v16, 2, v16")
    k.e("v_and_b32 v17, 7, v1")
    k.e("v_xor_b32 v16, v16, v17")
    k.e("v_lshlrev_b32 v16, 4, v16")
    k.e("v_mul_u32_u24 v251, 896, v251")
    k.e("v_add_u32 v251, v251, v16")
    k.e("s_mul_i32 s100, s55, 112")
    k.e("s_mul_i32 s101, s6, 7168")
    k.e("s_add_u32 s100, s100, s101")
    k.e("s_mov_b32 s101, s100")
    k.e(f"s_add_u32 s43, s61, {WOB + 7*8192}")
    srd(k, 44, "s18", "s19", WO_BYTES)
    k.e("s_lshl_b32 s48, s3, 18")
    k.e("s_lshl_b32 s53, s5, 15")
    k.e("s_add_u32 s48, s48, s53")
    k.e("s_add_u32 s48, s48, s40")
    k.e("s_add_u32 s67, s40, 65536")
    k.e("v_add_u32 v238, s67, v2")
    k.e("s_lshl_b32 s66, s6, 11")
    k.e("s_add_u32 s66, s66, 98304")
    k.e("v_add_u32 v218, s66, v2")
    k.e("v_and_b32 v240, 31, v1")
    k.e("v_mov_b32 v239, 0x3f803f80")
    k.e("v_cmp_eq_u32 vcc, 28, v240")
    k.nop(2)
    k.e("v_cndmask_b32 v239, 0, v239, vcc")
    XR, QA, KA, VA, WF = 64, 16, 32, 48, 176
    KF, VF, QF = 200, 208, 220
    k.stamp("pro")
    WF = 176
    def R(c, vm):
        sl = c % 3
        k.e(f"s_waitcnt vmcnt({vm})")
        k.stamp("pro")
        xb = 8 if sl < 2 else 12
        xo = (sl % 2) * 32768
        for f in range(4):
            k.e(f"ds_read_b128 {vr(XR+(c*4+f)*4)}, v{xb+f} offset:{xo}")
        pieces = []
        if c + 3 <= 6: pieces += x_dma(c + 3)
        if c == 4:
            for n in range(4):
                pieces.append([f"s_add_u32 m0, s40, {WQ + n*1024}", f"s_add_u32 s68, s51, {n*16*2688}", "buffer_load_dwordx4 v6, s[32:35], s68 offen lds"])
            pieces.append(["buffer_load_dwordx2 v[236:237], v235, s[72:75], 0 offen sc1"])
        return pieces
    def wbase():
        k.e("s_lshl_b32 s64, s59, 13")
        k.e("v_add_u32 v242, s64, v232")
        k.e("v_add_u32 v243, s64, v233")
        k.ex(cyc7("s59"))
    def treads(g):
        c, f = divmod(g, 4)
        if f == 0:
            k.e("s_lshl_b32 s64, s59, 13")
            k.e(f"v_add_u32 v{242 + 4*(c&1)}, s64, v232")
            k.e(f"v_add_u32 v{243 + 4*(c&1)}, s64, v233")
            k.ex(cyc7("s59"))
        for seg in range(2):
            for s_ in range(2):
                r = WF + (g % 3)*8 + seg*4 + s_*2
                k.e(f"ds_read_b64_tr_b16 v[{r}:{r+1}], v{242 + 4*(c&1) + seg} offset:{(8*f+4*s_)*128}")
    waits = [6, 6, 5, 5, 5, 5, 5]
    if "notlb" not in EXP: waits = [8, 8, 5, 5, 5, 5, 5]
    for c in range(7):
        sl = c % 3
        k.e(f"s_waitcnt vmcnt({waits[c]})")
        k.stamp("pro")
        if c <= 5: k.e("s_barrier")
        xb = 8 if sl < 2 else 12
        xo = (sl % 2) * 32768
        if c == 0: treads(0)
        for f in range(4):
            k.e(f"ds_read_b128 {vr(XR+(c*4+f)*4)}, v{xb+f} offset:{xo}")
        if c == 0: treads(1)
        pend = []
        if c <= 3: pend.append(w_dma())
        if c + 2 <= 6: pend += x_dma(c + 2)
        if c == 5:
            for n in range(4):
                pend.append([f"s_add_u32 m0, s40, {WQ + n*1024}", f"s_add_u32 s68, s51, {n*16*2688}", "buffer_load_dwordx4 v6, s[32:35], s68 offen lds"])
        if c == 4:
            pend.append(["buffer_load_dwordx2 v[236:237], v235, s[72:75], 0 offen sc1"])
        n = len(pend); cuts = [(n*i)//4 for i in range(5)]
        per = [pend[cuts[i]:cuts[i+1]] for i in range(4)]
        for p in per[0]: k.ex(p)
        for f in range(4):
            g = c*4 + f
            if g + 2 < 28: treads(g + 2)
            if f == 0:
                later = (4 + 4) if c == 0 else (4 if g + 2 < 28 else 0)
            else:
                later = (4 if g + 1 < 28 else 0) + (4 if g + 2 < 28 else 0)
            k.e(f"s_waitcnt lgkmcnt({later})")
            x = XR + g*4; w = WF + (g % 3)*8
            z = "0" if g == 0 else None
            k.e(mfma(KA, w, x, z))
            k.e(mfma(VA, x, w+4, z))
            if f < 3:
                for p in per[f + 1]: k.ex(p)
    k.stamp("q2")
    k.e("s_waitcnt vmcnt(0)")
    k.e("ds_write_b16 v217, v216")
    k.stamp("all" if "q2" not in STAMPSET else "q2")
    def qreads(n):
        c, f = divmod(n, 4)
        if f == 0:
            k.e("s_lshl_b32 s64, s59, 12")
            k.e(f"v_add_u32 v{242 + 4*(c&1)}, s64, v234")
            k.ex(cyc7("s59"))
        for s_ in range(2):
            r = WF + (n & 3)*4 + s_*2
            k.e(f"ds_read_b64_tr_b16 v[{r}:{r+1}], v{242 + 4*(c&1)} offset:{(8*f + 4*s_)*64}")
    k.e("s_mov_b32 s58, 0")
    k.lab("L_nonce")
    k.e("v_readfirstlane_b32 s56, v236")
    k.e("v_readfirstlane_b32 s57, v237")
    k.e("s_add_u32 s58, s58, 1")
    k.e(f"s_cmp_ge_u32 s58, {SPIN_MAX}")
    k.e("s_cbranch_scc1 L_nonce_ok")
    k.e("s_cmp_lg_u32 s56, 0")
    k.e("s_cbranch_scc1 L_nonce_ok")
    k.e("buffer_load_dwordx2 v[236:237], v235, s[72:75], 0 offen sc1")
    k.e("s_waitcnt vmcnt(0)")
    k.e("s_branch L_nonce")
    k.lab("L_nonce_ok")
    k.e("s_waitcnt lgkmcnt(0)")
    k.e("s_barrier")
    k.stamp("q2")
    qreads(0); qreads(1); qreads(2)
    srd(k, 72, "s12", "s13", WO_BYTES)
    k.e("s_mov_b64 exec, s[62:63]")
    for i in (12,13,14): k.e(f"v_mov_b32 v{KA+i}, 1.0")
    k.e(f"v_mov_b32 v{KA+15}, 0")
    k.e("s_mov_b64 exec, -1")
    epi = []
    epi += [[f"v_cvt_pk_bf16_f32 v{KF+i}, v{KA+2*i}, v{KA+2*i+1}" for i in range(8)]]
    epi += [[f"buffer_store_dwordx4 {vr(KF)}, v2, s[36:39], s48 offen sc1", f"buffer_store_dwordx4 {vr(KF+4)}, v2, s[36:39], s48 offen offset:1024 sc1"] +
            [f"v_cvt_pk_bf16_f32 v{VF+i}, v{VA+2*i}, v{VA+2*i+1}" for i in range(8)]]
    epi += [["s_mov_b32 s64, 0xf0000000", "s_mov_b32 s65, 0xf0000000", "s_mov_b64 exec, s[64:65]"] + [f"v_mov_b32 v{VF+i}, v239" for i in range(8)] + ["s_mov_b64 exec, -1",
            f"buffer_store_dwordx4 {vr(VF)}, v2, s[36:39], s48 offen offset:2048 sc1", f"buffer_store_dwordx4 {vr(VF+4)}, v2, s[36:39], s48 offen offset:3072 sc1"]]
    epi += [[f"ds_write_b128 v238, {vr(r)} offset:{i*1024}" for i, r in enumerate((KF, KF+4, VF, VF+4))]]
    for n in range(28):
        if n + 3 < 28: qreads(n + 3)
        later = 2 * min(3, 27 - n)
        if n in (4, 5, 6): later += 4
        k.e(f"s_waitcnt lgkmcnt({later})")
        k.e(mfma(QA, WF + (n & 3)*4, XR + n*4, "0" if n == 0 else None))
        if n < len(epi):
            blk = epi[n]
            if "nostore" in EXP: blk = [x for x in blk if not x.startswith("buffer_store")]
            if "nodsw" in EXP: blk = [x for x in blk if not x.startswith("ds_write")]
            k.ex(blk)
        if n in (5, 13): k.stamp("q2")
    k.stamp("all" if "q2" not in STAMPSET else "q2")
    QR, OA, OB, S0, S1, PR, KR, VR, ST = 16, 32, 48, 64, 80, 96, 104, 120, 136
    GS = 250
    k.e(f"s_mov_b32 s64, {hex(f2u(CSCALE))}")
    k.e("v_mov_b32 v6, v244")
    k.e("v_mov_b32 v7, v245")
    k.e("v_add_u32 v3, 65536, v244")
    k.e("v_mov_b32 v4, v244")
    k.e("v_mov_b32 v5, v245")
    k.e("v_mov_b32 v9, v248")
    k.e("v_mov_b32 v10, v249")
    k.e("v_mov_b32 v11, v251")
    k.nop(3)
    k.e(f"v_mov_b32 v12, v{QA+12}")
    k.e(f"v_mov_b32 v{GS}, v{QA+12}")
    for i in range(12): k.e(f"v_mul_f32 v{QA+i}, s64, v{QA+i}")
    k.e(f"v_permlane32_swap_b32 v12, v{GS}")
    for i in range(6): k.e(f"v_cvt_pk_bf16_f32 v{QF+i}, v{QA+2*i}, v{QA+2*i+1}")
    k.e(f"v_mov_b32 v{QF+6}, 0")
    k.e(f"v_mov_b32 v{QF+7}, 0")
    k.e("s_mov_b32 exec_hi, 0")
    k.e(f"v_mul_f32 v{QA+12}, s64, v{QA+12}")
    k.e(f"v_mul_f32 v{QA+13}, s64, v{QA+13}")
    k.e(f"v_mul_f32 v{QA+14}, s64, v{QA+14}")
    k.e(f"v_mul_f32 v{QA+15}, s64, v{QA+15}")
    k.e(f"v_cvt_pk_bf16_f32 v{QF+6}, v{QA+12}, v{QA+13}")
    k.e(f"v_cvt_pk_bf16_f32 v{QF+7}, v{QA+14}, v{QA+15}")
    k.e("s_mov_b64 exec, -1")
    SS = 96
    k.e(f"v_mul_f32 v{GS}, s60, v{GS}")
    k.e(f"v_exp_f32 v{GS}, v{GS}")
    k.e(mfma(SS, KF, QF, "0"))
    k.e(mfma(SS, KF+4, QF+4))
    k.e(f"v_add_f32 v{GS}, 1.0, v{GS}")
    k.e(f"v_rcp_f32 v{GS}, v{GS}")
    k.e(f"ds_write_b128 v218, {vr(QF)}")
    k.nop(9)
    k.e(f"v_max3_f32 v12, v{SS}, v{SS+1}, v{SS+2}")
    k.e(f"v_max3_f32 v13, v{SS+3}, v{SS+4}, v{SS+5}")
    k.e(f"v_max3_f32 v12, v12, v{SS+6}, v{SS+7}")
    k.e(f"v_max3_f32 v13, v13, v{SS+8}, v{SS+9}")
    k.e(f"v_max3_f32 v12, v12, v{SS+10}, v{SS+11}")
    k.e(f"v_max3_f32 v13, v13, v{SS+12}, v{SS+13}")
    k.e(f"v_max3_f32 v12, v12, v{SS+14}, v{SS+15}")
    k.e("v_max_f32 v12, v12, v13")
    k.e("v_mov_b32 v13, v12")
    k.nop(2)
    k.e("v_permlane32_swap_b32 v12, v13")
    k.nop(1)
    k.e("v_max_f32 v12, v12, v13")
    shift_split(k, 12, 13, 14, 15, QF+6, QF+7)
    k.e(f"ds_write_b128 v218, {vr(QF+4)} offset:1024")
    k.e("s_waitcnt vmcnt(0) lgkmcnt(0)")
    k.e("s_barrier")
    k.e("s_cmp_lg_u32 s6, 0")
    k.e("s_cbranch_scc1 L_noflag1")
    k.e("s_lshl_b32 s66, s3, 7")
    k.e("s_lshl_b32 s67, s5, 3")
    k.e("s_add_u32 s66, s66, s67")
    k.e(f"s_add_u32 s66, s66, {FL1_OFF}")
    k.e("v_mov_b32 v236, s56")
    k.e("v_mov_b32 v237, s57")
    k.e("s_mov_b64 exec, 1")
    k.e("buffer_store_dwordx2 v[236:237], v235, s[36:39], s66 offen sc1")
    k.e("s_mov_b64 exec, -1")
    k.lab("L_noflag1")
    k.stamp("all" if "q2" not in STAMPSET else "q2")
    k.e(f"ds_read_b128 {vr(QR)}, v9")
    k.e(f"ds_read_b128 {vr(QR+4)}, v9 offset:1024")
    k.e(f"ds_read_b128 {vr(KR)}, v3")
    k.e(f"ds_read_b128 {vr(KR+4)}, v3 offset:1024")
    k.e(f"ds_read_b128 {vr(QR+8)}, v9 offset:2048")
    k.e(f"ds_read_b128 {vr(QR+12)}, v9 offset:3072")
    k.e("s_waitcnt lgkmcnt(2)")
    k.e(mfma(S0, KR, QR, "0"))
    k.e(mfma(S0, KR+4, QR+4))
    k.e("s_waitcnt lgkmcnt(0)")
    k.nop(11)
    def Lload():
        if "noload" in EXP: return ["s_add_u32 s99, s99, 1"]
        return ["s_and_b32 s53, s99, 7", "s_lshl_b32 s53, s53, 15", "s_add_u32 s53, s53, s98", "s_add_u32 s99, s99, 1"] + \
               [f"buffer_load_dwordx4 {vr(ST+4*i)}, v2, s[36:39], s53 offen offset:{i*1024} sc1" for i in range(4)]
    def slot(Sbuf, pv, sq, extra, pvmode="acc"):
        e = [f"v_exp_f32 v{Sbuf+i}, v{Sbuf+i}" for i in range(16)]
        c = [f"v_cvt_pk_bf16_f32 v{PR+i}, v{Sbuf+2*i}, v{Sbuf+2*i+1}" for i in range(8)]
        O, V = pv; Sd, Kb, Qb = sq
        mPV0 = mfma(O, V, PR, "0" if pvmode == "zero" else None); mPV1 = mfma(O, V+4, PR+4)
        if pvmode == "skip": mPV0 = "s_nop 0"; mPV1 = "s_nop 0"
        mS0 = mfma(Sd, Kb, Qb, "0"); mS1 = mfma(Sd, Kb+4, Qb+4)
        seq = [mPV0, e[0], e[1], e[2], c[0], e[3], e[4], mS0, c[1], e[5], e[6], e[7], c[2], e[8], mS1, e[9], c[3],
               e[10], e[11], e[12], mPV1, e[13], c[4], e[14], c[5], e[15], c[6], c[7]]
        for pos, x in enumerate(seq):
            k.ex(extra.get(pos, []))
            k.e(x)
    def bdma():
        if "nowo" in EXP: return []
        return ["s_mov_b32 m0, s43", "s_add_u32 s43, s43, 8192", "buffer_load_dwordx4 v11, s[44:47], s101 offen lds", f"s_add_u32 s101, s101, {8*7168}"]
    def wr(i):
        if "nowrite" in EXP: return []
        return [f"ds_write_b128 v5, {vr(ST+4*i)} offset:{i*1024}"]
    def Laddr(): return ["s_and_b32 s53, s99, 7", "s_lshl_b32 s53, s53, 15", "s_add_u32 s53, s53, s98", "s_add_u32 s99, s99, 1"]
    def Lp(i):
        if "noload" in EXP: return []
        return [f"buffer_load_dwordx4 {vr(ST+4*i)}, v2, s[36:39], s53 offen offset:{i*1024} sc1"]
    def body(kind):
        for t in range(4):
            kb = KR + (t & 1) * 8; kn = KR + ((t + 1) & 1) * 8
            vb = VR + (t & 1) * 8; vp = VR + ((t + 1) & 1) * 8
            exA = {}; exB = {0: ["s_waitcnt lgkmcnt(0)"]}
            def add(d, p, l): d.setdefault(p, []); d[p] = d[p] + l
            if t < 3:
                rk = [f"ds_read_b128 {vr(kn)}, v3 offset:{(t+1)*4096}", f"ds_read_b128 {vr(kn+4)}, v3 offset:{(t+1)*4096+1024}"]
            else:
                rk = [f"ds_read_b128 {vr(kn)}, v4", f"ds_read_b128 {vr(kn+4)}, v4 offset:1024"]
            rv = [f"ds_read_b128 {vr(vb)}, v3 offset:{t*4096+2048}", f"ds_read_b128 {vr(vb+4)}, v3 offset:{t*4096+3072}"]
            late_k = (kind == "first" and t == 3)
            if t == 0 and kind == "last":
                add(exA, 0, ["s_barrier"])
                for n in range(4):
                    add(exA, 4 + 6*n, [f"s_add_u32 m0, s61, {WOB + n*8192}", f"s_add_u32 s53, s100, {n*8*7168}", "buffer_load_dwordx4 v11, s[72:75], s53 offen lds"])
                for n in range(4, 7):
                    add(exB, 4 + 6*(n-4), [f"s_add_u32 m0, s61, {WOB + n*8192}", f"s_add_u32 s53, s100, {n*8*7168}", "buffer_load_dwordx4 v11, s[72:75], s53 offen lds"])
            if kind == "first" and t == 2:
                add(exA, 0, k.stamp_list("loop") + poll_list("L_p1", 10, "s97", 152, True) + k.stamp_list("loop") + Laddr() + Lp(0))
                add(exA, 10, Lp(1)); add(exA, 20, Lp(2)); add(exB, 6, Lp(3))
            if late_k:
                exB[0] = ["s_waitcnt vmcnt(0) lgkmcnt(0)"] + sum([wr(i) for i in range(4)], []) + ["s_waitcnt lgkmcnt(0)", "s_barrier"] + rk
                add(exB, 2, bdma()); add(exB, 4, bdma())
                add(exB, 7, ["s_waitcnt lgkmcnt(0)"])
                add(exB, 9, Laddr() + Lp(0)); add(exB, 13, Lp(1)); add(exB, 17, Lp(2)); add(exB, 21, Lp(3)); add(exB, 25, bdma())
                add(exA, 5, [rv[0]]); add(exA, 8, [rv[1]])
            else:
                add(exA, 1, [rk[0]]); add(exA, 3, [rk[1]]); add(exA, 5, [rv[0]]); add(exA, 8, [rv[1]])
            if kind in ("mid", "c6"):
                m = kind == "mid"
                if t == 1:
                    add(exA, 12, ["s_waitcnt vmcnt(4)"] + wr(0))
                    add(exB, 4, ["s_waitcnt vmcnt(3)"] + wr(1))
                    if m: add(exB, 16, Laddr() + Lp(0))
                if t == 2:
                    add(exA, 12, [f"s_waitcnt vmcnt({3 if m else 2})"] + wr(2))
                    if m: add(exA, 20, Lp(1))
                    add(exB, 4, [f"s_waitcnt vmcnt({3 if m else 1})"] + wr(3))
                    if m: add(exB, 16, Lp(2))
                if t == 3:
                    add(exA, 0, ["s_waitcnt lgkmcnt(0)"] + ([] if "nobar" in EXP else ["s_barrier"]))
                    if m: add(exA, 16, Lp(3)); add(exB, 10, bdma())
                    if not m:
                        add(exA, 10, ["v_lshrrev_b32 v12, 3, v1", "v_lshlrev_b32 v12, 6, v12", "v_and_b32 v13, 7, v1", "v_add_u32 v12, v12, v13", "v_mul_u32_u24 v12, 896, v12",
                                      "buffer_load_dword v240, v12, s[72:75], s100 offen"])
                        add(exB, 10, ["buffer_load_dword v241, v12, s[72:75], s100 offen offset:124"])
            if t == 3 and kind != "last":
                add(exB, 20, ["v_mov_b32 v3, v4", "s_add_u32 s49, s49, 32768", "s_cmp_eq_u32 s49, 98304", "s_cselect_b32 s49, 0, s49"])
                add(exB, 22, ["v_add_u32 v4, s49, v6", "v_add_u32 v5, s49, v7"])
                if kind == "mid":
                    add(exB, 24, ["s_add_u32 s48, s48, 1"]); add(exB, 26, ["s_cmp_lt_u32 s48, 6"])
            fa = "skip" if (kind == "first" and t == 0) else "zero" if (kind == "first" and t == 1) else "acc"
            fb = "zero" if (kind == "first" and t == 0) else "acc"
            slot(S0, (OB, vp), (S1, kb, QR+8), exA, fa)
            slot(S1, (OA, vb), (S0, kn, QR), exB, fb)
    body("first")
    k.stamp("loop2")
    k.e("s_mov_b32 s48, 1")
    k.e(".p2align 6")
    k.lab("L_loop")
    body("mid")
    k.e("s_cbranch_scc1 L_loop")
    k.stamp("loop2")
    body("c6")
    k.stamp("loop2")
    body("last")
    k.stamp()
    k.nop(2)
    k.e(mfma(OB, VR+8, PR))
    k.e(mfma(OB, VR+12, PR+4))
    k.e("v_add_u32 v11, s40, v2")
    k.e("s_xor_b32 s29, s6, 1")
    k.e("s_lshl_b32 s29, s29, 12")
    k.e("v_add_u32 v12, s29, v2")
    k.e("s_lshl_b32 s29, s41, 16")
    k.e("s_lshl_b32 s30, s3, 11")
    k.e("s_add_u32 s29, s29, s30")
    k.e(f"s_add_u32 s29, s29, {OF_OFF}")
    k.e("s_barrier")
    k.nop(4)
    k.e("s_cmp_eq_u32 s96, 0")
    k.e("s_cbranch_scc0 L_x1")
    for i in range(4): k.e(f"ds_write_b128 v11, {vr(OB+4*i)} offset:{i*1024}")
    k.e("s_waitcnt lgkmcnt(0)")
    k.e("s_barrier")
    for i in range(4): k.e(f"ds_read_b128 {vr(S0+4*i)}, v12 offset:{i*1024}")
    for i in range(16):
        if i % 4 == 0: k.e(f"s_waitcnt lgkmcnt({3 - i//4})")
        k.e(f"v_add_f32 v{OA+i}, v{OA+i}, v{S0+i}")
    k.e("s_branch L_xd")
    k.lab("L_x1")
    for i in range(4): k.e(f"ds_write_b128 v11, {vr(OA+4*i)} offset:{i*1024}")
    k.e("s_waitcnt lgkmcnt(0)")
    k.e("s_barrier")
    for i in range(4): k.e(f"ds_read_b128 {vr(S0+4*i)}, v12 offset:{i*1024}")
    for i in range(16):
        if i % 4 == 0: k.e(f"s_waitcnt lgkmcnt({3 - i//4})")
        k.e(f"v_add_f32 v{OA+i}, v{OB+i}, v{S0+i}")
    k.lab("L_xd")
    k.e("s_mov_b32 s59, 0")
    k.lab("L_norm")
    k.e("s_mov_b32 s64, 0x203")
    k.e(f"v_mov_b32 v13, v{OA+12}")
    k.e(f"v_mov_b32 v14, v{OA+12}")
    k.e(f"v_maximum3_f32 v15, |v{OA}|, |v{OA+1}|, |v{OA+2}|")
    k.e(f"v_maximum3_f32 v15, |v{OA+3}|, |v{OA+4}|, v15")
    k.e("v_permlane32_swap_b32 v13, v14")
    for i in range(5, 15, 2): k.e(f"v_maximum3_f32 v15, |v{OA+i}|, |v{OA+i+1}|, v15")
    k.e("v_rcp_f32 v13, v14")
    k.e(f"v_maximum3_f32 v15, |v{OA+15}|, |v14|, v15")
    k.e(f"v_mul_f32 v13, v13, v{GS}")
    k.e("v_cmp_class_f32 vcc, v15, s64")
    for i in range(12): k.e(f"v_mul_f32 v{OA+i}, v{OA+i}, v13")
    k.e("s_cmp_lg_u32 s59, 0")
    k.e("s_cbranch_scc1 L_norm_ok")
    k.e("s_cmp_lg_u64 vcc, 0")
    k.e("s_cbranch_scc1 L_fallback")
    k.lab("L_norm_ok")
    for i in range(12, 16): k.e(f"v_mul_f32 v{OA+i}, v{OA+i}, v13")
    k.e("s_mov_b64 exec, s[62:63]")
    for i in (12,13,14,15): k.e(f"v_mov_b32 v{OA+i}, 0")
    k.e("s_mov_b64 exec, -1")
    for i in range(4): k.e(f"v_cvt_pk_bf16_f32 v{PR+i}, v{OA+2*i}, v{OA+2*i+1}")
    k.e(f"buffer_store_dwordx4 {vr(PR)}, v2, s[36:39], s29 offen sc1")
    for i in range(4, 8): k.e(f"v_cvt_pk_bf16_f32 v{PR+i}, v{OA+2*i}, v{OA+2*i+1}")
    k.e(f"buffer_store_dwordx4 {vr(PR+4)}, v2, s[36:39], s29 offen offset:1024 sc1")
    k.e("s_lshr_b32 s7, s6, 2")
    k.e("s_and_b32 s28, s6, 3")
    k.e("v_lshrrev_b32 v5, 5, v1")
    k.e("v_lshlrev_b32 v5, 2, v5")
    k.e("v_bfe_u32 v6, v1, 2, 2")
    k.e("v_add_u32 v5, v5, v6")
    k.e("v_lshlrev_b32 v5, 7, v5")
    k.e("v_bfe_u32 v7, v1, 4, 1")
    k.e("v_lshlrev_b32 v7, 1, v7")
    k.e("v_bfe_u32 v8, v1, 1, 1")
    k.e("v_add_u32 v7, v7, v8")
    k.e("v_bfe_u32 v8, v6, 1, 1")
    k.e("v_lshlrev_b32 v8, 2, v8")
    k.e("v_xor_b32 v7, v7, v8")
    k.e("v_lshlrev_b32 v7, 4, v7")
    k.e("v_add_u32 v5, v5, v7")
    k.e("v_and_b32 v7, 1, v1")
    k.e("v_lshlrev_b32 v7, 3, v7")
    k.e("v_add_u32 v5, v5, v7")
    k.e("v_xor_b32 v6, 64, v5")
    k.e("s_mul_i32 s29, s28, 28672")
    k.e(f"s_add_u32 s29, s29, {WOB}")
    k.e("v_add_u32 v5, s29, v5")
    k.e("v_add_u32 v6, s29, v6")
    k.e("v_mov_b32 v13, 0")
    k.e("v_and_b32 v10, 31, v1")
    k.e("v_lshlrev_b32 v11, 3, v10")
    k.e("s_lshr_b32 s66, s54, 2")
    k.e("s_lshl_b32 s66, s66, 8")
    k.e(f"s_add_u32 s66, s66, {FL2_OFF}")
    k.e("s_lshl_b32 s32, s54, 1")
    k.e("s_add_u32 s32, s32, s7")
    k.e("s_lshl_b32 s33, s32, 16")
    k.e("s_lshl_b32 s34, s28, 14")
    k.e("s_add_u32 s33, s33, s34")
    k.e(f"s_add_u32 s33, s33, {OF_OFF}")
    k.e("s_lshl_b32 s29, s7, 15")
    k.e("s_lshl_b32 s30, s28, 12")
    k.e("s_add_u32 s29, s29, s30")
    k.e("v_add_u32 v16, s29, v2")
    k.e("s_bfe_u32 s29, s6, 0x10001")
    k.e("s_and_b32 s30, s6, 1")
    k.e("s_lshl_b32 s31, s7, 15")
    k.e("s_lshl_b32 s34, s29, 14")
    k.e("s_add_u32 s31, s31, s34")
    k.e("s_lshl_b32 s34, s30, 11")
    k.e("s_add_u32 s31, s31, s34")
    k.e("v_add_u32 v17, s31, v2")
    k.e("v_mul_u32_u24 v18, 896, v10")
    k.e("v_lshrrev_b32 v12, 5, v1")
    k.e("v_lshlrev_b32 v12, 4, v12")
    k.e("v_add_u32 v18, v18, v12")
    k.e("s_lshl_b32 s31, s29, 6")
    k.e("s_lshl_b32 s34, s30, 5")
    k.e("s_add_u32 s31, s31, s34")
    k.e("v_add_u32 v12, s31, v12")
    k.e("v_cmp_gt_u32 vcc, 112, v12")
    k.e("s_mul_i32 s34, s55, 112")
    k.e("s_add_u32 s31, s31, s34")
    k.e("s_mul_i32 s34, s32, 28672")
    k.e("s_add_u32 s31, s31, s34")
    k.e("v_mov_b32 v19, 0x7fffffff")
    k.e("v_cndmask_b32 v18, v19, v18, vcc")
    srd(k, 48, "s22", "s23", OUT_BYTES)
    k.e("s_waitcnt vmcnt(0)")
    k.e("s_barrier")
    k.stamp()
    k.e("s_cmp_lg_u32 s6, 0")
    k.e("s_cbranch_scc1 L_noflag2")
    k.e("s_lshl_b32 s64, s5, 8")
    k.e("s_lshl_b32 s67, s3, 3")
    k.e("s_add_u32 s64, s64, s67")
    k.e(f"s_add_u32 s64, s64, {FL2_OFF}")
    k.e("v_mov_b32 v14, s56")
    k.e("v_mov_b32 v15, s57")
    k.e("s_mov_b64 exec, 1")
    k.e("buffer_store_dwordx2 v[14:15], v13, s[36:39], s64 offen sc1")
    k.e("s_mov_b64 exec, -1")
    k.lab("L_noflag2")
    k.ex(poll_list("L_p2", 11, "s66", 14, False))
    k.stamp()
    OR = 64
    for i in range(16):
        if i % 4 == 0 and i > 0: k.e("s_add_u32 s33, s33, 4096")
        k.e(f"buffer_load_dwordx4 {vr(OR+4*i)}, v2, s[36:39], s33 offen offset:{(i%4)*1024} sc1")
    A0, A1, WF3 = 32, 48, 128
    steps = [(hh, m) for hh in range(8) for m in range(2)]
    def treads3(hh, m, buf):
        for ct in range(2):
            for s_ in range(2):
                r = WF3 + buf*8 + ct*4 + s_*2
                k.e(f"ds_read_b64_tr_b16 v[{r}:{r+1}], v{5+ct} offset:{(hh*28 + 16*m + 8*s_) * 128}")
    treads3(*steps[0], 0)
    for i, (hh, m) in enumerate(steps):
        if i + 1 < len(steps):
            treads3(*steps[i+1], (i+1) & 1)
            k.e(f"s_waitcnt vmcnt({15-i}) lgkmcnt(4)")
        else:
            k.e(f"s_waitcnt vmcnt({15-i}) lgkmcnt(0)")
        w = WF3 + (i & 1)*8
        z = "0" if i == 0 else None
        k.e(mfma(A0, w, OR+4*i, z))
        k.e(mfma(A1, w+4, OR+4*i, z))
    k.stamp()
    k.e("s_barrier")
    k.nop(10)
    for q in range(4): k.e(f"ds_write_b128 v16, {vr(A0+4*q)} offset:{q*1024}")
    for q in range(4): k.e(f"ds_write_b128 v16, {vr(A1+4*q)} offset:{16384+q*1024}")
    k.e("s_waitcnt lgkmcnt(0)")
    k.e("s_barrier")
    for kq in range(4):
        for q in range(2):
            k.e(f"ds_read_b128 {vr(64+kq*8+q*4)}, v17 offset:{kq*4096+q*1024}")
    k.e("s_waitcnt lgkmcnt(4)")
    for i in range(8): k.e(f"v_add_f32 v{64+i}, v{64+i}, v{72+i}")
    k.e("s_waitcnt lgkmcnt(0)")
    for i in range(8): k.e(f"v_add_f32 v{80+i}, v{80+i}, v{88+i}")
    for i in range(8): k.e(f"v_add_f32 v{64+i}, v{64+i}, v{80+i}")
    for i in range(4): k.e(f"v_cvt_pk_bf16_f32 v{20+i}, v{64+2*i}, v{65+2*i}")
    k.nop(2)
    k.e("v_permlane32_swap_b32 v20, v22")
    k.e("v_permlane32_swap_b32 v21, v23")
    k.nop(1)
    k.e("buffer_store_dwordx4 v[20:23], v18, s[48:51], s31 offen")
    k.stamp()
    k.stamp_flush()
    k.lab("L_end")
    k.e("s_endpgm")
    k.lab("L_fallback")
    k.e("s_mov_b32 s59, 1")
    k.e("s_and_b32 s30, s6, 1")
    k.e("s_cmp_eq_u32 s30, 0")
    k.e("s_cbranch_scc1 L_fbq")
    for i in range(8): k.e(f"v_mov_b32 v{QR+i}, v{QR+8+i}")
    k.lab("L_fbq")
    k.e("s_mov_b64 exec, s[62:63]")
    k.e(f"v_mov_b32 v{QR+6}, 0")
    k.e(f"v_mov_b32 v{QR+7}, 0")
    k.e("s_mov_b64 exec, -1")
    k.e("v_mov_b32 v13, 0xff800000")
    k.e("s_lshl_b32 s64, s3, 18")
    k.e("s_mov_b32 s30, 0")
    k.lab("L_fb1")
    k.e(f"buffer_load_dwordx4 {vr(KR)}, v2, s[36:39], s64 offen sc1")
    k.e(f"buffer_load_dwordx4 {vr(KR+4)}, v2, s[36:39], s64 offen offset:1024 sc1")
    k.e("s_waitcnt vmcnt(0)")
    k.e(mfma(S0, KR, QR, "0"))
    k.e(mfma(S0, KR+4, QR+4))
    k.nop(12)
    for i in range(0, 16, 2): k.e(f"v_max3_f32 v13, v13, v{S0+i}, v{S0+i+1}")
    k.e("s_add_u32 s64, s64, 4096")
    k.e("s_add_u32 s30, s30, 1")
    k.e("s_cmp_lt_u32 s30, 64")
    k.e("s_cbranch_scc1 L_fb1")
    k.e("v_mov_b32 v14, v13")
    k.nop(2)
    k.e("v_permlane32_swap_b32 v13, v14")
    k.nop(1)
    k.e("v_max_f32 v13, v13, v14")
    shift_split(k, 13, 14, 15, 12, QR+6, QR+7)
    for i in range(16): k.e(f"v_mov_b32 v{OA+i}, 0")
    k.e("s_lshl_b32 s64, s3, 18")
    k.e("s_mov_b32 s30, 0")
    k.lab("L_fb2")
    k.e(f"buffer_load_dwordx4 {vr(KR)}, v2, s[36:39], s64 offen sc1")
    k.e(f"buffer_load_dwordx4 {vr(KR+4)}, v2, s[36:39], s64 offen offset:1024 sc1")
    k.e(f"buffer_load_dwordx4 {vr(VR)}, v2, s[36:39], s64 offen offset:2048 sc1")
    k.e(f"buffer_load_dwordx4 {vr(VR+4)}, v2, s[36:39], s64 offen offset:3072 sc1")
    k.e("s_waitcnt vmcnt(0)")
    k.e(mfma(S0, KR, QR, "0"))
    k.e(mfma(S0, KR+4, QR+4))
    k.nop(12)
    for i in range(16): k.e(f"v_exp_f32 v{S0+i}, v{S0+i}")
    k.nop(1)
    for i in range(8): k.e(f"v_cvt_pk_bf16_f32 v{PR+i}, v{S0+2*i}, v{S0+2*i+1}")
    k.nop(2)
    k.e(mfma(OA, VR, PR))
    k.e(mfma(OA, VR+4, PR+4))
    k.e("s_add_u32 s64, s64, 4096")
    k.e("s_add_u32 s30, s30, 1")
    k.e("s_cmp_lt_u32 s30, 64")
    k.e("s_cbranch_scc1 L_fb2")
    k.nop(12)
    k.e("s_branch L_norm")
    return k.l, dict(vgpr=252, sgpr=100, lds=163840, block=512)

def main(outpath):
    l, m = gen()
    o = [f"; gated_mix mha block, fused single launch (projection -> attention -> output projection, flag hand-offs). Generated by my own generator script.",
         f"; @launch grid=(256,1,1) block=({m['block']},1,1) lds={m['lds']}",
         '.amdgcn_target "amdgcn-amd-amdhsa--gfx950"', ".text", f".globl {KNAME}", ".p2align 8", f".type {KNAME},@function"] + l
    acc = (m['vgpr'] + 3) // 4 * 4
    o += ['.section .rodata,"a"', ".p2align 6", f".amdhsa_kernel {KNAME}", f"  .amdhsa_next_free_vgpr {m['vgpr']}", f"  .amdhsa_next_free_sgpr {m['sgpr']}",
          f"  .amdhsa_accum_offset {acc}", "  .amdhsa_group_segment_fixed_size 0", "  .amdhsa_kernarg_size 80",
          "  .amdhsa_user_sgpr_count 2", "  .amdhsa_user_sgpr_kernarg_segment_ptr 1", "  .amdhsa_system_sgpr_workgroup_id_x 1", ".end_amdhsa_kernel"]
    open(outpath, "w").write("\n".join(o) + "\n")

if __name__ == "__main__":
    main(sys.argv[1] if len(sys.argv) > 1 else f"cdna_kernels/{NAME}.s")
```

```python
import sys, math, os, struct

NAME = "gated_mix__mha_block__softmax_full_mha__prompt"
KNAME = NAME + "_kernel"
X_BYTES = 2048 * 448 * 2
W_BYTES = 448 * 1344 * 2
WO_BYTES = 448 * 448 * 2
OUT_BYTES = 2048 * 448 * 2
KV_OFF = 0
OF_OFF = 8 << 20
FL1_OFF = (12 << 20) + 8192
FL2_OFF = (12 << 20) + 16384
STAMP_OFF = 13 << 20
WS_USED = 14 << 20
LOG2E = math.log2(math.e)
CSCALE = (28 ** -0.5) * LOG2E
STAMP = int(os.environ.get("STAMP", "0"))
STAMPSET = os.environ.get("STAMPSET", "all").split(",")
EXP = os.environ.get("EXP", "").split(",")
SPIN_MAX = 1 << 18
def f2u(x): return struct.unpack('<I', struct.pack('<f', x))[0]

class K:
    def __init__(s): s.l = []; s.ns = 0
    def e(s, t):
        if t.endswith(":"): s.l.append(t)
        else: s.l.append("  " + t)
    def ex(s, ts):
        for t in ts: s.e(t)
    def lab(s, t): s.l.append(t + ":")
    def nop(s, n):
        while n > 0:
            k = min(n, 16); s.e(f"s_nop {k-1}"); n -= k
    def stamp(s, tag="all"):
        if not STAMP: return
        if tag not in STAMPSET and s.ns > 0: return
        i = s.ns; s.ns += 1
        assert i < 14
        if i == 0:
            s.e("s_memrealtime s[76:77]"); s.e("s_waitcnt lgkmcnt(0)"); s.e("s_mov_b32 s94, s76")
        s.e("s_memrealtime s[76:77]" if os.environ.get("STAMPRT") else "s_memtime s[76:77]"); s.e("s_waitcnt lgkmcnt(0)"); s.e(f"s_mov_b32 s{80+i}, s76")
    def stamp_list(s, tag):
        save = s.l; s.l = []
        s.stamp(tag)
        out = [x.strip() for x in s.l]; s.l = save
        return out
    def stamp_flush(s):
        if not STAMP: return
        if os.environ.get("STAMPDBG") == "multi":
            ia, ib = [int(x) for x in os.environ.get("STAMPIDX", "0,7").split(",")]
            base = int(os.environ.get("STAMPBASE", "248"))
            s.e(f"s_sub_u32 s78, s2, {base+1}"); s.e("s_cmp_ge_u32 s78, 7"); s.e("s_cbranch_scc1 L_nodbg"); s.e("s_cmp_lg_u32 s6, 0"); s.e("s_cbranch_scc1 L_nodbg")
            s.e("s_mov_b32 s72, s24"); s.e("s_mov_b32 s73, s25"); s.e("s_mov_b32 s74, 256"); s.e("s_mov_b32 s75, 0x20000")
            s.e("s_lshl_b32 s78, s78, 3"); s.e("s_add_u32 s78, s78, 8")
            s.e("v_mov_b32 v0, 0"); s.e("s_mov_b64 exec, 1")
            s.e(f"s_sub_u32 s79, s{80+ia}, s56"); s.e("v_mov_b32 v2, s79"); s.e(f"s_sub_u32 s79, s{80+ib}, s56"); s.e("v_mov_b32 v3, s79")
            s.e("buffer_store_dwordx2 v[2:3], v0, s[72:75], s78 offen")
            s.e("s_mov_b64 exec, -1")
            s.lab("L_nodbg")
            return
        if os.environ.get("STAMPDBG"):
            wgid = int(os.environ["STAMPDBG"])
            s.e(f"s_cmp_lg_u32 s2, {wgid}"); s.e("s_cbranch_scc1 L_nodbg"); s.e("s_cmp_lg_u32 s6, 0"); s.e("s_cbranch_scc1 L_nodbg")
            s.e("s_mov_b32 s72, s24"); s.e("s_mov_b32 s73, s25"); s.e("s_mov_b32 s74, 256"); s.e("s_mov_b32 s75, 0x20000")
            s.e("v_mov_b32 v0, 0"); s.e("s_mov_b64 exec, 1")
            for i in range(14):
                s.e(f"s_sub_u32 s78, s{80+i}, s80")
                s.e(f"v_mov_b32 v1, s78")
                s.e(f"buffer_store_dword v1, v0, s[72:75], 0 offen offset:{8+4*i}")
                s.e("s_nop 1")
            s.e("s_mov_b64 exec, -1")
            s.lab("L_nodbg")
            return
        s.e("s_lshl_b32 s78, s2, 3"); s.e("s_add_u32 s78, s78, s6"); s.e("s_lshl_b32 s78, s78, 6")
        s.e(f"s_add_u32 s78, s78, {STAMP_OFF}")
        s.e("s_memrealtime s[76:77]"); s.e("s_waitcnt lgkmcnt(0)"); s.e("s_mov_b32 s95, s76")
        s.e("v_mov_b32 v0, 0"); s.e("s_mov_b64 exec, 1")
        for i in range(16):
            s.e(f"v_mov_b32 v1, s{80+i}")
            s.e(f"buffer_store_dword v1, v0, s[36:39], s78 offen offset:{4*i}")
            s.e("s_nop 1")
        s.e("s_mov_b64 exec, -1")

def vr(b, n=4): return f"v[{b}:{b+n-1}]"
def mfma(d, a, b, c=None):
    cc = vr(d, 16) if c is None else c
    return f"v_mfma_f32_32x32x16_bf16 {vr(d,16)}, {vr(a)}, {vr(b)}, {cc}"
def srd(k, b, lo, hi, nbytes):
    k.e(f"s_mov_b32 s{b}, {lo}"); k.e(f"s_mov_b32 s{b+1}, {hi}"); k.e(f"s_mov_b32 s{b+2}, {nbytes}"); k.e(f"s_mov_b32 s{b+3}, 0x20000")
def cyc7(r): return [f"s_add_u32 {r}, {r}, 1", f"s_cmp_eq_u32 {r}, 7", f"s_cselect_b32 {r}, 0, {r}"]

def shift_split(k, m, t1, t2, t3, q6, q7):
    k.e(f"v_sub_f32 v{m}, 0, v{m}")
    k.e(f"v_cvt_pk_bf16_f32 v{t1}, v{m}, v{m}")
    k.e(f"v_and_b32 v{t1}, 0xffff0000, v{t1}")
    k.e(f"v_sub_f32 v{t2}, v{m}, v{t1}")
    k.e(f"v_cvt_pk_bf16_f32 v{t3}, v{t2}, v{t2}")
    k.e(f"v_and_b32 v{t3}, 0xffff0000, v{t3}")
    k.e(f"v_sub_f32 v{t2}, v{t2}, v{t3}")
    k.e(f"v_mov_b32 v{m}, 0")
    k.e("s_mov_b64 exec, s[62:63]")
    k.e(f"v_cvt_pk_bf16_f32 v{q6}, v{t1}, v{t3}")
    k.e(f"v_cvt_pk_bf16_f32 v{q7}, v{t2}, v{m}")
    k.e("s_mov_b64 exec, -1")

def poll_list(label, voff, soff, vtmp, first_issued):
    o = ["s_cmp_lg_u32 s6, 0", f"s_cbranch_scc1 {label}_done", "s_mov_b32 s58, 0", f"{label}:",
         f"buffer_load_dwordx2 v[{vtmp}:{vtmp+1}], v{voff}, s[36:39], {soff} offen sc1",
         "s_waitcnt vmcnt(0)", f"v_cmp_eq_u64 vcc, s[56:57], v[{vtmp}:{vtmp+1}]", "s_add_u32 s58, s58, 1",
         f"s_cmp_ge_u32 s58, {SPIN_MAX}", f"s_cbranch_scc1 {label}_done", "s_cmp_eq_u64 vcc, exec", f"s_cbranch_scc1 {label}_done",
         "s_sleep 1", f"s_branch {label}", f"{label}_done:", "s_barrier"]
    return o

def gen():
    k = K()
    k.lab(KNAME)
    k.e("s_cmp_ge_u32 s2, 256")
    k.e("s_cbranch_scc1 L_end")
    k.e("s_load_dwordx16 s[8:23], s[0:1], 0")
    k.e("s_load_dwordx4 s[24:27], s[0:1], 64")
    k.e("v_and_b32 v1, 63, v0")
    k.e("v_lshrrev_b32 v2, 6, v0")
    k.e("s_and_b32 s69, s2, 7")
    k.e("s_lshr_b32 s70, s2, 3")
    k.e("v_readfirstlane_b32 s6, v2")
    k.e("s_lshr_b32 s3, s69, 1")
    k.e("s_lshl_b32 s3, s3, 3")
    k.e("s_and_b32 s4, s70, 7")
    k.e("s_add_u32 s3, s3, s4")
    k.e("s_and_b32 s5, s69, 1")
    k.e("s_lshl_b32 s5, s5, 2")
    k.e("s_lshr_b32 s4, s70, 3")
    k.e("s_add_u32 s5, s5, s4")
    k.stamp()
    k.e("s_and_b32 s7, s3, 15")
    k.e("v_lshlrev_b32 v2, 4, v1")
    XS, WKV, WQ, WOB = 0, 98304, 32768, 40960
    k.e("v_lshrrev_b32 v3, 3, v1")
    k.e("v_lshrrev_b32 v4, 1, v3")
    k.e("v_and_b32 v5, 7, v1")
    k.e("v_xor_b32 v4, v4, v5")
    k.e("v_lshlrev_b32 v4, 4, v4")
    k.e("v_mul_u32_u24 v3, 896, v3")
    k.e("v_add_u32 v3, v3, v4")
    k.e("v_xor_b32 v4, 64, v3")
    k.e("v_lshrrev_b32 v5, 3, v1")
    k.e("v_bfe_u32 v6, v1, 2, 1")
    k.e("v_bfe_u32 v7, v1, 4, 1")
    k.e("v_xor_b32 v6, v6, v7")
    k.e("v_mul_u32_u24 v6, 896, v6")
    k.e("v_mul_u32_u24 v5, 2688, v5")
    k.e("v_add_u32 v5, v5, v6")
    k.e("v_and_b32 v6, 3, v1")
    k.e("v_lshlrev_b32 v6, 4, v6")
    k.e("v_add_u32 v5, v5, v6")
    k.e("v_add_u32 v5, 896, v5")
    k.e("v_lshrrev_b32 v7, 2, v1")
    k.e("v_mul_u32_u24 v7, 2688, v7")
    k.e("v_add_u32 v6, v7, v6")
    k.e("s_lshl_b32 s40, s6, 12")
    k.e("s_lshl_b32 s61, s6, 10")
    k.e("s_lshl_b32 s41, s5, 3")
    k.e("s_add_u32 s41, s41, s6")
    k.e("s_mul_i32 s42, s41, 28672")
    k.e("s_mul_i32 s43, s7, 56")
    k.e("s_mul_i32 s50, s6, 21504")
    k.e("s_add_u32 s50, s50, s43")
    k.e("s_mul_i32 s51, s6, 172032")
    k.e("s_add_u32 s51, s51, s43")
    k.e("s_and_b32 s71, s70, 7")
    k.e("s_lshr_b32 s68, s70, 3")
    k.e("s_lshl_b32 s68, s68, 1")
    k.e("s_add_u32 s71, s71, s68")
    for _ in range(2):
        k.e("s_cmp_ge_u32 s71, 7")
        k.e("s_cselect_b32 s68, 7, 0")
        k.e("s_sub_u32 s71, s71, s68")
    k.e("s_mov_b32 s59, s71")
    k.e("s_mov_b32 s52, s71")
    k.e("s_waitcnt lgkmcnt(0)")
    k.stamp("pro")
    srd(k, 28, "s8", "s9", X_BYTES)
    k.e("s_cmp_ge_u32 s3, 16")
    k.e("s_cselect_b32 s32, s16, s10")
    k.e("s_cselect_b32 s33, s17, s11")
    k.e(f"s_mov_b32 s34, {W_BYTES}")
    k.e("s_mov_b32 s35, 0x20000")
    k.e("s_cselect_b32 s60, 0, 0x80000000")
    k.e(f"s_xor_b32 s60, s60, {hex(f2u(LOG2E))}")
    def w_dma():
        return ["s_lshl_b32 s64, s52, 13", "s_add_u32 s64, s64, s61", f"s_add_u32 m0, s64, {WKV}", "s_mul_i32 s68, s52, 172032",
                "s_add_u32 s68, s68, s50", "buffer_load_dwordx4 v5, s[32:35], s68 offen lds"] + cyc7("s52")
    def x_dma(i):
        sl = i % 3
        p = []
        for q in range(4):
            o = []
            if q == 0: o += [f"s_add_u32 m0, s40, {XS + sl*32768}", "s_lshl_b32 s65, s71, 7", "s_add_u32 s65, s65, s42"]
            else: o += [f"s_add_u32 m0, s40, {XS + sl*32768}", "s_add_u32 s65, s65, 6144"]
            o += [f"buffer_load_dwordx4 v{3 + (q&1)}, s[28:31], s65 offen offset:{q*1024} lds"]
            if q == 3: o += cyc7("s71")
            p.append(o)
        return p
    k.ex(w_dma())
    for p in x_dma(0): k.ex(p)
    k.ex(w_dma())
    k.e("s_barrier")
    srd(k, 36, "s26", "s27", WS_USED)
    srd(k, 52 + 20, "s24", "s25", 256)
    k.e("s_or_b32 s58, s2, s6")
    k.e("s_cmp_lg_u32 s58, 0")
    k.e("s_cbranch_scc1 L_nononce")
    k.e("s_memrealtime s[56:57]")
    k.e("s_waitcnt lgkmcnt(0)")
    k.e("s_or_b32 s56, s56, 1")
    k.e("v_mov_b32 v8, s56")
    k.e("v_mov_b32 v9, s57")
    k.e("v_mov_b32 v10, 0")
    k.e("s_mov_b64 exec, 1")
    k.e("buffer_store_dwordx2 v[8:9], v10, s[72:75], 0 offen sc1")
    k.e("s_mov_b64 exec, -1")
    k.lab("L_nononce")
    k.ex(w_dma())
    for p in x_dma(1): k.ex(p)
    srd(k, 44, "s20", "s21", 896)
    k.e("v_lshlrev_b32 v8, 1, v0")
    k.e("buffer_load_ushort v216, v8, s[44:47], 0 offen")
    k.stamp("pro")
    k.e("v_and_b32 v16, 31, v1")
    k.e("v_bfe_u32 v17, v1, 1, 3")
    k.e("v_lshrrev_b32 v18, 5, v1")
    k.e("v_lshlrev_b32 v19, 2, v18")
    k.e("v_xor_b32 v17, v17, v19")
    k.e("v_lshlrev_b32 v17, 4, v17")
    k.e("v_lshlrev_b32 v16, 7, v16")
    k.e("v_add_u32 v16, v16, v17")
    k.e("v_add_u32 v8, s40, v16")
    for f in (1, 2, 3): k.e(f"v_xor_b32 v{8+f}, {16*f}, v8")
    for f in range(4): k.e(f"v_add_u32 v{12+f}, 0x10000, v{8+f}")
    k.e("v_lshlrev_b32 v16, 5, v18")
    k.e("v_bfe_u32 v17, v1, 2, 2")
    k.e("v_add_u32 v16, v16, v17")
    k.e("v_bfe_u32 v19, v1, 4, 1")
    k.e("v_lshlrev_b32 v19, 5, v19")
    k.e("v_and_b32 v20, 3, v1")
    k.e("v_lshlrev_b32 v20, 3, v20")
    k.e("v_add_u32 v19, v19, v20")
    k.e("v_lshlrev_b32 v20, 7, v16")
    k.e("v_add_u32 v20, v20, v19")
    k.e("v_bfe_u32 v21, v1, 3, 1")
    k.e("v_lshlrev_b32 v21, 6, v21")
    k.e("v_add_u32 v20, v20, v21")
    k.e(f"v_add_u32 v232, {WKV}, v20")
    k.e("v_xor_b32 v233, 64, v232")
    k.e("v_lshlrev_b32 v20, 6, v16")
    k.e("v_add_u32 v20, v20, v19")
    k.e(f"v_add_u32 v234, {WQ}, v20")
    k.e("v_lshlrev_b32 v217, 6, v0")
    k.e(f"v_add_u32 v217, {WQ + 56}, v217")
    k.e("s_mov_b32 s62, 0")
    k.e("s_mov_b32 s63, -1")
    k.e("v_mov_b32 v235, 0")
    if "notlb" not in EXP:
        k.e("s_lshl_b32 s64, s3, 18"); k.e("s_lshl_b32 s66, s5, 15"); k.e("s_add_u32 s64, s64, s66")
        k.e("s_lshl_b32 s66, s41, 16"); k.e(f"s_add_u32 s66, s66, {OF_OFF}")
        k.e("s_and_b32 s67, s6, 3")
        k.e("s_cmp_eq_u32 s67, 1"); k.e("s_cselect_b32 s64, s66, s64")
        k.e("s_cmp_eq_u32 s67, 2"); k.e(f"s_cselect_b32 s64, {FL1_OFF}, s64")
        k.e("s_lshl_b32 s66, s69, 19"); k.e(f"s_add_u32 s66, s66, {OF_OFF}")
        k.e("s_cmp_eq_u32 s67, 3"); k.e("s_cselect_b32 s64, s66, s64")
        k.e("buffer_load_dword v219, v235, s[36:39], s64 offen sc1")
        k.e("s_mul_i32 s53, s69, 229376")
        srd(k, 64, "s22", "s23", OUT_BYTES)
        k.e("buffer_load_dword v219, v235, s[64:67], s53 offen")
    k.e("s_lshr_b32 s7, s6, 1")
    k.e("s_and_b32 s96, s6, 1")
    k.e("s_lshl_b32 s64, s96, 14")
    k.e("v_add_u32 v244, s64, v2")
    k.e("v_add_u32 v245, s40, v2")
    k.e("s_lshl_b32 s66, s7, 12")
    k.e("s_add_u32 s66, s66, 98304")
    k.e("v_add_u32 v248, s66, v2")
    k.e("v_and_b32 v249, 7, v1")
    k.e("v_lshlrev_b32 v249, 3, v249")
    k.e("s_lshl_b32 s97, s3, 7")
    k.e(f"s_add_u32 s97, s97, {FL1_OFF}")
    k.e("s_lshl_b32 s98, s3, 18")
    k.e("s_add_u32 s98, s98, s40")
    k.e("s_add_u32 s99, s5, 1")
    k.e("s_mov_b32 s49, 0")
    k.e("s_lshl_b32 s54, s69, 2")
    k.e("s_and_b32 s55, s70, 3")
    k.e("s_add_u32 s54, s54, s55")
    k.e("s_lshr_b32 s55, s70, 2")
    k.e("v_lshrrev_b32 v251, 3, v1")
    k.e("v_bfe_u32 v16, v251, 1, 1")
    k.e("v_lshlrev_b32 v16, 2, v16")
    k.e("v_and_b32 v17, 7, v1")
    k.e("v_xor_b32 v16, v16, v17")
    k.e("v_lshlrev_b32 v16, 4, v16")
    k.e("v_mul_u32_u24 v251, 896, v251")
    k.e("v_add_u32 v251, v251, v16")
    k.e("s_mul_i32 s100, s55, 112")
    k.e("s_mul_i32 s101, s6, 7168")
    k.e("s_add_u32 s100, s100, s101")
    k.e("s_mov_b32 s101, s100")
    k.e(f"s_add_u32 s43, s61, {WOB + 7*8192}")
    srd(k, 44, "s18", "s19", WO_BYTES)
    k.e("s_lshl_b32 s48, s3, 18")
    k.e("s_lshl_b32 s53, s5, 15")
    k.e("s_add_u32 s48, s48, s53")
    k.e("s_add_u32 s48, s48, s40")
    k.e("s_add_u32 s67, s40, 65536")
    k.e("v_add_u32 v238, s67, v2")
    k.e("s_lshl_b32 s66, s6, 11")
    k.e("s_add_u32 s66, s66, 98304")
    k.e("v_add_u32 v218, s66, v2")
    k.e("v_and_b32 v240, 31, v1")
    k.e("v_mov_b32 v239, 0x3f803f80")
    k.e("v_cmp_eq_u32 vcc, 28, v240")
    k.nop(2)
    k.e("v_cndmask_b32 v239, 0, v239, vcc")
    XR, QA, KA, VA, WF = 64, 16, 32, 48, 176
    KF, VF, QF = 200, 208, 220
    k.stamp("pro")
    WF = 176
    def R(c, vm):
        sl = c % 3
        k.e(f"s_waitcnt vmcnt({vm})")
        k.stamp("pro")
        xb = 8 if sl < 2 else 12
        xo = (sl % 2) * 32768
        for f in range(4):
            k.e(f"ds_read_b128 {vr(XR+(c*4+f)*4)}, v{xb+f} offset:{xo}")
        pieces = []
        if c + 3 <= 6: pieces += x_dma(c + 3)
        if c == 4:
            for n in range(4):
                pieces.append([f"s_add_u32 m0, s40, {WQ + n*1024}", f"s_add_u32 s68, s51, {n*16*2688}", "buffer_load_dwordx4 v6, s[32:35], s68 offen lds"])
            pieces.append(["buffer_load_dwordx2 v[236:237], v235, s[72:75], 0 offen sc1"])
        return pieces
    def wbase():
        k.e("s_lshl_b32 s64, s59, 13")
        k.e("v_add_u32 v242, s64, v232")
        k.e("v_add_u32 v243, s64, v233")
        k.ex(cyc7("s59"))
    def treads(g):
        c, f = divmod(g, 4)
        if f == 0:
            k.e("s_lshl_b32 s64, s59, 13")
            k.e(f"v_add_u32 v{242 + 4*(c&1)}, s64, v232")
            k.e(f"v_add_u32 v{243 + 4*(c&1)}, s64, v233")
            k.ex(cyc7("s59"))
        for seg in range(2):
            for s_ in range(2):
                r = WF + (g % 3)*8 + seg*4 + s_*2
                k.e(f"ds_read_b64_tr_b16 v[{r}:{r+1}], v{242 + 4*(c&1) + seg} offset:{(8*f+4*s_)*128}")
    waits = [6, 6, 5, 5, 5, 5, 5]
    if "notlb" not in EXP: waits = [8, 8, 5, 5, 5, 5, 5]
    for c in range(7):
        sl = c % 3
        k.e(f"s_waitcnt vmcnt({waits[c]})")
        k.stamp("pro")
        if c <= 5: k.e("s_barrier")
        xb = 8 if sl < 2 else 12
        xo = (sl % 2) * 32768
        if c == 0: treads(0)
        for f in range(4):
            k.e(f"ds_read_b128 {vr(XR+(c*4+f)*4)}, v{xb+f} offset:{xo}")
        if c == 0: treads(1)
        pend = []
        if c <= 3: pend.append(w_dma())
        if c + 2 <= 6: pend += x_dma(c + 2)
        if c == 5:
            for n in range(4):
                pend.append([f"s_add_u32 m0, s40, {WQ + n*1024}", f"s_add_u32 s68, s51, {n*16*2688}", "buffer_load_dwordx4 v6, s[32:35], s68 offen lds"])
        if c == 4:
            pend.append(["buffer_load_dwordx2 v[236:237], v235, s[72:75], 0 offen sc1"])
        n = len(pend); cuts = [(n*i)//4 for i in range(5)]
        per = [pend[cuts[i]:cuts[i+1]] for i in range(4)]
        for p in per[0]: k.ex(p)
        for f in range(4):
            g = c*4 + f
            if g + 2 < 28: treads(g + 2)
            if f == 0:
                later = (4 + 4) if c == 0 else (4 if g + 2 < 28 else 0)
            else:
                later = (4 if g + 1 < 28 else 0) + (4 if g + 2 < 28 else 0)
            k.e(f"s_waitcnt lgkmcnt({later})")
            x = XR + g*4; w = WF + (g % 3)*8
            z = "0" if g == 0 else None
            k.e(mfma(KA, w, x, z))
            k.e(mfma(VA, x, w+4, z))
            if f < 3:
                for p in per[f + 1]: k.ex(p)
    k.stamp("q2")
    k.e("s_waitcnt vmcnt(0)")
    k.e("ds_write_b16 v217, v216")
    k.stamp("all" if "q2" not in STAMPSET else "q2")
    def qreads(n):
        c, f = divmod(n, 4)
        if f == 0:
            k.e("s_lshl_b32 s64, s59, 12")
            k.e(f"v_add_u32 v{242 + 4*(c&1)}, s64, v234")
            k.ex(cyc7("s59"))
        for s_ in range(2):
            r = WF + (n & 3)*4 + s_*2
            k.e(f"ds_read_b64_tr_b16 v[{r}:{r+1}], v{242 + 4*(c&1)} offset:{(8*f + 4*s_)*64}")
    k.e("s_mov_b32 s58, 0")
    k.lab("L_nonce")
    k.e("v_readfirstlane_b32 s56, v236")
    k.e("v_readfirstlane_b32 s57, v237")
    k.e("s_add_u32 s58, s58, 1")
    k.e(f"s_cmp_ge_u32 s58, {SPIN_MAX}")
    k.e("s_cbranch_scc1 L_nonce_ok")
    k.e("s_cmp_lg_u32 s56, 0")
    k.e("s_cbranch_scc1 L_nonce_ok")
    k.e("buffer_load_dwordx2 v[236:237], v235, s[72:75], 0 offen sc1")
    k.e("s_waitcnt vmcnt(0)")
    k.e("s_branch L_nonce")
    k.lab("L_nonce_ok")
    k.e("s_waitcnt lgkmcnt(0)")
    k.e("s_barrier")
    k.stamp("q2")
    qreads(0); qreads(1); qreads(2)
    srd(k, 72, "s12", "s13", WO_BYTES)
    k.e("s_mov_b64 exec, s[62:63]")
    for i in (12,13,14): k.e(f"v_mov_b32 v{KA+i}, 1.0")
    k.e(f"v_mov_b32 v{KA+15}, 0")
    k.e("s_mov_b64 exec, -1")
    epi = []
    epi += [[f"v_cvt_pk_bf16_f32 v{KF+i}, v{KA+2*i}, v{KA+2*i+1}" for i in range(8)]]
    epi += [[f"buffer_store_dwordx4 {vr(KF)}, v2, s[36:39], s48 offen sc1", f"buffer_store_dwordx4 {vr(KF+4)}, v2, s[36:39], s48 offen offset:1024 sc1"] +
            [f"v_cvt_pk_bf16_f32 v{VF+i}, v{VA+2*i}, v{VA+2*i+1}" for i in range(8)]]
    epi += [["s_mov_b32 s64, 0xf0000000", "s_mov_b32 s65, 0xf0000000", "s_mov_b64 exec, s[64:65]"] + [f"v_mov_b32 v{VF+i}, v239" for i in range(8)] + ["s_mov_b64 exec, -1",
            f"buffer_store_dwordx4 {vr(VF)}, v2, s[36:39], s48 offen offset:2048 sc1", f"buffer_store_dwordx4 {vr(VF+4)}, v2, s[36:39], s48 offen offset:3072 sc1"]]
    epi += [[f"ds_write_b128 v238, {vr(r)} offset:{i*1024}" for i, r in enumerate((KF, KF+4, VF, VF+4))]]
    for n in range(28):
        if n + 3 < 28: qreads(n + 3)
        later = 2 * min(3, 27 - n)
        if n in (4, 5, 6): later += 4
        k.e(f"s_waitcnt lgkmcnt({later})")
        k.e(mfma(QA, WF + (n & 3)*4, XR + n*4, "0" if n == 0 else None))
        if n < len(epi):
            blk = epi[n]
            if "nostore" in EXP: blk = [x for x in blk if not x.startswith("buffer_store")]
            if "nodsw" in EXP: blk = [x for x in blk if not x.startswith("ds_write")]
            k.ex(blk)
        if n in (5, 13): k.stamp("q2")
    k.stamp("all" if "q2" not in STAMPSET else "q2")
    QR, OA, OB, S0, S1, PR, KR, VR, ST = 16, 32, 48, 64, 80, 96, 104, 120, 136
    GS = 250
    k.e(f"s_mov_b32 s64, {hex(f2u(CSCALE))}")
    k.e("v_mov_b32 v6, v244")
    k.e("v_mov_b32 v7, v245")
    k.e("v_add_u32 v3, 65536, v244")
    k.e("v_mov_b32 v4, v244")
    k.e("v_mov_b32 v5, v245")
    k.e("v_mov_b32 v9, v248")
    k.e("v_mov_b32 v10, v249")
    k.e("v_mov_b32 v11, v251")
    k.nop(3)
    k.e(f"v_mov_b32 v12, v{QA+12}")
    k.e(f"v_mov_b32 v{GS}, v{QA+12}")
    for i in range(12): k.e(f"v_mul_f32 v{QA+i}, s64, v{QA+i}")
    k.e(f"v_permlane32_swap_b32 v12, v{GS}")
    for i in range(6): k.e(f"v_cvt_pk_bf16_f32 v{QF+i}, v{QA+2*i}, v{QA+2*i+1}")
    k.e(f"v_mov_b32 v{QF+6}, 0")
    k.e(f"v_mov_b32 v{QF+7}, 0")
    k.e("s_mov_b32 exec_hi, 0")
    k.e(f"v_mul_f32 v{QA+12}, s64, v{QA+12}")
    k.e(f"v_mul_f32 v{QA+13}, s64, v{QA+13}")
    k.e(f"v_mul_f32 v{QA+14}, s64, v{QA+14}")
    k.e(f"v_mul_f32 v{QA+15}, s64, v{QA+15}")
    k.e(f"v_cvt_pk_bf16_f32 v{QF+6}, v{QA+12}, v{QA+13}")
    k.e(f"v_cvt_pk_bf16_f32 v{QF+7}, v{QA+14}, v{QA+15}")
    k.e("s_mov_b64 exec, -1")
    SS = 96
    k.e(f"v_mul_f32 v{GS}, s60, v{GS}")
    k.e(f"v_exp_f32 v{GS}, v{GS}")
    k.e(mfma(SS, KF, QF, "0"))
    k.e(mfma(SS, KF+4, QF+4))
    k.e(f"v_add_f32 v{GS}, 1.0, v{GS}")
    k.e(f"v_rcp_f32 v{GS}, v{GS}")
    k.e(f"ds_write_b128 v218, {vr(QF)}")
    k.nop(9)
    k.e(f"v_max3_f32 v12, v{SS}, v{SS+1}, v{SS+2}")
    k.e(f"v_max3_f32 v13, v{SS+3}, v{SS+4}, v{SS+5}")
    k.e(f"v_max3_f32 v12, v12, v{SS+6}, v{SS+7}")
    k.e(f"v_max3_f32 v13, v13, v{SS+8}, v{SS+9}")
    k.e(f"v_max3_f32 v12, v12, v{SS+10}, v{SS+11}")
    k.e(f"v_max3_f32 v13, v13, v{SS+12}, v{SS+13}")
    k.e(f"v_max3_f32 v12, v12, v{SS+14}, v{SS+15}")
    k.e("v_max_f32 v12, v12, v13")
    k.e("v_mov_b32 v13, v12")
    k.nop(2)
    k.e("v_permlane32_swap_b32 v12, v13")
    k.nop(1)
    k.e("v_max_f32 v12, v12, v13")
    shift_split(k, 12, 13, 14, 15, QF+6, QF+7)
    k.e(f"ds_write_b128 v218, {vr(QF+4)} offset:1024")
    k.e("s_waitcnt vmcnt(0) lgkmcnt(0)")
    k.e("s_barrier")
    k.e("s_cmp_lg_u32 s6, 0")
    k.e("s_cbranch_scc1 L_noflag1")
    k.e("s_lshl_b32 s66, s3, 7")
    k.e("s_lshl_b32 s67, s5, 3")
    k.e("s_add_u32 s66, s66, s67")
    k.e(f"s_add_u32 s66, s66, {FL1_OFF}")
    k.e("v_mov_b32 v236, s56")
    k.e("v_mov_b32 v237, s57")
    k.e("s_mov_b64 exec, 1")
    k.e("buffer_store_dwordx2 v[236:237], v235, s[36:39], s66 offen sc1")
    k.e("s_mov_b64 exec, -1")
    k.lab("L_noflag1")
    k.stamp("all" if "q2" not in STAMPSET else "q2")
    k.e(f"ds_read_b128 {vr(QR)}, v9")
    k.e(f"ds_read_b128 {vr(QR+4)}, v9 offset:1024")
    k.e(f"ds_read_b128 {vr(KR)}, v3")
    k.e(f"ds_read_b128 {vr(KR+4)}, v3 offset:1024")
    k.e(f"ds_read_b128 {vr(QR+8)}, v9 offset:2048")
    k.e(f"ds_read_b128 {vr(QR+12)}, v9 offset:3072")
    k.e("s_waitcnt lgkmcnt(2)")
    k.e(mfma(S0, KR, QR, "0"))
    k.e(mfma(S0, KR+4, QR+4))
    k.e("s_waitcnt lgkmcnt(0)")
    k.nop(11)
    def Lload():
        if "noload" in EXP: return ["s_add_u32 s99, s99, 1"]
        return ["s_and_b32 s53, s99, 7", "s_lshl_b32 s53, s53, 15", "s_add_u32 s53, s53, s98", "s_add_u32 s99, s99, 1"] + \
               [f"buffer_load_dwordx4 {vr(ST+4*i)}, v2, s[36:39], s53 offen offset:{i*1024} sc1" for i in range(4)]
    def slot(Sbuf, pv, sq, extra, pvmode="acc"):
        e = [f"v_exp_f32 v{Sbuf+i}, v{Sbuf+i}" for i in range(16)]
        c = [f"v_cvt_pk_bf16_f32 v{PR+i}, v{Sbuf+2*i}, v{Sbuf+2*i+1}" for i in range(8)]
        O, V = pv; Sd, Kb, Qb = sq
        mPV0 = mfma(O, V, PR, "0" if pvmode == "zero" else None); mPV1 = mfma(O, V+4, PR+4)
        if pvmode == "skip": mPV0 = "s_nop 0"; mPV1 = "s_nop 0"
        mS0 = mfma(Sd, Kb, Qb, "0"); mS1 = mfma(Sd, Kb+4, Qb+4)
        seq = [mPV0, e[0], e[1], e[2], c[0], e[3], e[4], mS0, c[1], e[5], e[6], e[7], c[2], e[8], mS1, e[9], c[3],
               e[10], e[11], e[12], mPV1, e[13], c[4], e[14], c[5], e[15], c[6], c[7]]
        for pos, x in enumerate(seq):
            k.ex(extra.get(pos, []))
            k.e(x)
    def bdma():
        if "nowo" in EXP: return []
        return ["s_mov_b32 m0, s43", "s_add_u32 s43, s43, 8192", "buffer_load_dwordx4 v11, s[44:47], s101 offen lds", f"s_add_u32 s101, s101, {8*7168}"]
    def wr(i):
        if "nowrite" in EXP: return []
        return [f"ds_write_b128 v5, {vr(ST+4*i)} offset:{i*1024}"]
    def Laddr(): return ["s_and_b32 s53, s99, 7", "s_lshl_b32 s53, s53, 15", "s_add_u32 s53, s53, s98", "s_add_u32 s99, s99, 1", "s_add_u32 s68, s67, s40"]
    def Lp(i):
        if "noload" in EXP: return []
        return ["s_mov_b32 m0, s68", "s_nop 0", f"buffer_load_dwordx4 v2, s[36:39], s53 offen offset:{i*1024} sc1 lds"]
    def rot(): return ["s_add_u32 s67, s67, 32768", "s_cmp_eq_u32 s67, 98304", "s_cselect_b32 s67, 0, s67"]
    def body(kind):
        for t in range(4):
            kb = KR + (t & 1) * 8; kn = KR + ((t + 1) & 1) * 8
            vb = VR + (t & 1) * 8; vp = VR + ((t + 1) & 1) * 8
            exA = {}; exB = {0: ["s_waitcnt lgkmcnt(0)"]}
            def add(d, p, l): d.setdefault(p, []); d[p] = d[p] + l
            if t < 3:
                rk = [f"ds_read_b128 {vr(kn)}, v3 offset:{(t+1)*4096}", f"ds_read_b128 {vr(kn+4)}, v3 offset:{(t+1)*4096+1024}"]
            else:
                rk = [f"ds_read_b128 {vr(kn)}, v4", f"ds_read_b128 {vr(kn+4)}, v4 offset:1024"]
            rv = [f"ds_read_b128 {vr(vb)}, v3 offset:{t*4096+2048}", f"ds_read_b128 {vr(vb+4)}, v3 offset:{t*4096+3072}"]
            late_k = (kind == "first" and t == 3)
            if t == 0 and kind == "last":
                add(exA, 0, ["s_barrier"])
                for n in range(4):
                    add(exA, 4 + 6*n, [f"s_add_u32 m0, s61, {WOB + n*8192}", f"s_add_u32 s64, s100, {n*8*7168}", "buffer_load_dwordx4 v11, s[72:75], s64 offen lds"])
                for n in range(4, 7):
                    add(exB, 4 + 6*(n-4), [f"s_add_u32 m0, s61, {WOB + n*8192}", f"s_add_u32 s64, s100, {n*8*7168}", "buffer_load_dwordx4 v11, s[72:75], s64 offen lds"])
            if kind == "first" and t == 2:
                add(exA, 0, k.stamp_list("loop") + poll_list("L_p1", 10, "s97", 152, True) + k.stamp_list("loop") + Laddr() + Lp(0))
                add(exA, 8, Lp(1)); add(exA, 16, Lp(2)); add(exA, 24, Lp(3) + rot())
            if late_k:
                exB[0] = ["s_waitcnt vmcnt(0) lgkmcnt(0)", "s_barrier"] + rk
                add(exB, 2, Laddr() + Lp(0)); add(exB, 7, ["s_waitcnt lgkmcnt(0)"])
                add(exB, 9, Lp(1)); add(exB, 15, Lp(2)); add(exB, 21, Lp(3) + rot())
                add(exA, 5, [rv[0]]); add(exA, 8, [rv[1]])
            else:
                add(exA, 1, [rk[0]]); add(exA, 3, [rk[1]]); add(exA, 5, [rv[0]]); add(exA, 8, [rv[1]])
            if kind == "mid1" and t == 0:
                add(exA, 12, bdma()); add(exB, 12, bdma());
            if kind == "mid1" and t == 1:
                add(exA, 12, bdma()); add(exB, 12, bdma())
            if kind in ("mid", "mid1", "c6"):
                m = kind != "c6"
                if t == 0 and kind in ("mid", "c6"):
                    add(exA, 14, Lp(2)); add(exB, 14, Lp(3) + rot())
                if t == 2 and kind == "mid": add(exA, 14, bdma())
                if t == 3:
                    nyoung = 1 if kind == "mid" else (4 if kind == "mid1" else 0)
                    add(exA, 0, [f"s_waitcnt vmcnt({nyoung}) lgkmcnt(0)"] + ([] if "nobar" in EXP else ["s_barrier"]))
                    if m: add(exA, 10, Laddr() + Lp(0)); add(exB, 10, Lp(1))
                    if not m:
                        add(exA, 10, ["v_lshrrev_b32 v12, 3, v1", "v_lshlrev_b32 v12, 6, v12", "v_and_b32 v13, 7, v1", "v_add_u32 v12, v12, v13", "v_mul_u32_u24 v12, 896, v12",
                                      "buffer_load_dword v240, v12, s[72:75], s100 offen"])
                        add(exB, 10, ["buffer_load_dword v241, v12, s[72:75], s100 offen offset:124"])
            if t == 3 and kind != "last":
                add(exB, 20, ["v_mov_b32 v3, v4", "s_add_u32 s49, s49, 32768", "s_cmp_eq_u32 s49, 98304", "s_cselect_b32 s49, 0, s49"])
                add(exB, 22, ["v_add_u32 v4, s49, v6"])
                if kind == "mid":
                    add(exB, 24, ["s_add_u32 s48, s48, 1"]); add(exB, 26, ["s_cmp_lt_u32 s48, 6"])
            fa = "skip" if (kind == "first" and t == 0) else "zero" if (kind == "first" and t == 1) else "acc"
            fb = "zero" if (kind == "first" and t == 0) else "acc"
            slot(S0, (OB, vp), (S1, kb, QR+8), exA, fa)
            slot(S1, (OA, vb), (S0, kn, QR), exB, fb)
    k.e("s_mov_b32 s67, 0")
    body("first")
    k.stamp("loop2")
    body("mid1")
    k.e("s_mov_b32 s48, 2")
    k.e(".p2align 6")
    k.lab("L_loop")
    body("mid")
    k.e("s_cbranch_scc1 L_loop")
    k.stamp("loop2")
    body("c6")
    k.stamp("loop2")
    body("last")
    k.stamp()
    k.nop(2)
    k.e(mfma(OB, VR+8, PR))
    k.e(mfma(OB, VR+12, PR+4))
    k.e("v_add_u32 v11, s40, v2")
    k.e("s_xor_b32 s29, s6, 1")
    k.e("s_lshl_b32 s29, s29, 12")
    k.e("v_add_u32 v12, s29, v2")
    k.e("s_lshl_b32 s29, s41, 16")
    k.e("s_lshl_b32 s30, s3, 11")
    k.e("s_add_u32 s29, s29, s30")
    k.e(f"s_add_u32 s29, s29, {OF_OFF}")
    k.e("s_barrier")
    k.nop(4)
    k.e("s_cmp_eq_u32 s96, 0")
    k.e("s_cbranch_scc0 L_x1")
    for i in range(4): k.e(f"ds_write_b128 v11, {vr(OB+4*i)} offset:{i*1024}")
    k.e("s_waitcnt lgkmcnt(0)")
    k.e("s_barrier")
    for i in range(4): k.e(f"ds_read_b128 {vr(S0+4*i)}, v12 offset:{i*1024}")
    for i in range(16):
        if i % 4 == 0: k.e(f"s_waitcnt lgkmcnt({3 - i//4})")
        k.e(f"v_add_f32 v{OA+i}, v{OA+i}, v{S0+i}")
    k.e("s_branch L_xd")
    k.lab("L_x1")
    for i in range(4): k.e(f"ds_write_b128 v11, {vr(OA+4*i)} offset:{i*1024}")
    k.e("s_waitcnt lgkmcnt(0)")
    k.e("s_barrier")
    for i in range(4): k.e(f"ds_read_b128 {vr(S0+4*i)}, v12 offset:{i*1024}")
    for i in range(16):
        if i % 4 == 0: k.e(f"s_waitcnt lgkmcnt({3 - i//4})")
        k.e(f"v_add_f32 v{OA+i}, v{OB+i}, v{S0+i}")
    k.lab("L_xd")
    k.e("s_mov_b32 s59, 0")
    k.lab("L_norm")
    k.e("s_mov_b32 s64, 0x203")
    k.e(f"v_mov_b32 v13, v{OA+12}")
    k.e(f"v_mov_b32 v14, v{OA+12}")
    k.e(f"v_maximum3_f32 v15, |v{OA}|, |v{OA+1}|, |v{OA+2}|")
    k.e(f"v_maximum3_f32 v15, |v{OA+3}|, |v{OA+4}|, v15")
    k.e("v_permlane32_swap_b32 v13, v14")
    for i in range(5, 15, 2): k.e(f"v_maximum3_f32 v15, |v{OA+i}|, |v{OA+i+1}|, v15")
    k.e("v_rcp_f32 v13, v14")
    k.e(f"v_maximum3_f32 v15, |v{OA+15}|, |v14|, v15")
    k.e(f"v_mul_f32 v13, v13, v{GS}")
    k.e("v_cmp_class_f32 vcc, v15, s64")
    for i in range(12): k.e(f"v_mul_f32 v{OA+i}, v{OA+i}, v13")
    k.e("s_cmp_lg_u32 s59, 0")
    k.e("s_cbranch_scc1 L_norm_ok")
    k.e("s_cmp_lg_u64 vcc, 0")
    k.e("s_cbranch_scc1 L_fallback")
    k.lab("L_norm_ok")
    for i in range(12, 16): k.e(f"v_mul_f32 v{OA+i}, v{OA+i}, v13")
    k.e("s_mov_b64 exec, s[62:63]")
    for i in (12,13,14,15): k.e(f"v_mov_b32 v{OA+i}, 0")
    k.e("s_mov_b64 exec, -1")
    for i in range(4): k.e(f"v_cvt_pk_bf16_f32 v{PR+i}, v{OA+2*i}, v{OA+2*i+1}")
    k.e(f"buffer_store_dwordx4 {vr(PR)}, v2, s[36:39], s29 offen sc1")
    for i in range(4, 8): k.e(f"v_cvt_pk_bf16_f32 v{PR+i}, v{OA+2*i}, v{OA+2*i+1}")
    k.e(f"buffer_store_dwordx4 {vr(PR+4)}, v2, s[36:39], s29 offen offset:1024 sc1")
    k.e("s_lshr_b32 s7, s6, 2")
    k.e("s_and_b32 s28, s6, 3")
    k.e("v_lshrrev_b32 v5, 5, v1")
    k.e("v_lshlrev_b32 v5, 2, v5")
    k.e("v_bfe_u32 v6, v1, 2, 2")
    k.e("v_add_u32 v5, v5, v6")
    k.e("v_lshlrev_b32 v5, 7, v5")
    k.e("v_bfe_u32 v7, v1, 4, 1")
    k.e("v_lshlrev_b32 v7, 1, v7")
    k.e("v_bfe_u32 v8, v1, 1, 1")
    k.e("v_add_u32 v7, v7, v8")
    k.e("v_bfe_u32 v8, v6, 1, 1")
    k.e("v_lshlrev_b32 v8, 2, v8")
    k.e("v_xor_b32 v7, v7, v8")
    k.e("v_lshlrev_b32 v7, 4, v7")
    k.e("v_add_u32 v5, v5, v7")
    k.e("v_and_b32 v7, 1, v1")
    k.e("v_lshlrev_b32 v7, 3, v7")
    k.e("v_add_u32 v5, v5, v7")
    k.e("v_xor_b32 v6, 64, v5")
    k.e("s_mul_i32 s29, s28, 28672")
    k.e(f"s_add_u32 s29, s29, {WOB}")
    k.e("v_add_u32 v5, s29, v5")
    k.e("v_add_u32 v6, s29, v6")
    k.e("v_mov_b32 v13, 0")
    k.e("v_and_b32 v10, 31, v1")
    k.e("v_lshlrev_b32 v11, 3, v10")
    k.e("s_lshr_b32 s66, s54, 2")
    k.e("s_lshl_b32 s66, s66, 8")
    k.e(f"s_add_u32 s66, s66, {FL2_OFF}")
    k.e("s_lshl_b32 s32, s54, 1")
    k.e("s_add_u32 s32, s32, s7")
    k.e("s_lshl_b32 s33, s32, 16")
    k.e("s_lshl_b32 s34, s28, 14")
    k.e("s_add_u32 s33, s33, s34")
    k.e(f"s_add_u32 s33, s33, {OF_OFF}")
    k.e("s_lshl_b32 s29, s7, 15")
    k.e("s_lshl_b32 s30, s28, 12")
    k.e("s_add_u32 s29, s29, s30")
    k.e("v_add_u32 v16, s29, v2")
    k.e("s_bfe_u32 s29, s6, 0x10001")
    k.e("s_and_b32 s30, s6, 1")
    k.e("s_lshl_b32 s31, s7, 15")
    k.e("s_lshl_b32 s34, s29, 14")
    k.e("s_add_u32 s31, s31, s34")
    k.e("s_lshl_b32 s34, s30, 11")
    k.e("s_add_u32 s31, s31, s34")
    k.e("v_add_u32 v17, s31, v2")
    k.e("v_mul_u32_u24 v18, 896, v10")
    k.e("v_lshrrev_b32 v12, 5, v1")
    k.e("v_lshlrev_b32 v12, 4, v12")
    k.e("v_add_u32 v18, v18, v12")
    k.e("s_lshl_b32 s31, s29, 6")
    k.e("s_lshl_b32 s34, s30, 5")
    k.e("s_add_u32 s31, s31, s34")
    k.e("v_add_u32 v12, s31, v12")
    k.e("v_cmp_gt_u32 vcc, 112, v12")
    k.e("s_mul_i32 s34, s55, 112")
    k.e("s_add_u32 s31, s31, s34")
    k.e("s_mul_i32 s34, s32, 28672")
    k.e("s_add_u32 s31, s31, s34")
    k.e("v_mov_b32 v19, 0x7fffffff")
    k.e("v_cndmask_b32 v18, v19, v18, vcc")
    srd(k, 48, "s22", "s23", OUT_BYTES)
    k.e("s_waitcnt vmcnt(0)")
    k.e("s_barrier")
    k.stamp()
    k.e("s_cmp_lg_u32 s6, 0")
    k.e("s_cbranch_scc1 L_noflag2")
    k.e("s_lshl_b32 s64, s5, 8")
    k.e("s_lshl_b32 s67, s3, 3")
    k.e("s_add_u32 s64, s64, s67")
    k.e(f"s_add_u32 s64, s64, {FL2_OFF}")
    k.e("v_mov_b32 v14, s56")
    k.e("v_mov_b32 v15, s57")
    k.e("s_mov_b64 exec, 1")
    k.e("buffer_store_dwordx2 v[14:15], v13, s[36:39], s64 offen sc1")
    k.e("s_mov_b64 exec, -1")
    k.lab("L_noflag2")
    k.ex(poll_list("L_p2", 11, "s66", 14, False))
    k.stamp()
    OR = 64
    for i in range(16):
        if i % 4 == 0 and i > 0: k.e("s_add_u32 s33, s33, 4096")
        k.e(f"buffer_load_dwordx4 {vr(OR+4*i)}, v2, s[36:39], s33 offen offset:{(i%4)*1024} sc1")
    A0, A1, WF3 = 32, 48, 128
    steps = [(hh, m) for hh in range(8) for m in range(2)]
    def treads3(hh, m, buf):
        for ct in range(2):
            for s_ in range(2):
                r = WF3 + buf*8 + ct*4 + s_*2
                k.e(f"ds_read_b64_tr_b16 v[{r}:{r+1}], v{5+ct} offset:{(hh*28 + 16*m + 8*s_) * 128}")
    treads3(*steps[0], 0)
    for i, (hh, m) in enumerate(steps):
        if i + 1 < len(steps):
            treads3(*steps[i+1], (i+1) & 1)
            k.e(f"s_waitcnt vmcnt({15-i}) lgkmcnt(4)")
        else:
            k.e(f"s_waitcnt vmcnt({15-i}) lgkmcnt(0)")
        w = WF3 + (i & 1)*8
        z = "0" if i == 0 else None
        k.e(mfma(A0, w, OR+4*i, z))
        k.e(mfma(A1, w+4, OR+4*i, z))
    k.stamp()
    k.e("s_barrier")
    k.nop(10)
    for q in range(4): k.e(f"ds_write_b128 v16, {vr(A0+4*q)} offset:{q*1024}")
    for q in range(4): k.e(f"ds_write_b128 v16, {vr(A1+4*q)} offset:{16384+q*1024}")
    k.e("s_waitcnt lgkmcnt(0)")
    k.e("s_barrier")
    for kq in range(4):
        for q in range(2):
            k.e(f"ds_read_b128 {vr(64+kq*8+q*4)}, v17 offset:{kq*4096+q*1024}")
    k.e("s_waitcnt lgkmcnt(4)")
    for i in range(8): k.e(f"v_add_f32 v{64+i}, v{64+i}, v{72+i}")
    k.e("s_waitcnt lgkmcnt(0)")
    for i in range(8): k.e(f"v_add_f32 v{80+i}, v{80+i}, v{88+i}")
    for i in range(8): k.e(f"v_add_f32 v{64+i}, v{64+i}, v{80+i}")
    for i in range(4): k.e(f"v_cvt_pk_bf16_f32 v{20+i}, v{64+2*i}, v{65+2*i}")
    k.nop(2)
    k.e("v_permlane32_swap_b32 v20, v22")
    k.e("v_permlane32_swap_b32 v21, v23")
    k.nop(1)
    k.e("buffer_store_dwordx4 v[20:23], v18, s[48:51], s31 offen")
    k.stamp()
    k.stamp_flush()
    k.lab("L_end")
    k.e("s_endpgm")
    k.lab("L_fallback")
    k.e("s_mov_b32 s59, 1")
    k.e("s_and_b32 s30, s6, 1")
    k.e("s_cmp_eq_u32 s30, 0")
    k.e("s_cbranch_scc1 L_fbq")
    for i in range(8): k.e(f"v_mov_b32 v{QR+i}, v{QR+8+i}")
    k.lab("L_fbq")
    k.e("s_mov_b64 exec, s[62:63]")
    k.e(f"v_mov_b32 v{QR+6}, 0")
    k.e(f"v_mov_b32 v{QR+7}, 0")
    k.e("s_mov_b64 exec, -1")
    k.e("v_mov_b32 v13, 0xff800000")
    k.e("s_lshl_b32 s64, s3, 18")
    k.e("s_mov_b32 s30, 0")
    k.lab("L_fb1")
    k.e(f"buffer_load_dwordx4 {vr(KR)}, v2, s[36:39], s64 offen sc1")
    k.e(f"buffer_load_dwordx4 {vr(KR+4)}, v2, s[36:39], s64 offen offset:1024 sc1")
    k.e("s_waitcnt vmcnt(0)")
    k.e(mfma(S0, KR, QR, "0"))
    k.e(mfma(S0, KR+4, QR+4))
    k.nop(12)
    for i in range(0, 16, 2): k.e(f"v_max3_f32 v13, v13, v{S0+i}, v{S0+i+1}")
    k.e("s_add_u32 s64, s64, 4096")
    k.e("s_add_u32 s30, s30, 1")
    k.e("s_cmp_lt_u32 s30, 64")
    k.e("s_cbranch_scc1 L_fb1")
    k.e("v_mov_b32 v14, v13")
    k.nop(2)
    k.e("v_permlane32_swap_b32 v13, v14")
    k.nop(1)
    k.e("v_max_f32 v13, v13, v14")
    shift_split(k, 13, 14, 15, 12, QR+6, QR+7)
    for i in range(16): k.e(f"v_mov_b32 v{OA+i}, 0")
    k.e("s_lshl_b32 s64, s3, 18")
    k.e("s_mov_b32 s30, 0")
    k.lab("L_fb2")
    k.e(f"buffer_load_dwordx4 {vr(KR)}, v2, s[36:39], s64 offen sc1")
    k.e(f"buffer_load_dwordx4 {vr(KR+4)}, v2, s[36:39], s64 offen offset:1024 sc1")
    k.e(f"buffer_load_dwordx4 {vr(VR)}, v2, s[36:39], s64 offen offset:2048 sc1")
    k.e(f"buffer_load_dwordx4 {vr(VR+4)}, v2, s[36:39], s64 offen offset:3072 sc1")
    k.e("s_waitcnt vmcnt(0)")
    k.e(mfma(S0, KR, QR, "0"))
    k.e(mfma(S0, KR+4, QR+4))
    k.nop(12)
    for i in range(16): k.e(f"v_exp_f32 v{S0+i}, v{S0+i}")
    k.nop(1)
    for i in range(8): k.e(f"v_cvt_pk_bf16_f32 v{PR+i}, v{S0+2*i}, v{S0+2*i+1}")
    k.nop(2)
    k.e(mfma(OA, VR, PR))
    k.e(mfma(OA, VR+4, PR+4))
    k.e("s_add_u32 s64, s64, 4096")
    k.e("s_add_u32 s30, s30, 1")
    k.e("s_cmp_lt_u32 s30, 64")
    k.e("s_cbranch_scc1 L_fb2")
    k.nop(12)
    k.e("s_branch L_norm")
    return k.l, dict(vgpr=252, sgpr=100, lds=163840, block=512)

def main(outpath):
    l, m = gen()
    o = [f"; gated_mix mha block, fused single launch (projection -> attention -> output projection, flag hand-offs). Generated by my own generator script.",
         f"; @launch grid=(256,1,1) block=({m['block']},1,1) lds={m['lds']}",
         '.amdgcn_target "amdgcn-amd-amdhsa--gfx950"', ".text", f".globl {KNAME}", ".p2align 8", f".type {KNAME},@function"] + l
    acc = (m['vgpr'] + 3) // 4 * 4
    o += ['.section .rodata,"a"', ".p2align 6", f".amdhsa_kernel {KNAME}", f"  .amdhsa_next_free_vgpr {m['vgpr']}", f"  .amdhsa_next_free_sgpr {m['sgpr']}",
          f"  .amdhsa_accum_offset {acc}", "  .amdhsa_group_segment_fixed_size 0", "  .amdhsa_kernarg_size 80",
          "  .amdhsa_user_sgpr_count 2", "  .amdhsa_user_sgpr_kernarg_segment_ptr 1", "  .amdhsa_system_sgpr_workgroup_id_x 1", ".end_amdhsa_kernel"]
    open(outpath, "w").write("\n".join(o) + "\n")

if __name__ == "__main__":
    main(sys.argv[1] if len(sys.argv) > 1 else f"cdna_kernels/{NAME}.s")
```

```python
import sys, math, os, struct

NAME = "gated_mix__mha_block__softmax_full_mha__prompt"
KNAME = NAME + "_kernel"
X_BYTES = 2048 * 448 * 2
W_BYTES = 448 * 1344 * 2
WO_BYTES = 448 * 448 * 2
OUT_BYTES = 2048 * 448 * 2
KV_OFF = 0
OF_OFF = 8 << 20
FL1_OFF = (12 << 20) + 8192
FL2_OFF = (12 << 20) + 16384
STAMP_OFF = 13 << 20
WS_USED = 14 << 20
LOG2E = math.log2(math.e)
CSCALE = (28 ** -0.5) * LOG2E
STAMP = int(os.environ.get("STAMP", "0"))
STAMPSET = os.environ.get("STAMPSET", "all").split(",")
EXP = os.environ.get("EXP", "").split(",")
SPIN_MAX = 1 << 18
TICKET = int(os.environ.get("TICKET", "1"))
PF0 = int(os.environ.get("PF0", "1"))
def f2u(x): return struct.unpack('<I', struct.pack('<f', x))[0]

class K:
    def __init__(s): s.l = []; s.ns = 0
    def e(s, t):
        if t.endswith(":"): s.l.append(t)
        else: s.l.append("  " + t)
    def ex(s, ts):
        for t in ts: s.e(t)
    def lab(s, t): s.l.append(t + ":")
    def nop(s, n):
        while n > 0:
            k = min(n, 16); s.e(f"s_nop {k-1}"); n -= k
    def stamp(s, tag="all"):
        if not STAMP: return
        if tag not in STAMPSET and s.ns > 0: return
        i = s.ns; s.ns += 1
        assert i < 14
        if i == 0:
            s.e("s_memrealtime s[76:77]"); s.e("s_waitcnt lgkmcnt(0)"); s.e("s_mov_b32 s94, s76")
        s.e("s_memrealtime s[76:77]" if os.environ.get("STAMPRT") else "s_memtime s[76:77]"); s.e("s_waitcnt lgkmcnt(0)"); s.e(f"s_mov_b32 s{80+i}, s76")
    def stamp_list(s, tag):
        save = s.l; s.l = []
        s.stamp(tag)
        out = [x.strip() for x in s.l]; s.l = save
        return out
    def stamp_flush(s):
        if not STAMP: return
        if os.environ.get("STAMPDBG") == "multi":
            ia, ib = [int(x) for x in os.environ.get("STAMPIDX", "0,7").split(",")]
            base = int(os.environ.get("STAMPBASE", "248"))
            s.e(f"s_sub_u32 s78, s2, {base+1}"); s.e("s_cmp_ge_u32 s78, 7"); s.e("s_cbranch_scc1 L_nodbg"); s.e("s_cmp_lg_u32 s6, 0"); s.e("s_cbranch_scc1 L_nodbg")
            s.e("s_mov_b32 s72, s24"); s.e("s_mov_b32 s73, s25"); s.e("s_mov_b32 s74, 256"); s.e("s_mov_b32 s75, 0x20000")
            s.e("s_lshl_b32 s78, s78, 3"); s.e("s_add_u32 s78, s78, 8")
            s.e("v_mov_b32 v0, 0"); s.e("s_mov_b64 exec, 1")
            s.e(f"s_sub_u32 s79, s{80+ia}, s56"); s.e("v_mov_b32 v2, s79"); s.e(f"s_sub_u32 s79, s{80+ib}, s56"); s.e("v_mov_b32 v3, s79")
            s.e("buffer_store_dwordx2 v[2:3], v0, s[72:75], s78 offen")
            s.e("s_mov_b64 exec, -1")
            s.lab("L_nodbg")
            return
        if os.environ.get("STAMPDBG"):
            wgid = int(os.environ["STAMPDBG"])
            s.e(f"s_cmp_lg_u32 s2, {wgid}"); s.e("s_cbranch_scc1 L_nodbg"); s.e("s_cmp_lg_u32 s6, 0"); s.e("s_cbranch_scc1 L_nodbg")
            s.e("s_mov_b32 s72, s24"); s.e("s_mov_b32 s73, s25"); s.e("s_mov_b32 s74, 256"); s.e("s_mov_b32 s75, 0x20000")
            s.e("v_mov_b32 v0, 0"); s.e("s_mov_b64 exec, 1")
            for i in range(14):
                s.e(f"s_sub_u32 s78, s{80+i}, s80")
                s.e(f"v_mov_b32 v1, s78")
                s.e(f"buffer_store_dword v1, v0, s[72:75], 0 offen offset:{8+4*i}")
                s.e("s_nop 1")
            s.e("s_mov_b64 exec, -1")
            s.lab("L_nodbg")
            return
        s.e("s_lshl_b32 s78, s2, 3"); s.e("s_add_u32 s78, s78, s6"); s.e("s_lshl_b32 s78, s78, 6")
        s.e(f"s_add_u32 s78, s78, {STAMP_OFF}")
        s.e("s_memrealtime s[76:77]"); s.e("s_waitcnt lgkmcnt(0)"); s.e("s_mov_b32 s95, s76")
        s.e("v_mov_b32 v0, 0"); s.e("s_mov_b64 exec, 1")
        for i in range(16):
            s.e(f"v_mov_b32 v1, s{80+i}")
            s.e(f"buffer_store_dword v1, v0, s[36:39], s78 offen offset:{4*i}")
            s.e("s_nop 1")
        s.e("s_mov_b64 exec, -1")

def vr(b, n=4): return f"v[{b}:{b+n-1}]"
def mfma(d, a, b, c=None):
    cc = vr(d, 16) if c is None else c
    return f"v_mfma_f32_32x32x16_bf16 {vr(d,16)}, {vr(a)}, {vr(b)}, {cc}"
def srd(k, b, lo, hi, nbytes):
    k.e(f"s_mov_b32 s{b}, {lo}"); k.e(f"s_mov_b32 s{b+1}, {hi}"); k.e(f"s_mov_b32 s{b+2}, {nbytes}"); k.e(f"s_mov_b32 s{b+3}, 0x20000")
def cyc7(r): return [f"s_add_u32 {r}, {r}, 1", f"s_cmp_eq_u32 {r}, 7", f"s_cselect_b32 {r}, 0, {r}"]

def shift_split(k, m, t1, t2, t3, q6, q7):
    k.e(f"v_sub_f32 v{m}, 0, v{m}")
    k.e(f"v_cvt_pk_bf16_f32 v{t1}, v{m}, v{m}")
    k.e(f"v_and_b32 v{t1}, 0xffff0000, v{t1}")
    k.e(f"v_sub_f32 v{t2}, v{m}, v{t1}")
    k.e(f"v_cvt_pk_bf16_f32 v{t3}, v{t2}, v{t2}")
    k.e(f"v_and_b32 v{t3}, 0xffff0000, v{t3}")
    k.e(f"v_sub_f32 v{t2}, v{t2}, v{t3}")
    k.e(f"v_mov_b32 v{m}, 0")
    k.e("s_mov_b64 exec, s[62:63]")
    k.e(f"v_cvt_pk_bf16_f32 v{q6}, v{t1}, v{t3}")
    k.e(f"v_cvt_pk_bf16_f32 v{q7}, v{t2}, v{m}")
    k.e("s_mov_b64 exec, -1")

def poll_list(label, voff, soff, vtmp, first_issued):
    o = ["s_cmp_lg_u32 s6, 0", f"s_cbranch_scc1 {label}_done", "s_mov_b32 s58, 0", f"{label}:",
         f"buffer_load_dwordx2 v[{vtmp}:{vtmp+1}], v{voff}, s[36:39], {soff} offen sc1",
         "s_waitcnt vmcnt(0)", f"v_cmp_eq_u64 vcc, s[56:57], v[{vtmp}:{vtmp+1}]", "s_add_u32 s58, s58, 1",
         f"s_cmp_ge_u32 s58, {SPIN_MAX}", f"s_cbranch_scc1 {label}_done", "s_cmp_eq_u64 vcc, exec", f"s_cbranch_scc1 {label}_done",
         "s_sleep 1", f"s_branch {label}", f"{label}_done:", "s_barrier"]
    return o

def gen():
    k = K()
    k.lab(KNAME)
    k.e("s_cmp_ge_u32 s2, 256")
    k.e("s_cbranch_scc1 L_end")
    k.e("s_load_dwordx16 s[8:23], s[0:1], 0")
    k.e("s_load_dwordx4 s[24:27], s[0:1], 64")
    k.e("v_and_b32 v1, 63, v0")
    k.e("v_lshrrev_b32 v2, 6, v0")
    k.e("s_getreg_b32 s69, hwreg(HW_REG_XCC_ID)")
    k.e("s_getreg_b32 s70, hwreg(HW_REG_HW_ID)")
    k.e("v_readfirstlane_b32 s6, v2")
    k.e("s_and_b32 s69, s69, 7")
    k.stamp()
    k.e("v_lshlrev_b32 v2, 4, v1")
    XS, WKV, WQ, WOB = 0, 98304, 32768, 40960
    k.e("v_lshrrev_b32 v3, 3, v1")
    k.e("v_lshrrev_b32 v4, 1, v3")
    k.e("v_and_b32 v5, 7, v1")
    k.e("v_xor_b32 v4, v4, v5")
    k.e("v_lshlrev_b32 v4, 4, v4")
    k.e("v_mul_u32_u24 v3, 896, v3")
    k.e("v_add_u32 v3, v3, v4")
    k.e("v_xor_b32 v4, 64, v3")
    k.e("v_lshrrev_b32 v5, 3, v1")
    k.e("v_bfe_u32 v6, v1, 2, 1")
    k.e("v_bfe_u32 v7, v1, 4, 1")
    k.e("v_xor_b32 v6, v6, v7")
    k.e("v_mul_u32_u24 v6, 896, v6")
    k.e("v_mul_u32_u24 v5, 2688, v5")
    k.e("v_add_u32 v5, v5, v6")
    k.e("v_and_b32 v6, 3, v1")
    k.e("v_lshlrev_b32 v6, 4, v6")
    k.e("v_add_u32 v5, v5, v6")
    k.e("v_add_u32 v5, 896, v5")
    k.e("v_lshrrev_b32 v7, 2, v1")
    k.e("v_mul_u32_u24 v7, 2688, v7")
    k.e("v_add_u32 v6, v7, v6")
    k.e("s_lshl_b32 s40, s6, 12")
    k.e("s_lshl_b32 s61, s6, 10")
    if TICKET:
        k.e("s_bfe_u32 s4, s70, 0x2000d")
        k.e("s_lshl_b32 s4, s4, 3")
        k.e("s_bfe_u32 s5, s70, 0x30008")
        k.e("s_add_u32 s70, s4, s5")
        k.e("v_mov_b32 v9, 0")
        k.e("v_mov_b32 v8, 1")
        k.e("s_waitcnt lgkmcnt(0)")
        srd(k, 72, "s24", "s25", 256)
        srd(k, 28, "s8", "s9", X_BYTES)
        k.e("s_cmp_lg_u32 s6, 0")
        k.e("s_cbranch_scc1 L_tk0")
        k.e("s_lshl_b32 s64, s69, 5")
        k.e("s_add_u32 s64, s64, 16")
        k.e("s_mov_b64 exec, 1")
        k.e("buffer_atomic_add v8, v9, s[72:75], s64 offen sc0 sc1")
        k.e("s_mov_b64 exec, -1")
        k.lab("L_tk0")
        if PF0:
            k.e("s_cmp_ge_u32 s69, 4")
            k.e("s_cselect_b32 s32, s16, s10")
            k.e("s_cselect_b32 s33, s17, s11")
            k.e(f"s_mov_b32 s34, {W_BYTES}")
            k.e("s_mov_b32 s35, 0x20000")
            k.e("s_cmp_ge_u32 s6, 4")
            k.e("s_cbranch_scc1 L_pfw")
            k.e("s_mul_i32 s68, s70, 224")
            k.e("s_mul_i32 s71, s6, 56")
            k.e("s_add_u32 s68, s68, s71")
            k.e("s_lshl_b32 s68, s68, 7")
            k.e("s_and_b32 s71, s69, 1")
            k.e("s_mul_i32 s71, s71, 917504")
            k.e("s_add_u32 s68, s68, s71")
            k.e("v_lshlrev_b32 v10, 7, v1")
            k.e("s_mov_b32 exec_hi, 0x00ffffff")
            k.e("buffer_load_dword v240, v10, s[28:31], s68 offen")
            k.e("s_branch L_pfd")
            k.lab("L_pfw")
            k.e("s_mul_i32 s68, s70, 168")
            k.e("s_sub_u32 s71, s6, 4")
            k.e("s_mul_i32 s71, s71, 42")
            k.e("s_add_u32 s68, s68, s71")
            k.e("v_add_u32 v10, s68, v1")
            k.e("v_lshrrev_b32 v11, 2, v10")
            k.e("v_mul_u32_u24 v11, 896, v11")
            k.e("v_and_b32 v10, 3, v10")
            k.e("v_lshlrev_b32 v10, 7, v10")
            k.e("v_add_u32 v10, v10, v11")
            k.e("s_bfe_u32 s71, s69, 0x10001")
            k.e("s_mul_i32 s71, s71, 384")
            k.e("s_mov_b32 exec_hi, 0x3ff")
            k.e("buffer_load_dword v240, v10, s[32:35], s71 offen")
            k.lab("L_pfd")
            k.e("s_mov_b64 exec, -1")
        k.e("s_cmp_lg_u32 s6, 0")
        k.e("s_cbranch_scc1 L_tk1")
        k.e("s_mov_b32 s58, 0")
        k.e(f"s_waitcnt vmcnt({1 if PF0 else 0})")
        k.lab("L_tkl")
        k.e("v_readfirstlane_b32 s70, v8")
        k.e("s_add_u32 s58, s58, 1")
        k.e("s_cmp_lt_u32 s70, 32")
        k.e("s_cbranch_scc1 L_tkd")
        k.e("s_cmp_ge_u32 s58, 64")
        k.e("s_cbranch_scc1 L_tkd")
        k.e("s_add_u32 s69, s69, 1")
        k.e("s_and_b32 s69, s69, 7")
        k.e("s_lshl_b32 s64, s69, 5")
        k.e("s_add_u32 s64, s64, 16")
        k.e("v_mov_b32 v8, 1")
        k.e("s_mov_b64 exec, 1")
        k.e("buffer_atomic_add v8, v9, s[72:75], s64 offen sc0 sc1")
        k.e("s_mov_b64 exec, -1")
        k.e("s_waitcnt vmcnt(0)")
        k.e("s_branch L_tkl")
        k.lab("L_tkd")
        k.e("s_and_b32 s70, s70, 31")
        k.e("s_lshl_b32 s64, s70, 3")
        k.e("s_or_b32 s64, s64, s69")
        k.e("v_mov_b32 v8, s64")
        k.e("v_mov_b32 v9, 163832")
        k.e("ds_write_b32 v9, v8")
        k.e("s_waitcnt lgkmcnt(0)")
        k.lab("L_tk1")
        k.e("s_barrier")
        k.e("v_mov_b32 v9, 163832")
        k.e("ds_read_b32 v8, v9")
        k.e("s_waitcnt lgkmcnt(0)")
        k.e("v_readfirstlane_b32 s64, v8")
        k.nop(1)
        k.e("s_and_b32 s69, s64, 7")
        k.e("s_lshr_b32 s70, s64, 3")
    else:
        k.e("s_and_b32 s69, s2, 7")
        k.e("s_lshr_b32 s70, s2, 3")
    k.e("s_lshr_b32 s3, s69, 1")
    k.e("s_lshl_b32 s3, s3, 3")
    k.e("s_and_b32 s4, s70, 7")
    k.e("s_add_u32 s3, s3, s4")
    k.e("s_and_b32 s5, s69, 1")
    k.e("s_lshl_b32 s5, s5, 2")
    k.e("s_lshr_b32 s4, s70, 3")
    k.e("s_add_u32 s5, s5, s4")
    k.e("s_and_b32 s7, s3, 15")
    k.e("s_lshl_b32 s41, s5, 3")
    k.e("s_add_u32 s41, s41, s6")
    k.e("s_mul_i32 s42, s41, 28672")
    k.e("s_mul_i32 s43, s7, 56")
    k.e("s_cmp_eq_u32 s7, 15")
    k.e("s_cselect_b32 s4, 8, 0")
    k.e("s_sub_u32 s43, s43, s4")
    k.e("s_mul_i32 s50, s6, 21504")
    k.e("s_add_u32 s50, s50, s43")
    k.e("s_mul_i32 s51, s6, 172032")
    k.e("s_add_u32 s51, s51, s43")
    k.e("s_and_b32 s71, s70, 7")
    k.e("s_lshr_b32 s68, s70, 3")
    k.e("s_lshl_b32 s68, s68, 1")
    k.e("s_add_u32 s71, s71, s68")
    for _ in range(2):
        k.e("s_cmp_ge_u32 s71, 7")
        k.e("s_cselect_b32 s68, 7, 0")
        k.e("s_sub_u32 s71, s71, s68")
    k.e("s_mov_b32 s59, s71")
    k.e("s_mov_b32 s52, s71")
    k.e("s_waitcnt lgkmcnt(0)")
    k.stamp("pro")
    srd(k, 28, "s8", "s9", X_BYTES)
    k.e("s_cmp_ge_u32 s3, 16")
    k.e("s_cselect_b32 s32, s16, s10")
    k.e("s_cselect_b32 s33, s17, s11")
    k.e(f"s_mov_b32 s34, {W_BYTES}")
    k.e("s_mov_b32 s35, 0x20000")
    k.e("s_cselect_b32 s60, 0, 0x80000000")
    k.e(f"s_xor_b32 s60, s60, {hex(f2u(LOG2E))}")
    def w_dma():
        return ["s_lshl_b32 s64, s52, 13", "s_add_u32 s64, s64, s61", f"s_add_u32 m0, s64, {WKV}", "s_mul_i32 s68, s52, 172032",
                "s_add_u32 s68, s68, s50", "buffer_load_dwordx4 v5, s[32:35], s68 offen lds"] + cyc7("s52")
    def x_dma(i):
        sl = i % 3
        p = []
        for q in range(4):
            o = []
            if q == 0: o += [f"s_add_u32 m0, s40, {XS + sl*32768}", "s_lshl_b32 s65, s71, 7", "s_add_u32 s65, s65, s42"]
            else: o += [f"s_add_u32 m0, s40, {XS + sl*32768}", "s_add_u32 s65, s65, 6144"]
            o += [f"buffer_load_dwordx4 v{3 + (q&1)}, s[28:31], s65 offen offset:{q*1024} lds"]
            if q == 3: o += cyc7("s71")
            p.append(o)
        return p
    k.ex(w_dma())
    for p in x_dma(0): k.ex(p)
    k.ex(w_dma())
    k.e("s_barrier")
    srd(k, 36, "s26", "s27", WS_USED)
    srd(k, 52 + 20, "s24", "s25", 256)
    k.e("s_or_b32 s58, s2, s6")
    k.e("s_cmp_lg_u32 s58, 0")
    k.e("s_cbranch_scc1 L_nononce")
    k.e("s_memrealtime s[56:57]")
    k.e("s_waitcnt lgkmcnt(0)")
    k.e("s_or_b32 s56, s56, 1")
    k.e("v_mov_b32 v8, s56")
    k.e("v_mov_b32 v9, s57")
    k.e("v_mov_b32 v10, 0")
    k.e("s_mov_b64 exec, 1")
    k.e("buffer_store_dwordx2 v[8:9], v10, s[72:75], 0 offen sc1")
    k.e("s_mov_b64 exec, -1")
    k.lab("L_nononce")
    k.ex(w_dma())
    for p in x_dma(1): k.ex(p)
    srd(k, 44, "s20", "s21", 896)
    k.e("s_lshr_b32 s64, s4, 2")
    k.e("v_lshlrev_b32 v8, 1, v0")
    k.e("v_subrev_u32 v8, s64, v8")
    k.e("buffer_load_ushort v216, v8, s[44:47], 0 offen")
    k.stamp("pro")
    k.e("v_and_b32 v16, 31, v1")
    k.e("v_bfe_u32 v17, v1, 1, 3")
    k.e("v_lshrrev_b32 v18, 5, v1")
    k.e("v_lshlrev_b32 v19, 2, v18")
    k.e("v_xor_b32 v17, v17, v19")
    k.e("v_lshlrev_b32 v17, 4, v17")
    k.e("v_lshlrev_b32 v16, 7, v16")
    k.e("v_add_u32 v16, v16, v17")
    k.e("v_add_u32 v8, s40, v16")
    for f in (1, 2, 3): k.e(f"v_xor_b32 v{8+f}, {16*f}, v8")
    for f in range(4): k.e(f"v_add_u32 v{12+f}, 0x10000, v{8+f}")
    k.e("v_lshlrev_b32 v16, 5, v18")
    k.e("v_bfe_u32 v17, v1, 2, 2")
    k.e("v_add_u32 v16, v16, v17")
    k.e("v_bfe_u32 v19, v1, 4, 1")
    k.e("v_lshlrev_b32 v19, 5, v19")
    k.e("v_and_b32 v20, 3, v1")
    k.e("v_lshlrev_b32 v20, 3, v20")
    k.e("v_add_u32 v19, v19, v20")
    k.e("v_lshlrev_b32 v20, 7, v16")
    k.e("v_add_u32 v20, v20, v19")
    k.e("v_bfe_u32 v21, v1, 3, 1")
    k.e("v_lshlrev_b32 v21, 6, v21")
    k.e("v_add_u32 v20, v20, v21")
    k.e(f"v_add_u32 v232, {WKV}, v20")
    k.e("v_xor_b32 v233, 64, v232")
    k.e("v_add_u32 v232, s4, v232")
    k.e("v_add_u32 v233, s4, v233")
    k.e("v_lshlrev_b32 v20, 6, v16")
    k.e("v_add_u32 v20, v20, v19")
    k.e(f"v_add_u32 v234, {WQ}, v20")
    k.e("v_add_u32 v234, s4, v234")
    k.e("v_lshlrev_b32 v217, 6, v0")
    k.e(f"v_add_u32 v217, {WQ + 56}, v217")
    k.e("s_mul_i32 s64, s4, 7")
    k.e("v_subrev_u32 v217, s64, v217")
    k.e("s_mov_b32 s62, 0")
    k.e("s_mov_b32 s63, -1")
    k.e("v_mov_b32 v235, 0")
    if "notlb" not in EXP:
        k.e("s_lshl_b32 s64, s3, 18"); k.e("s_lshl_b32 s66, s5, 15"); k.e("s_add_u32 s64, s64, s66")
        k.e("s_lshl_b32 s66, s41, 16"); k.e(f"s_add_u32 s66, s66, {OF_OFF}")
        k.e("s_and_b32 s67, s6, 3")
        k.e("s_cmp_eq_u32 s67, 1"); k.e("s_cselect_b32 s64, s66, s64")
        k.e("s_cmp_eq_u32 s67, 2"); k.e(f"s_cselect_b32 s64, {FL1_OFF}, s64")
        k.e("s_lshl_b32 s66, s69, 19"); k.e(f"s_add_u32 s66, s66, {OF_OFF}")
        k.e("s_cmp_eq_u32 s67, 3"); k.e("s_cselect_b32 s64, s66, s64")
        k.e("buffer_load_dword v219, v235, s[36:39], s64 offen sc1")
        k.e("s_mul_i32 s53, s69, 229376")
        srd(k, 64, "s22", "s23", OUT_BYTES)
        k.e("buffer_load_dword v219, v235, s[64:67], s53 offen")
    k.e("s_lshr_b32 s7, s6, 1")
    k.e("s_and_b32 s96, s6, 1")
    k.e("s_lshl_b32 s64, s96, 14")
    k.e("v_add_u32 v244, s64, v2")
    k.e("v_add_u32 v245, s40, v2")
    k.e("s_lshl_b32 s66, s7, 12")
    k.e("s_add_u32 s66, s66, 98304")
    k.e("v_add_u32 v248, s66, v2")
    k.e("v_and_b32 v249, 7, v1")
    k.e("v_lshlrev_b32 v249, 3, v249")
    k.e("s_lshl_b32 s97, s3, 7")
    k.e(f"s_add_u32 s97, s97, {FL1_OFF}")
    k.e("s_lshl_b32 s98, s3, 18")
    k.e("s_add_u32 s98, s98, s40")
    k.e("s_add_u32 s99, s5, 1")
    k.e("s_mov_b32 s49, 0")
    k.e("s_lshl_b32 s54, s69, 2")
    k.e("s_and_b32 s55, s70, 3")
    k.e("s_add_u32 s54, s54, s55")
    k.e("s_lshr_b32 s55, s70, 2")
    k.e("v_lshrrev_b32 v251, 3, v1")
    k.e("v_bfe_u32 v16, v251, 1, 1")
    k.e("v_lshlrev_b32 v16, 2, v16")
    k.e("v_and_b32 v17, 7, v1")
    k.e("v_xor_b32 v16, v16, v17")
    k.e("v_lshlrev_b32 v16, 4, v16")
    k.e("v_mul_u32_u24 v251, 896, v251")
    k.e("v_add_u32 v251, v251, v16")
    k.e("s_mul_i32 s100, s55, 112")
    k.e("s_mul_i32 s101, s6, 7168")
    k.e("s_add_u32 s100, s100, s101")
    k.e("s_mov_b32 s101, s100")
    k.e(f"s_add_u32 s43, s61, {WOB + 7*8192}")
    srd(k, 44, "s18", "s19", WO_BYTES)
    k.e("s_lshl_b32 s48, s3, 18")
    k.e("s_lshl_b32 s53, s5, 15")
    k.e("s_add_u32 s48, s48, s53")
    k.e("s_add_u32 s48, s48, s40")
    k.e("s_add_u32 s67, s40, 65536")
    k.e("v_add_u32 v238, s67, v2")
    k.e("s_lshl_b32 s66, s6, 11")
    k.e("s_add_u32 s66, s66, 98304")
    k.e("v_add_u32 v218, s66, v2")
    k.e("v_and_b32 v240, 31, v1")
    k.e("v_mov_b32 v239, 0x3f803f80")
    k.e("v_cmp_eq_u32 vcc, 28, v240")
    k.nop(2)
    k.e("v_cndmask_b32 v239, 0, v239, vcc")
    XR, QA, KA, VA, WF = 64, 16, 32, 48, 176
    KF, VF, QF = 200, 208, 220
    k.stamp("pro")
    WF = 176
    def R(c, vm):
        sl = c % 3
        k.e(f"s_waitcnt vmcnt({vm})")
        k.stamp("pro")
        xb = 8 if sl < 2 else 12
        xo = (sl % 2) * 32768
        for f in range(4):
            k.e(f"ds_read_b128 {vr(XR+(c*4+f)*4)}, v{xb+f} offset:{xo}")
        pieces = []
        if c + 3 <= 6: pieces += x_dma(c + 3)
        if c == 4:
            for n in range(4):
                pieces.append([f"s_add_u32 m0, s40, {WQ + n*1024}", f"s_add_u32 s68, s51, {n*16*2688}", "buffer_load_dwordx4 v6, s[32:35], s68 offen lds"])
            pieces.append(["buffer_load_dwordx2 v[236:237], v235, s[72:75], 0 offen sc1"])
        return pieces
    def wbase():
        k.e("s_lshl_b32 s64, s59, 13")
        k.e("v_add_u32 v242, s64, v232")
        k.e("v_add_u32 v243, s64, v233")
        k.ex(cyc7("s59"))
    def treads(g):
        c, f = divmod(g, 4)
        if f == 0:
            k.e("s_lshl_b32 s64, s59, 13")
            k.e(f"v_add_u32 v{242 + 4*(c&1)}, s64, v232")
            k.e(f"v_add_u32 v{243 + 4*(c&1)}, s64, v233")
            k.ex(cyc7("s59"))
        for seg in range(2):
            for s_ in range(2):
                r = WF + (g % 3)*8 + seg*4 + s_*2
                k.e(f"ds_read_b64_tr_b16 v[{r}:{r+1}], v{242 + 4*(c&1) + seg} offset:{(8*f+4*s_)*128}")
    waits = [6, 6, 5, 5, 5, 5, 5]
    if "notlb" not in EXP: waits = [8, 8, 5, 5, 5, 5, 5]
    for c in range(7):
        sl = c % 3
        k.e(f"s_waitcnt vmcnt({waits[c]})")
        k.stamp("pro")
        if c <= 5: k.e("s_barrier")
        xb = 8 if sl < 2 else 12
        xo = (sl % 2) * 32768
        if c == 0: treads(0)
        for f in range(4):
            k.e(f"ds_read_b128 {vr(XR+(c*4+f)*4)}, v{xb+f} offset:{xo}")
        if c == 0: treads(1)
        pend = []
        if c <= 3: pend.append(w_dma())
        if c + 2 <= 6: pend += x_dma(c + 2)
        if c == 5:
            for n in range(4):
                pend.append([f"s_add_u32 m0, s40, {WQ + n*1024}", f"s_add_u32 s68, s51, {n*16*2688}", "buffer_load_dwordx4 v6, s[32:35], s68 offen lds"])
        if c == 4:
            pend.append(["buffer_load_dwordx2 v[236:237], v235, s[72:75], 0 offen sc1"])
        n = len(pend); cuts = [(n*i)//4 for i in range(5)]
        per = [pend[cuts[i]:cuts[i+1]] for i in range(4)]
        for p in per[0]: k.ex(p)
        for f in range(4):
            g = c*4 + f
            if g + 2 < 28: treads(g + 2)
            if f == 0:
                later = (4 + 4) if c == 0 else (4 if g + 2 < 28 else 0)
            else:
                later = (4 if g + 1 < 28 else 0) + (4 if g + 2 < 28 else 0)
            k.e(f"s_waitcnt lgkmcnt({later})")
            x = XR + g*4; w = WF + (g % 3)*8
            z = "0" if g == 0 else None
            k.e(mfma(KA, w, x, z))
            k.e(mfma(VA, x, w+4, z))
            if f < 3:
                for p in per[f + 1]: k.ex(p)
    k.stamp("all" if "q2" not in STAMPSET else "q2")
    def qreads(n):
        c, f = divmod(n, 4)
        if f == 0:
            k.e("s_lshl_b32 s64, s59, 12")
            k.e(f"v_add_u32 v{242 + 4*(c&1)}, s64, v234")
            k.ex(cyc7("s59"))
        for s_ in range(2):
            r = WF + (n & 3)*4 + s_*2
            k.e(f"ds_read_b64_tr_b16 v[{r}:{r+1}], v{242 + 4*(c&1)} offset:{(8*f + 4*s_)*64}")
    k.e("s_waitcnt vmcnt(4)")
    k.e("s_mov_b32 s58, 0")
    k.lab("L_nonce")
    k.e("v_readfirstlane_b32 s56, v236")
    k.e("v_readfirstlane_b32 s57, v237")
    k.e("s_add_u32 s58, s58, 1")
    k.e(f"s_cmp_ge_u32 s58, {SPIN_MAX}")
    k.e("s_cbranch_scc1 L_nonce_ok")
    k.e("s_cmp_lg_u32 s56, 0")
    k.e("s_cbranch_scc1 L_nonce_ok")
    k.e("buffer_load_dwordx2 v[236:237], v235, s[72:75], 0 offen sc1")
    k.e("s_waitcnt vmcnt(0)")
    k.e("s_branch L_nonce")
    k.lab("L_nonce_ok")
    srd(k, 72, "s12", "s13", WO_BYTES)
    k.e("s_mov_b32 s64, 0xf0000000")
    k.e("s_mov_b32 s65, 0xf0000000")
    k.nop(2)
    k.e("s_mov_b64 exec, s[62:63]")
    for i in (12,13,14): k.e(f"v_mov_b32 v{KA+i}, 1.0")
    k.e(f"v_mov_b32 v{KA+15}, 0")
    k.e("s_mov_b64 exec, -1")
    for i in range(8): k.e(f"v_cvt_pk_bf16_f32 v{KF+i}, v{KA+2*i}, v{KA+2*i+1}")
    k.e(f"buffer_store_dwordx4 {vr(KF)}, v2, s[36:39], s48 offen sc1")
    k.e(f"buffer_store_dwordx4 {vr(KF+4)}, v2, s[36:39], s48 offen offset:1024 sc1")
    for i in range(8): k.e(f"v_cvt_pk_bf16_f32 v{VF+i}, v{VA+2*i}, v{VA+2*i+1}")
    k.e("s_mov_b64 exec, s[64:65]")
    for i in range(8): k.e(f"v_mov_b32 v{VF+i}, v239")
    k.e("s_mov_b64 exec, -1")
    k.e(f"buffer_store_dwordx4 {vr(VF)}, v2, s[36:39], s48 offen offset:2048 sc1")
    k.e(f"buffer_store_dwordx4 {vr(VF+4)}, v2, s[36:39], s48 offen offset:3072 sc1")
    for i, r in enumerate((KF, KF+4, VF, VF+4)): k.e(f"ds_write_b128 v238, {vr(r)} offset:{i*1024}")
    k.stamp("q2")
    k.e("s_waitcnt vmcnt(4)")
    k.e("ds_write_b16 v217, v216")
    k.e("s_waitcnt lgkmcnt(0)")
    k.e("s_barrier")
    k.stamp("q2")
    qreads(0); qreads(1); qreads(2)
    for n in range(28):
        if n + 3 < 28: qreads(n + 3)
        later = 2 * min(3, 27 - n)
        k.e(f"s_waitcnt lgkmcnt({later})")
        k.e(mfma(QA, WF + (n & 3)*4, XR + n*4, "0" if n == 0 else None))
    k.stamp("all" if "q2" not in STAMPSET else "q2")
    QR, OA, OB, S0, S1, PR, KR, VR, ST = 16, 32, 48, 64, 80, 96, 104, 120, 136
    GS = 250
    k.e(f"s_mov_b32 s64, {hex(f2u(CSCALE))}")
    k.e("v_mov_b32 v6, v244")
    k.e("v_mov_b32 v7, v245")
    k.e("v_add_u32 v3, 65536, v244")
    k.e("v_mov_b32 v4, v244")
    k.e("v_mov_b32 v5, v245")
    k.e("v_mov_b32 v9, v248")
    k.e("v_mov_b32 v10, v249")
    k.e("v_mov_b32 v11, v251")
    k.nop(3)
    k.e(f"v_mov_b32 v12, v{QA+12}")
    k.e(f"v_mov_b32 v{GS}, v{QA+12}")
    for i in range(12): k.e(f"v_mul_f32 v{QA+i}, s64, v{QA+i}")
    k.e(f"v_permlane32_swap_b32 v12, v{GS}")
    for i in range(6): k.e(f"v_cvt_pk_bf16_f32 v{QF+i}, v{QA+2*i}, v{QA+2*i+1}")
    k.e(f"v_mov_b32 v{QF+6}, 0")
    k.e(f"v_mov_b32 v{QF+7}, 0")
    k.e("s_mov_b32 exec_hi, 0")
    k.e(f"v_mul_f32 v{QA+12}, s64, v{QA+12}")
    k.e(f"v_mul_f32 v{QA+13}, s64, v{QA+13}")
    k.e(f"v_mul_f32 v{QA+14}, s64, v{QA+14}")
    k.e(f"v_mul_f32 v{QA+15}, s64, v{QA+15}")
    k.e(f"v_cvt_pk_bf16_f32 v{QF+6}, v{QA+12}, v{QA+13}")
    k.e(f"v_cvt_pk_bf16_f32 v{QF+7}, v{QA+14}, v{QA+15}")
    k.e("s_mov_b64 exec, -1")
    SS = 96
    k.e(f"v_mul_f32 v{GS}, s60, v{GS}")
    k.e(f"v_exp_f32 v{GS}, v{GS}")
    k.e(mfma(SS, KF, QF, "0"))
    k.e(mfma(SS, KF+4, QF+4))
    k.e(f"v_add_f32 v{GS}, 1.0, v{GS}")
    k.e(f"v_rcp_f32 v{GS}, v{GS}")
    k.e(f"ds_write_b128 v218, {vr(QF)}")
    k.nop(9)
    k.e(f"v_max3_f32 v12, v{SS}, v{SS+1}, v{SS+2}")
    k.e(f"v_max3_f32 v13, v{SS+3}, v{SS+4}, v{SS+5}")
    k.e(f"v_max3_f32 v12, v12, v{SS+6}, v{SS+7}")
    k.e(f"v_max3_f32 v13, v13, v{SS+8}, v{SS+9}")
    k.e(f"v_max3_f32 v12, v12, v{SS+10}, v{SS+11}")
    k.e(f"v_max3_f32 v13, v13, v{SS+12}, v{SS+13}")
    k.e(f"v_max3_f32 v12, v12, v{SS+14}, v{SS+15}")
    k.e("v_max_f32 v12, v12, v13")
    k.e("v_mov_b32 v13, v12")
    k.nop(2)
    k.e("v_permlane32_swap_b32 v12, v13")
    k.nop(1)
    k.e("v_max_f32 v12, v12, v13")
    shift_split(k, 12, 13, 14, 15, QF+6, QF+7)
    k.e(f"ds_write_b128 v218, {vr(QF+4)} offset:1024")
    k.e("s_waitcnt vmcnt(0) lgkmcnt(0)")
    k.e("s_barrier")
    k.e("s_cmp_lg_u32 s6, 0")
    k.e("s_cbranch_scc1 L_noflag1")
    k.e("s_lshl_b32 s66, s3, 7")
    k.e("s_lshl_b32 s67, s5, 3")
    k.e("s_add_u32 s66, s66, s67")
    k.e(f"s_add_u32 s66, s66, {FL1_OFF}")
    k.e("v_mov_b32 v236, s56")
    k.e("v_mov_b32 v237, s57")
    k.e("s_mov_b64 exec, 1")
    k.e("buffer_store_dwordx2 v[236:237], v235, s[36:39], s66 offen sc1")
    k.e("s_mov_b64 exec, -1")
    k.lab("L_noflag1")
    k.stamp("all" if "q2" not in STAMPSET else "q2")
    k.e(f"ds_read_b128 {vr(QR)}, v9")
    k.e(f"ds_read_b128 {vr(QR+4)}, v9 offset:1024")
    k.e(f"ds_read_b128 {vr(KR)}, v3")
    k.e(f"ds_read_b128 {vr(KR+4)}, v3 offset:1024")
    k.e(f"ds_read_b128 {vr(QR+8)}, v9 offset:2048")
    k.e(f"ds_read_b128 {vr(QR+12)}, v9 offset:3072")
    k.e("s_waitcnt lgkmcnt(2)")
    k.e(mfma(S0, KR, QR, "0"))
    k.e(mfma(S0, KR+4, QR+4))
    k.e("s_waitcnt lgkmcnt(0)")
    k.nop(11)
    def Lload():
        if "noload" in EXP: return ["s_add_u32 s99, s99, 1"]
        return ["s_and_b32 s53, s99, 7", "s_lshl_b32 s53, s53, 15", "s_add_u32 s53, s53, s98", "s_add_u32 s99, s99, 1"] + \
               [f"buffer_load_dwordx4 {vr(ST+4*i)}, v2, s[36:39], s53 offen offset:{i*1024} sc1" for i in range(4)]
    def slot(Sbuf, pv, sq, extra, pvmode="acc"):
        e = [f"v_exp_f32 v{Sbuf+i}, v{Sbuf+i}" for i in range(16)]
        c = [f"v_cvt_pk_bf16_f32 v{PR+i}, v{Sbuf+2*i}, v{Sbuf+2*i+1}" for i in range(8)]
        O, V = pv; Sd, Kb, Qb = sq
        mPV0 = mfma(O, V, PR, "0" if pvmode == "zero" else None); mPV1 = mfma(O, V+4, PR+4)
        if pvmode == "skip": mPV0 = "s_nop 0"; mPV1 = "s_nop 0"
        mS0 = mfma(Sd, Kb, Qb, "0"); mS1 = mfma(Sd, Kb+4, Qb+4)
        seq = [mPV0, e[0], e[1], e[2], c[0], e[3], e[4], mS0, c[1], e[5], e[6], e[7], c[2], e[8], mS1, e[9], c[3],
               e[10], e[11], e[12], mPV1, e[13], c[4], e[14], c[5], e[15], c[6], c[7]]
        for pos, x in enumerate(seq):
            k.ex(extra.get(pos, []))
            k.e(x)
    def bdma():
        if "nowo" in EXP: return []
        return ["s_mov_b32 m0, s43", "s_add_u32 s43, s43, 8192", "buffer_load_dwordx4 v11, s[44:47], s101 offen lds", f"s_add_u32 s101, s101, {8*7168}"]
    def wr(i):
        if "nowrite" in EXP: return []
        return [f"ds_write_b128 v5, {vr(ST+4*i)} offset:{i*1024}"]
    def Laddr(): return ["s_and_b32 s53, s99, 7", "s_lshl_b32 s53, s53, 15", "s_add_u32 s53, s53, s98", "s_add_u32 s99, s99, 1", "s_add_u32 s68, s67, s40"]
    def Lp(i):
        if "noload" in EXP: return []
        return ["s_mov_b32 m0, s68", "s_nop 0", f"buffer_load_dwordx4 v2, s[36:39], s53 offen offset:{i*1024} sc1 lds"]
    def rot(): return ["s_add_u32 s67, s67, 32768", "s_cmp_eq_u32 s67, 98304", "s_cselect_b32 s67, 0, s67"]
    def body(kind):
        for t in range(4):
            kb = KR + (t & 1) * 8; kn = KR + ((t + 1) & 1) * 8
            vb = VR + (t & 1) * 8; vp = VR + ((t + 1) & 1) * 8
            exA = {}; exB = {0: ["s_waitcnt lgkmcnt(0)"]}
            def add(d, p, l): d.setdefault(p, []); d[p] = d[p] + l
            if t < 3:
                rk = [f"ds_read_b128 {vr(kn)}, v3 offset:{(t+1)*4096}", f"ds_read_b128 {vr(kn+4)}, v3 offset:{(t+1)*4096+1024}"]
            else:
                rk = [f"ds_read_b128 {vr(kn)}, v4", f"ds_read_b128 {vr(kn+4)}, v4 offset:1024"]
            rv = [f"ds_read_b128 {vr(vb)}, v3 offset:{t*4096+2048}", f"ds_read_b128 {vr(vb+4)}, v3 offset:{t*4096+3072}"]
            late_k = (kind == "first" and t == 3)
            if t == 0 and kind == "last":
                add(exA, 0, ["s_barrier"])
                for n in range(4):
                    add(exA, 4 + 6*n, [f"s_add_u32 m0, s61, {WOB + n*8192}", f"s_add_u32 s64, s100, {n*8*7168}", "buffer_load_dwordx4 v11, s[72:75], s64 offen lds"])
                for n in range(4, 7):
                    add(exB, 4 + 6*(n-4), [f"s_add_u32 m0, s61, {WOB + n*8192}", f"s_add_u32 s64, s100, {n*8*7168}", "buffer_load_dwordx4 v11, s[72:75], s64 offen lds"])
            if kind == "first" and t == 2:
                add(exA, 0, k.stamp_list("loop") + poll_list("L_p1", 10, "s97", 152, True) + k.stamp_list("loop") + Laddr() + Lp(0))
                add(exA, 8, Lp(1)); add(exA, 16, Lp(2)); add(exA, 24, Lp(3) + rot())
            if late_k:
                exB[0] = ["s_waitcnt vmcnt(0) lgkmcnt(0)", "s_barrier"] + rk
                add(exB, 2, Laddr() + Lp(0)); add(exB, 7, ["s_waitcnt lgkmcnt(0)"])
                add(exB, 9, Lp(1)); add(exB, 15, Lp(2)); add(exB, 21, Lp(3) + rot())
                add(exA, 5, [rv[0]]); add(exA, 8, [rv[1]])
            else:
                add(exA, 1, [rk[0]]); add(exA, 3, [rk[1]]); add(exA, 5, [rv[0]]); add(exA, 8, [rv[1]])
            if kind == "mid1" and t == 0:
                add(exA, 12, bdma()); add(exB, 12, bdma());
            if kind == "mid1" and t == 1:
                add(exA, 12, bdma()); add(exB, 12, bdma())
            if kind in ("mid", "mid1", "c6"):
                m = kind != "c6"
                if t == 0 and kind in ("mid", "c6"):
                    add(exA, 14, Lp(2)); add(exB, 14, Lp(3) + rot())
                if t == 2 and kind == "mid": add(exA, 14, bdma())
                if t == 3:
                    nyoung = 1 if kind == "mid" else (4 if kind == "mid1" else 0)
                    add(exA, 0, [f"s_waitcnt vmcnt({nyoung}) lgkmcnt(0)"] + ([] if "nobar" in EXP else ["s_barrier"]))
                    if m: add(exA, 10, Laddr() + Lp(0)); add(exB, 10, Lp(1))
                    if not m:
                        add(exA, 10, ["v_lshrrev_b32 v12, 3, v1", "v_lshlrev_b32 v12, 6, v12", "v_and_b32 v13, 7, v1", "v_add_u32 v12, v12, v13", "v_mul_u32_u24 v12, 896, v12",
                                      "buffer_load_dword v240, v12, s[72:75], s100 offen"])
                        add(exB, 10, ["buffer_load_dword v241, v12, s[72:75], s100 offen offset:124"])
            if t == 3 and kind != "last":
                add(exB, 20, ["v_mov_b32 v3, v4", "s_add_u32 s49, s49, 32768", "s_cmp_eq_u32 s49, 98304", "s_cselect_b32 s49, 0, s49"])
                add(exB, 22, ["v_add_u32 v4, s49, v6"])
                if kind == "mid":
                    add(exB, 24, ["s_add_u32 s48, s48, 1"]); add(exB, 26, ["s_cmp_lt_u32 s48, 6"])
            fa = "skip" if (kind == "first" and t == 0) else "zero" if (kind == "first" and t == 1) else "acc"
            fb = "zero" if (kind == "first" and t == 0) else "acc"
            slot(S0, (OB, vp), (S1, kb, QR+8), exA, fa)
            slot(S1, (OA, vb), (S0, kn, QR), exB, fb)
    if "prio" in EXP:
        k.e("s_cmp_lt_u32 s6, 4")
        k.e("s_cbranch_scc1 L_noprio")
        k.e("s_setprio 1")
        k.lab("L_noprio")
    if "prio2" in EXP:
        k.e("s_cmp_ge_u32 s6, 4")
        k.e("s_cbranch_scc1 L_noprio")
        k.e("s_setprio 1")
        k.lab("L_noprio")
    k.e("s_mov_b32 s67, 0")
    body("first")
    k.stamp("loop2")
    body("mid1")
    k.e("s_mov_b32 s48, 2")
    k.e(".p2align 6")
    k.lab("L_loop")
    body("mid")
    k.e("s_cbranch_scc1 L_loop")
    k.stamp("loop2")
    body("c6")
    k.stamp("loop2")
    body("last")
    k.stamp()
    k.nop(2)
    k.e(mfma(OB, VR+8, PR))
    k.e(mfma(OB, VR+12, PR+4))
    k.e("v_add_u32 v11, s40, v2")
    k.e("s_xor_b32 s29, s6, 1")
    k.e("s_lshl_b32 s29, s29, 12")
    k.e("v_add_u32 v12, s29, v2")
    k.e("s_lshl_b32 s29, s41, 16")
    k.e("s_lshl_b32 s30, s3, 11")
    k.e("s_add_u32 s29, s29, s30")
    k.e(f"s_add_u32 s29, s29, {OF_OFF}")
    k.e("s_barrier")
    k.nop(4)
    k.e("s_cmp_eq_u32 s96, 0")
    k.e("s_cbranch_scc0 L_x1")
    for i in range(4): k.e(f"ds_write_b128 v11, {vr(OB+4*i)} offset:{i*1024}")
    k.e("s_waitcnt lgkmcnt(0)")
    k.e("s_barrier")
    for i in range(4): k.e(f"ds_read_b128 {vr(S0+4*i)}, v12 offset:{i*1024}")
    for i in range(16):
        if i % 4 == 0: k.e(f"s_waitcnt lgkmcnt({3 - i//4})")
        k.e(f"v_add_f32 v{OA+i}, v{OA+i}, v{S0+i}")
    k.e("s_branch L_xd")
    k.lab("L_x1")
    for i in range(4): k.e(f"ds_write_b128 v11, {vr(OA+4*i)} offset:{i*1024}")
    k.e("s_waitcnt lgkmcnt(0)")
    k.e("s_barrier")
    for i in range(4): k.e(f"ds_read_b128 {vr(S0+4*i)}, v12 offset:{i*1024}")
    for i in range(16):
        if i % 4 == 0: k.e(f"s_waitcnt lgkmcnt({3 - i//4})")
        k.e(f"v_add_f32 v{OA+i}, v{OB+i}, v{S0+i}")
    k.lab("L_xd")
    k.e("s_mov_b32 s59, 0")
    k.lab("L_norm")
    k.e("s_mov_b32 s64, 0x203")
    k.e(f"v_mov_b32 v13, v{OA+12}")
    k.e(f"v_mov_b32 v14, v{OA+12}")
    k.e(f"v_maximum3_f32 v15, |v{OA}|, |v{OA+1}|, |v{OA+2}|")
    k.e(f"v_maximum3_f32 v15, |v{OA+3}|, |v{OA+4}|, v15")
    k.e("v_permlane32_swap_b32 v13, v14")
    for i in range(5, 15, 2): k.e(f"v_maximum3_f32 v15, |v{OA+i}|, |v{OA+i+1}|, v15")
    k.e("v_rcp_f32 v13, v14")
    k.e(f"v_maximum3_f32 v15, |v{OA+15}|, |v14|, v15")
    k.e(f"v_mul_f32 v13, v13, v{GS}")
    k.e("v_cmp_class_f32 vcc, v15, s64")
    for i in range(12): k.e(f"v_mul_f32 v{OA+i}, v{OA+i}, v13")
    k.e("s_cmp_lg_u32 s59, 0")
    k.e("s_cbranch_scc1 L_norm_ok")
    k.e("s_cmp_lg_u64 vcc, 0")
    k.e("s_cbranch_scc1 L_fallback")
    k.lab("L_norm_ok")
    for i in range(12, 16): k.e(f"v_mul_f32 v{OA+i}, v{OA+i}, v13")
    k.e("s_mov_b64 exec, s[62:63]")
    for i in (12,13,14,15): k.e(f"v_mov_b32 v{OA+i}, 0")
    k.e("s_mov_b64 exec, -1")
    for i in range(4): k.e(f"v_cvt_pk_bf16_f32 v{PR+i}, v{OA+2*i}, v{OA+2*i+1}")
    k.e(f"buffer_store_dwordx4 {vr(PR)}, v2, s[36:39], s29 offen sc1")
    for i in range(4, 8): k.e(f"v_cvt_pk_bf16_f32 v{PR+i}, v{OA+2*i}, v{OA+2*i+1}")
    k.e(f"buffer_store_dwordx4 {vr(PR+4)}, v2, s[36:39], s29 offen offset:1024 sc1")
    k.e("s_lshr_b32 s7, s6, 2")
    k.e("s_and_b32 s28, s6, 3")
    k.e("v_lshrrev_b32 v5, 5, v1")
    k.e("v_lshlrev_b32 v5, 2, v5")
    k.e("v_bfe_u32 v6, v1, 2, 2")
    k.e("v_add_u32 v5, v5, v6")
    k.e("v_lshlrev_b32 v5, 7, v5")
    k.e("v_bfe_u32 v7, v1, 4, 1")
    k.e("v_lshlrev_b32 v7, 1, v7")
    k.e("v_bfe_u32 v8, v1, 1, 1")
    k.e("v_add_u32 v7, v7, v8")
    k.e("v_bfe_u32 v8, v6, 1, 1")
    k.e("v_lshlrev_b32 v8, 2, v8")
    k.e("v_xor_b32 v7, v7, v8")
    k.e("v_lshlrev_b32 v7, 4, v7")
    k.e("v_add_u32 v5, v5, v7")
    k.e("v_and_b32 v7, 1, v1")
    k.e("v_lshlrev_b32 v7, 3, v7")
    k.e("v_add_u32 v5, v5, v7")
    k.e("v_xor_b32 v6, 64, v5")
    k.e("s_mul_i32 s29, s28, 28672")
    k.e(f"s_add_u32 s29, s29, {WOB}")
    k.e("v_add_u32 v5, s29, v5")
    k.e("v_add_u32 v6, s29, v6")
    k.e("v_mov_b32 v13, 0")
    k.e("v_and_b32 v10, 31, v1")
    k.e("v_lshlrev_b32 v11, 3, v10")
    k.e("s_lshr_b32 s66, s54, 2")
    k.e("s_lshl_b32 s66, s66, 8")
    k.e(f"s_add_u32 s66, s66, {FL2_OFF}")
    k.e("s_lshl_b32 s32, s54, 1")
    k.e("s_add_u32 s32, s32, s7")
    k.e("s_lshl_b32 s33, s32, 16")
    k.e("s_lshl_b32 s34, s28, 14")
    k.e("s_add_u32 s33, s33, s34")
    k.e(f"s_add_u32 s33, s33, {OF_OFF}")
    k.e("s_lshl_b32 s29, s7, 15")
    k.e("s_lshl_b32 s30, s28, 12")
    k.e("s_add_u32 s29, s29, s30")
    k.e("v_add_u32 v16, s29, v2")
    k.e("s_bfe_u32 s29, s6, 0x10001")
    k.e("s_and_b32 s30, s6, 1")
    k.e("s_lshl_b32 s31, s7, 15")
    k.e("s_lshl_b32 s34, s29, 14")
    k.e("s_add_u32 s31, s31, s34")
    k.e("s_lshl_b32 s34, s30, 11")
    k.e("s_add_u32 s31, s31, s34")
    k.e("v_add_u32 v17, s31, v2")
    k.e("v_mul_u32_u24 v18, 896, v10")
    k.e("v_lshrrev_b32 v12, 5, v1")
    k.e("v_lshlrev_b32 v12, 4, v12")
    k.e("v_add_u32 v18, v18, v12")
    k.e("s_lshl_b32 s31, s29, 6")
    k.e("s_lshl_b32 s34, s30, 5")
    k.e("s_add_u32 s31, s31, s34")
    k.e("v_add_u32 v12, s31, v12")
    k.e("v_cmp_gt_u32 vcc, 112, v12")
    k.e("s_mul_i32 s34, s55, 112")
    k.e("s_add_u32 s31, s31, s34")
    k.e("s_mul_i32 s34, s32, 28672")
    k.e("s_add_u32 s31, s31, s34")
    k.e("v_mov_b32 v19, 0x7fffffff")
    k.e("v_cndmask_b32 v18, v19, v18, vcc")
    srd(k, 48, "s22", "s23", OUT_BYTES)
    k.e("s_waitcnt vmcnt(0)")
    k.e("s_barrier")
    k.stamp()
    k.e("s_cmp_lg_u32 s6, 0")
    k.e("s_cbranch_scc1 L_noflag2")
    k.e("s_lshl_b32 s64, s5, 8")
    k.e("s_lshl_b32 s67, s3, 3")
    k.e("s_add_u32 s64, s64, s67")
    k.e(f"s_add_u32 s64, s64, {FL2_OFF}")
    k.e("v_mov_b32 v14, s56")
    k.e("v_mov_b32 v15, s57")
    k.e("s_mov_b64 exec, 1")
    k.e("buffer_store_dwordx2 v[14:15], v13, s[36:39], s64 offen sc1")
    k.e("s_mov_b64 exec, -1")
    k.lab("L_noflag2")
    k.ex(poll_list("L_p2", 11, "s66", 14, False))
    k.stamp()
    OR = 64
    for i in range(16):
        if i % 4 == 0 and i > 0: k.e("s_add_u32 s33, s33, 4096")
        k.e(f"buffer_load_dwordx4 {vr(OR+4*i)}, v2, s[36:39], s33 offen offset:{(i%4)*1024} sc1")
    A0, A1, WF3 = 32, 48, 128
    steps = [(hh, m) for hh in range(8) for m in range(2)]
    def treads3(hh, m, buf):
        for ct in range(2):
            for s_ in range(2):
                r = WF3 + buf*8 + ct*4 + s_*2
                k.e(f"ds_read_b64_tr_b16 v[{r}:{r+1}], v{5+ct} offset:{(hh*28 + 16*m + 8*s_) * 128}")
    treads3(*steps[0], 0)
    for i, (hh, m) in enumerate(steps):
        if i + 1 < len(steps):
            treads3(*steps[i+1], (i+1) & 1)
            k.e(f"s_waitcnt vmcnt({15-i}) lgkmcnt(4)")
        else:
            k.e(f"s_waitcnt vmcnt({15-i}) lgkmcnt(0)")
        w = WF3 + (i & 1)*8
        z = "0" if i == 0 else None
        k.e(mfma(A0, w, OR+4*i, z))
        k.e(mfma(A1, w+4, OR+4*i, z))
    k.stamp()
    k.e("s_barrier")
    k.nop(10)
    for q in range(4): k.e(f"ds_write_b128 v16, {vr(A0+4*q)} offset:{q*1024}")
    for q in range(4): k.e(f"ds_write_b128 v16, {vr(A1+4*q)} offset:{16384+q*1024}")
    k.e("s_waitcnt lgkmcnt(0)")
    k.e("s_barrier")
    for kq in range(4):
        for q in range(2):
            k.e(f"ds_read_b128 {vr(64+kq*8+q*4)}, v17 offset:{kq*4096+q*1024}")
    k.e("s_waitcnt lgkmcnt(4)")
    for i in range(8): k.e(f"v_add_f32 v{64+i}, v{64+i}, v{72+i}")
    k.e("s_waitcnt lgkmcnt(0)")
    for i in range(8): k.e(f"v_add_f32 v{80+i}, v{80+i}, v{88+i}")
    for i in range(8): k.e(f"v_add_f32 v{64+i}, v{64+i}, v{80+i}")
    for i in range(4): k.e(f"v_cvt_pk_bf16_f32 v{20+i}, v{64+2*i}, v{65+2*i}")
    k.nop(2)
    k.e("v_permlane32_swap_b32 v20, v22")
    k.e("v_permlane32_swap_b32 v21, v23")
    k.nop(1)
    k.e("buffer_store_dwordx4 v[20:23], v18, s[48:51], s31 offen")
    k.stamp()
    k.stamp_flush()
    k.lab("L_end")
    k.e("s_endpgm")
    k.lab("L_fallback")
    k.e("s_mov_b32 s59, 1")
    k.e("s_and_b32 s30, s6, 1")
    k.e("s_cmp_eq_u32 s30, 0")
    k.e("s_cbranch_scc1 L_fbq")
    for i in range(8): k.e(f"v_mov_b32 v{QR+i}, v{QR+8+i}")
    k.lab("L_fbq")
    k.e("s_mov_b64 exec, s[62:63]")
    k.e(f"v_mov_b32 v{QR+6}, 0")
    k.e(f"v_mov_b32 v{QR+7}, 0")
    k.e("s_mov_b64 exec, -1")
    k.e("v_mov_b32 v13, 0xff800000")
    k.e("s_lshl_b32 s64, s3, 18")
    k.e("s_mov_b32 s30, 0")
    k.lab("L_fb1")
    k.e(f"buffer_load_dwordx4 {vr(KR)}, v2, s[36:39], s64 offen sc1")
    k.e(f"buffer_load_dwordx4 {vr(KR+4)}, v2, s[36:39], s64 offen offset:1024 sc1")
    k.e("s_waitcnt vmcnt(0)")
    k.e(mfma(S0, KR, QR, "0"))
    k.e(mfma(S0, KR+4, QR+4))
    k.nop(12)
    for i in range(0, 16, 2): k.e(f"v_max3_f32 v13, v13, v{S0+i}, v{S0+i+1}")
    k.e("s_add_u32 s64, s64, 4096")
    k.e("s_add_u32 s30, s30, 1")
    k.e("s_cmp_lt_u32 s30, 64")
    k.e("s_cbranch_scc1 L_fb1")
    k.e("v_mov_b32 v14, v13")
    k.nop(2)
    k.e("v_permlane32_swap_b32 v13, v14")
    k.nop(1)
    k.e("v_max_f32 v13, v13, v14")
    shift_split(k, 13, 14, 15, 12, QR+6, QR+7)
    for i in range(16): k.e(f"v_mov_b32 v{OA+i}, 0")
    k.e("s_lshl_b32 s64, s3, 18")
    k.e("s_mov_b32 s30, 0")
    k.lab("L_fb2")
    k.e(f"buffer_load_dwordx4 {vr(KR)}, v2, s[36:39], s64 offen sc1")
    k.e(f"buffer_load_dwordx4 {vr(KR+4)}, v2, s[36:39], s64 offen offset:1024 sc1")
    k.e(f"buffer_load_dwordx4 {vr(VR)}, v2, s[36:39], s64 offen offset:2048 sc1")
    k.e(f"buffer_load_dwordx4 {vr(VR+4)}, v2, s[36:39], s64 offen offset:3072 sc1")
    k.e("s_waitcnt vmcnt(0)")
    k.e(mfma(S0, KR, QR, "0"))
    k.e(mfma(S0, KR+4, QR+4))
    k.nop(12)
    for i in range(16): k.e(f"v_exp_f32 v{S0+i}, v{S0+i}")
    k.nop(1)
    for i in range(8): k.e(f"v_cvt_pk_bf16_f32 v{PR+i}, v{S0+2*i}, v{S0+2*i+1}")
    k.nop(2)
    k.e(mfma(OA, VR, PR))
    k.e(mfma(OA, VR+4, PR+4))
    k.e("s_add_u32 s64, s64, 4096")
    k.e("s_add_u32 s30, s30, 1")
    k.e("s_cmp_lt_u32 s30, 64")
    k.e("s_cbranch_scc1 L_fb2")
    k.nop(12)
    k.e("s_branch L_norm")
    return k.l, dict(vgpr=252, sgpr=100, lds=163840, block=512)

def main(outpath):
    l, m = gen()
    o = [f"; gated_mix mha block, fused single launch (projection -> attention -> output projection, flag hand-offs). Generated by my own generator script.",
         f"; @launch grid=(256,1,1) block=({m['block']},1,1) lds={m['lds']}",
         '.amdgcn_target "amdgcn-amd-amdhsa--gfx950"', ".text", f".globl {KNAME}", ".p2align 8", f".type {KNAME},@function"] + l
    acc = (m['vgpr'] + 3) // 4 * 4
    o += ['.section .rodata,"a"', ".p2align 6", f".amdhsa_kernel {KNAME}", f"  .amdhsa_next_free_vgpr {m['vgpr']}", f"  .amdhsa_next_free_sgpr {m['sgpr']}",
          f"  .amdhsa_accum_offset {acc}", "  .amdhsa_group_segment_fixed_size 0", "  .amdhsa_kernarg_size 80",
          "  .amdhsa_user_sgpr_count 2", "  .amdhsa_user_sgpr_kernarg_segment_ptr 1", "  .amdhsa_system_sgpr_workgroup_id_x 1", ".end_amdhsa_kernel"]
    open(outpath, "w").write("\n".join(o) + "\n")

if __name__ == "__main__":
    main(sys.argv[1] if len(sys.argv) > 1 else f"cdna_kernels/{NAME}.s")
```

```python
import sys, math, os, struct

NAME = "gated_mix__mha_block__softmax_full_mha__prompt"
KNAME = NAME + "_kernel"
X_BYTES = 2048 * 448 * 2
W_BYTES = 448 * 1344 * 2
WO_BYTES = 448 * 448 * 2
OUT_BYTES = 2048 * 448 * 2
KV_OFF = 0
OF_OFF = 8 << 20
FL1_OFF = (12 << 20) + 8192
FL2_OFF = (12 << 20) + 16384
STAMP_OFF = 13 << 20
WS_USED = 14 << 20
LOG2E = math.log2(math.e)
CSCALE = (28 ** -0.5) * LOG2E
STAMP = int(os.environ.get("STAMP", "0"))
STAMPSET = os.environ.get("STAMPSET", "all").split(",")
EXP = os.environ.get("EXP", "").split(",")
SPIN_MAX = 1 << 18
TICKET = int(os.environ.get("TICKET", "0"))
VAR = os.environ.get("VAR", "").split(",")
PF0 = int(os.environ.get("PF0", "1"))
def f2u(x): return struct.unpack('<I', struct.pack('<f', x))[0]

class K:
    def __init__(s): s.l = []; s.ns = 0
    def e(s, t):
        if t.endswith(":"): s.l.append(t)
        else: s.l.append("  " + t)
    def ex(s, ts):
        for t in ts: s.e(t)
    def lab(s, t): s.l.append(t + ":")
    def nop(s, n):
        while n > 0:
            k = min(n, 16); s.e(f"s_nop {k-1}"); n -= k
    def stamp(s, tag="all"):
        if not STAMP: return
        if tag not in STAMPSET and s.ns > 0: return
        i = s.ns; s.ns += 1
        assert i < 14
        if i == 0:
            s.e("s_memrealtime s[76:77]"); s.e("s_waitcnt lgkmcnt(0)"); s.e("s_mov_b32 s94, s76")
        s.e("s_memrealtime s[76:77]" if os.environ.get("STAMPRT") else "s_memtime s[76:77]"); s.e("s_waitcnt lgkmcnt(0)"); s.e(f"s_mov_b32 s{80+i}, s76")
    def stamp_list(s, tag):
        save = s.l; s.l = []
        s.stamp(tag)
        out = [x.strip() for x in s.l]; s.l = save
        return out
    def stamp_flush(s):
        if not STAMP: return
        if os.environ.get("STAMPDBG") == "multi":
            ia, ib = [int(x) for x in os.environ.get("STAMPIDX", "0,7").split(",")]
            base = int(os.environ.get("STAMPBASE", "248"))
            s.e(f"s_sub_u32 s78, s2, {base+1}"); s.e("s_cmp_ge_u32 s78, 7"); s.e("s_cbranch_scc1 L_nodbg"); s.e("s_cmp_lg_u32 s6, 0"); s.e("s_cbranch_scc1 L_nodbg")
            s.e("s_mov_b32 s72, s24"); s.e("s_mov_b32 s73, s25"); s.e("s_mov_b32 s74, 256"); s.e("s_mov_b32 s75, 0x20000")
            s.e("s_lshl_b32 s78, s78, 3"); s.e("s_add_u32 s78, s78, 8")
            s.e("v_mov_b32 v0, 0"); s.e("s_mov_b64 exec, 1")
            s.e(f"s_sub_u32 s79, s{80+ia}, s56"); s.e("v_mov_b32 v2, s79"); s.e(f"s_sub_u32 s79, s{80+ib}, s56"); s.e("v_mov_b32 v3, s79")
            s.e("buffer_store_dwordx2 v[2:3], v0, s[72:75], s78 offen")
            s.e("s_mov_b64 exec, -1")
            s.lab("L_nodbg")
            return
        if os.environ.get("STAMPDBG"):
            wgid = int(os.environ["STAMPDBG"])
            s.e(f"s_cmp_lg_u32 s2, {wgid}"); s.e("s_cbranch_scc1 L_nodbg"); s.e("s_cmp_lg_u32 s6, 0"); s.e("s_cbranch_scc1 L_nodbg")
            s.e("s_mov_b32 s72, s24"); s.e("s_mov_b32 s73, s25"); s.e("s_mov_b32 s74, 256"); s.e("s_mov_b32 s75, 0x20000")
            s.e("v_mov_b32 v0, 0"); s.e("s_mov_b64 exec, 1")
            for i in range(14):
                s.e(f"s_sub_u32 s78, s{80+i}, s80")
                s.e(f"v_mov_b32 v1, s78")
                s.e(f"buffer_store_dword v1, v0, s[72:75], 0 offen offset:{8+4*i}")
                s.e("s_nop 1")
            s.e("s_mov_b64 exec, -1")
            s.lab("L_nodbg")
            return
        s.e("s_lshl_b32 s78, s2, 3"); s.e("s_add_u32 s78, s78, s6"); s.e("s_lshl_b32 s78, s78, 6")
        s.e(f"s_add_u32 s78, s78, {STAMP_OFF}")
        s.e("s_memrealtime s[76:77]"); s.e("s_waitcnt lgkmcnt(0)"); s.e("s_mov_b32 s95, s76")
        s.e("v_mov_b32 v0, 0"); s.e("s_mov_b64 exec, 1")
        for i in range(16):
            s.e(f"v_mov_b32 v1, s{80+i}")
            s.e(f"buffer_store_dword v1, v0, s[36:39], s78 offen offset:{4*i}")
            s.e("s_nop 1")
        s.e("s_mov_b64 exec, -1")

def vr(b, n=4): return f"v[{b}:{b+n-1}]"
def mfma(d, a, b, c=None):
    cc = vr(d, 16) if c is None else c
    return f"v_mfma_f32_32x32x16_bf16 {vr(d,16)}, {vr(a)}, {vr(b)}, {cc}"
def srd(k, b, lo, hi, nbytes):
    k.e(f"s_mov_b32 s{b}, {lo}"); k.e(f"s_mov_b32 s{b+1}, {hi}"); k.e(f"s_mov_b32 s{b+2}, {nbytes}"); k.e(f"s_mov_b32 s{b+3}, 0x20000")
def cyc7(r): return [f"s_add_u32 {r}, {r}, 1", f"s_cmp_eq_u32 {r}, 7", f"s_cselect_b32 {r}, 0, {r}"]

def shift_split(k, m, t1, t2, t3, q6, q7):
    k.e(f"v_sub_f32 v{m}, 0, v{m}")
    k.e(f"v_cvt_pk_bf16_f32 v{t1}, v{m}, v{m}")
    k.e(f"v_and_b32 v{t1}, 0xffff0000, v{t1}")
    k.e(f"v_sub_f32 v{t2}, v{m}, v{t1}")
    k.e(f"v_cvt_pk_bf16_f32 v{t3}, v{t2}, v{t2}")
    k.e(f"v_and_b32 v{t3}, 0xffff0000, v{t3}")
    k.e(f"v_sub_f32 v{t2}, v{t2}, v{t3}")
    k.e(f"v_mov_b32 v{m}, 0")
    k.e("s_mov_b64 exec, s[62:63]")
    k.e(f"v_cvt_pk_bf16_f32 v{q6}, v{t1}, v{t3}")
    k.e(f"v_cvt_pk_bf16_f32 v{q7}, v{t2}, v{m}")
    k.e("s_mov_b64 exec, -1")

def poll_list(label, voff, soff, vtmp, first_issued):
    o = ["s_cmp_lg_u32 s6, 0", f"s_cbranch_scc1 {label}_done", "s_mov_b32 s58, 0", f"{label}:",
         f"buffer_load_dwordx2 v[{vtmp}:{vtmp+1}], v{voff}, s[36:39], {soff} offen sc1",
         "s_waitcnt vmcnt(0)", f"v_cmp_eq_u64 vcc, s[56:57], v[{vtmp}:{vtmp+1}]", "s_add_u32 s58, s58, 1",
         f"s_cmp_ge_u32 s58, {SPIN_MAX}", f"s_cbranch_scc1 {label}_done", "s_cmp_eq_u64 vcc, exec", f"s_cbranch_scc1 {label}_done",
         "s_sleep 1", f"s_branch {label}", f"{label}_done:", "s_barrier"]
    return o

def gen():
    k = K()
    k.lab(KNAME)
    k.e("s_cmp_ge_u32 s2, 256")
    k.e("s_cbranch_scc1 L_end")
    k.e("s_load_dwordx16 s[8:23], s[0:1], 0")
    k.e("s_load_dwordx4 s[24:27], s[0:1], 64")
    k.e("v_and_b32 v1, 63, v0")
    k.e("v_lshrrev_b32 v2, 6, v0")
    k.e("s_getreg_b32 s69, hwreg(HW_REG_XCC_ID)")
    k.e("s_getreg_b32 s70, hwreg(HW_REG_HW_ID)")
    k.e("v_readfirstlane_b32 s6, v2")
    k.e("s_and_b32 s69, s69, 7")
    k.stamp()
    k.e("v_lshlrev_b32 v2, 4, v1")
    XS, WKV, WQ, WOB = 0, 98304, 32768, 40960
    k.e("v_lshrrev_b32 v3, 3, v1")
    k.e("v_lshrrev_b32 v4, 1, v3")
    k.e("v_and_b32 v5, 7, v1")
    k.e("v_xor_b32 v4, v4, v5")
    k.e("v_lshlrev_b32 v4, 4, v4")
    k.e("v_mul_u32_u24 v3, 896, v3")
    k.e("v_add_u32 v3, v3, v4")
    k.e("v_xor_b32 v4, 64, v3")
    k.e("v_lshrrev_b32 v5, 3, v1")
    k.e("v_bfe_u32 v6, v1, 2, 1")
    k.e("v_bfe_u32 v7, v1, 4, 1")
    k.e("v_xor_b32 v6, v6, v7")
    k.e("v_mul_u32_u24 v6, 896, v6")
    k.e("v_mul_u32_u24 v5, 2688, v5")
    k.e("v_add_u32 v5, v5, v6")
    k.e("v_and_b32 v6, 3, v1")
    k.e("v_lshlrev_b32 v6, 4, v6")
    k.e("v_add_u32 v5, v5, v6")
    k.e("v_add_u32 v5, 896, v5")
    k.e("v_lshrrev_b32 v7, 2, v1")
    k.e("v_mul_u32_u24 v7, 2688, v7")
    k.e("v_add_u32 v6, v7, v6")
    k.e("s_lshl_b32 s40, s6, 12")
    k.e("s_lshl_b32 s61, s6, 10")
    if TICKET:
        k.e("s_bfe_u32 s4, s70, 0x2000d")
        k.e("s_lshl_b32 s4, s4, 3")
        k.e("s_bfe_u32 s5, s70, 0x30008")
        k.e("s_add_u32 s70, s4, s5")
        k.e("v_mov_b32 v9, 0")
        k.e("v_mov_b32 v8, 1")
        k.e("s_waitcnt lgkmcnt(0)")
        srd(k, 72, "s24", "s25", 256)
        srd(k, 28, "s8", "s9", X_BYTES)
        k.e("s_cmp_lg_u32 s6, 0")
        k.e("s_cbranch_scc1 L_tk0")
        k.e("s_lshl_b32 s64, s69, 5")
        k.e("s_add_u32 s64, s64, 16")
        k.e("s_mov_b64 exec, 1")
        k.e("buffer_atomic_add v8, v9, s[72:75], s64 offen sc0 sc1")
        k.e("s_mov_b64 exec, -1")
        k.lab("L_tk0")
        if PF0:
            k.e("s_cmp_ge_u32 s69, 4")
            k.e("s_cselect_b32 s32, s16, s10")
            k.e("s_cselect_b32 s33, s17, s11")
            k.e(f"s_mov_b32 s34, {W_BYTES}")
            k.e("s_mov_b32 s35, 0x20000")
            k.e("s_cmp_ge_u32 s6, 4")
            k.e("s_cbranch_scc1 L_pfw")
            k.e("s_mul_i32 s68, s70, 224")
            k.e("s_mul_i32 s71, s6, 56")
            k.e("s_add_u32 s68, s68, s71")
            k.e("s_lshl_b32 s68, s68, 7")
            k.e("s_and_b32 s71, s69, 1")
            k.e("s_mul_i32 s71, s71, 917504")
            k.e("s_add_u32 s68, s68, s71")
            k.e("v_lshlrev_b32 v10, 7, v1")
            k.e("s_mov_b32 exec_hi, 0x00ffffff")
            k.e("buffer_load_dword v240, v10, s[28:31], s68 offen")
            k.e("s_branch L_pfd")
            k.lab("L_pfw")
            k.e("s_mul_i32 s68, s70, 168")
            k.e("s_sub_u32 s71, s6, 4")
            k.e("s_mul_i32 s71, s71, 42")
            k.e("s_add_u32 s68, s68, s71")
            k.e("v_add_u32 v10, s68, v1")
            k.e("v_lshrrev_b32 v11, 2, v10")
            k.e("v_mul_u32_u24 v11, 896, v11")
            k.e("v_and_b32 v10, 3, v10")
            k.e("v_lshlrev_b32 v10, 7, v10")
            k.e("v_add_u32 v10, v10, v11")
            k.e("s_bfe_u32 s71, s69, 0x10001")
            k.e("s_mul_i32 s71, s71, 384")
            k.e("s_mov_b32 exec_hi, 0x3ff")
            k.e("buffer_load_dword v240, v10, s[32:35], s71 offen")
            k.lab("L_pfd")
            k.e("s_mov_b64 exec, -1")
        k.e("s_cmp_lg_u32 s6, 0")
        k.e("s_cbranch_scc1 L_tk1")
        k.e("s_mov_b32 s58, 0")
        k.e(f"s_waitcnt vmcnt({1 if PF0 else 0})")
        k.lab("L_tkl")
        k.e("v_readfirstlane_b32 s70, v8")
        k.e("s_add_u32 s58, s58, 1")
        k.e("s_cmp_lt_u32 s70, 32")
        k.e("s_cbranch_scc1 L_tkd")
        k.e("s_cmp_ge_u32 s58, 64")
        k.e("s_cbranch_scc1 L_tkd")
        k.e("s_add_u32 s69, s69, 1")
        k.e("s_and_b32 s69, s69, 7")
        k.e("s_lshl_b32 s64, s69, 5")
        k.e("s_add_u32 s64, s64, 16")
        k.e("v_mov_b32 v8, 1")
        k.e("s_mov_b64 exec, 1")
        k.e("buffer_atomic_add v8, v9, s[72:75], s64 offen sc0 sc1")
        k.e("s_mov_b64 exec, -1")
        k.e("s_waitcnt vmcnt(0)")
        k.e("s_branch L_tkl")
        k.lab("L_tkd")
        k.e("s_and_b32 s70, s70, 31")
        k.e("s_lshl_b32 s64, s70, 3")
        k.e("s_or_b32 s64, s64, s69")
        k.e("v_mov_b32 v8, s64")
        k.e("v_mov_b32 v9, 163832")
        k.e("ds_write_b32 v9, v8")
        k.e("s_waitcnt lgkmcnt(0)")
        k.lab("L_tk1")
        k.e("s_barrier")
        k.e("v_mov_b32 v9, 163832")
        k.e("ds_read_b32 v8, v9")
        k.e("s_waitcnt lgkmcnt(0)")
        k.e("v_readfirstlane_b32 s64, v8")
        k.nop(1)
        k.e("s_and_b32 s69, s64, 7")
        k.e("s_lshr_b32 s70, s64, 3")
    else:
        k.e("s_and_b32 s69, s2, 7")
        k.e("s_lshr_b32 s70, s2, 3")
    k.e("s_lshr_b32 s3, s69, 1")
    k.e("s_lshl_b32 s3, s3, 3")
    k.e("s_and_b32 s4, s70, 7")
    k.e("s_add_u32 s3, s3, s4")
    k.e("s_and_b32 s5, s69, 1")
    k.e("s_lshl_b32 s5, s5, 2")
    k.e("s_lshr_b32 s4, s70, 3")
    k.e("s_add_u32 s5, s5, s4")
    k.e("s_and_b32 s7, s3, 15")
    k.e("s_lshl_b32 s41, s5, 3")
    k.e("s_add_u32 s41, s41, s6")
    k.e("s_mul_i32 s42, s41, 28672")
    k.e("s_mul_i32 s43, s7, 56")
    k.e("s_cmp_eq_u32 s7, 15")
    k.e("s_cselect_b32 s4, 8, 0")
    k.e("s_sub_u32 s43, s43, s4")
    k.e("s_mul_i32 s50, s6, 21504")
    k.e("s_add_u32 s50, s50, s43")
    k.e("s_mul_i32 s51, s6, 172032")
    k.e("s_add_u32 s51, s51, s43")
    k.e("s_and_b32 s71, s70, 7")
    k.e("s_lshr_b32 s68, s70, 3")
    k.e("s_lshl_b32 s68, s68, 1")
    k.e("s_add_u32 s71, s71, s68")
    for _ in range(2):
        k.e("s_cmp_ge_u32 s71, 7")
        k.e("s_cselect_b32 s68, 7, 0")
        k.e("s_sub_u32 s71, s71, s68")
    k.e("s_mov_b32 s59, s71")
    k.e("s_mov_b32 s52, s71")
    k.e("s_waitcnt lgkmcnt(0)")
    k.stamp("pro")
    srd(k, 28, "s8", "s9", X_BYTES)
    k.e("s_cmp_ge_u32 s3, 16")
    k.e("s_cselect_b32 s32, s16, s10")
    k.e("s_cselect_b32 s33, s17, s11")
    k.e(f"s_mov_b32 s34, {W_BYTES}")
    k.e("s_mov_b32 s35, 0x20000")
    k.e("s_cselect_b32 s60, 0, 0x80000000")
    k.e(f"s_xor_b32 s60, s60, {hex(f2u(LOG2E))}")
    def w_dma():
        return ["s_lshl_b32 s64, s52, 13", "s_add_u32 s64, s64, s61", f"s_add_u32 m0, s64, {WKV}", "s_mul_i32 s68, s52, 172032",
                "s_add_u32 s68, s68, s50", "buffer_load_dwordx4 v5, s[32:35], s68 offen lds"] + cyc7("s52")
    def x_dma(i):
        sl = i % 3
        p = []
        for q in range(4):
            o = []
            if q == 0: o += [f"s_add_u32 m0, s40, {XS + sl*32768}", "s_lshl_b32 s65, s71, 7", "s_add_u32 s65, s65, s42"]
            else: o += [f"s_add_u32 m0, s40, {XS + sl*32768}", "s_add_u32 s65, s65, 6144"]
            o += [f"buffer_load_dwordx4 v{3 + (q&1)}, s[28:31], s65 offen offset:{q*1024} lds"]
            if q == 3: o += cyc7("s71")
            p.append(o)
        return p
    k.ex(w_dma())
    for p in x_dma(0): k.ex(p)
    k.ex(w_dma())
    k.e("s_barrier")
    srd(k, 36, "s26", "s27", WS_USED)
    srd(k, 52 + 20, "s24", "s25", 256)
    k.e("s_or_b32 s58, s2, s6")
    k.e("s_cmp_lg_u32 s58, 0")
    k.e("s_cbranch_scc1 L_nononce")
    k.e("s_memrealtime s[56:57]")
    k.e("s_waitcnt lgkmcnt(0)")
    k.e("s_or_b32 s56, s56, 1")
    k.e("v_mov_b32 v8, s56")
    k.e("v_mov_b32 v9, s57")
    k.e("v_mov_b32 v10, 0")
    k.e("s_mov_b64 exec, 1")
    k.e("buffer_store_dwordx2 v[8:9], v10, s[72:75], 0 offen sc1")
    k.e("s_mov_b64 exec, -1")
    k.lab("L_nononce")
    k.ex(w_dma())
    for p in x_dma(1): k.ex(p)
    srd(k, 44, "s20", "s21", 896)
    k.e("s_lshr_b32 s64, s4, 2")
    k.e("v_lshlrev_b32 v8, 1, v0")
    k.e("v_subrev_u32 v8, s64, v8")
    k.e("buffer_load_ushort v216, v8, s[44:47], 0 offen")
    k.stamp("pro")
    k.e("v_and_b32 v16, 31, v1")
    k.e("v_bfe_u32 v17, v1, 1, 3")
    k.e("v_lshrrev_b32 v18, 5, v1")
    k.e("v_lshlrev_b32 v19, 2, v18")
    k.e("v_xor_b32 v17, v17, v19")
    k.e("v_lshlrev_b32 v17, 4, v17")
    k.e("v_lshlrev_b32 v16, 7, v16")
    k.e("v_add_u32 v16, v16, v17")
    k.e("v_add_u32 v8, s40, v16")
    for f in (1, 2, 3): k.e(f"v_xor_b32 v{8+f}, {16*f}, v8")
    for f in range(4): k.e(f"v_add_u32 v{12+f}, 0x10000, v{8+f}")
    k.e("v_lshlrev_b32 v16, 5, v18")
    k.e("v_bfe_u32 v17, v1, 2, 2")
    k.e("v_add_u32 v16, v16, v17")
    k.e("v_bfe_u32 v19, v1, 4, 1")
    k.e("v_lshlrev_b32 v19, 5, v19")
    k.e("v_and_b32 v20, 3, v1")
    k.e("v_lshlrev_b32 v20, 3, v20")
    k.e("v_add_u32 v19, v19, v20")
    k.e("v_lshlrev_b32 v20, 7, v16")
    k.e("v_add_u32 v20, v20, v19")
    k.e("v_bfe_u32 v21, v1, 3, 1")
    k.e("v_lshlrev_b32 v21, 6, v21")
    k.e("v_add_u32 v20, v20, v21")
    k.e(f"v_add_u32 v232, {WKV}, v20")
    k.e("v_xor_b32 v233, 64, v232")
    k.e("v_add_u32 v232, s4, v232")
    k.e("v_add_u32 v233, s4, v233")
    k.e("v_lshlrev_b32 v20, 6, v16")
    k.e("v_add_u32 v20, v20, v19")
    k.e(f"v_add_u32 v234, {WQ}, v20")
    k.e("v_add_u32 v234, s4, v234")
    k.e("v_lshlrev_b32 v217, 6, v0")
    k.e(f"v_add_u32 v217, {WQ + 56}, v217")
    k.e("s_mul_i32 s64, s4, 7")
    k.e("v_subrev_u32 v217, s64, v217")
    k.e("s_mov_b32 s62, 0")
    k.e("s_mov_b32 s63, -1")
    k.e("v_mov_b32 v235, 0")
    if "notlb" not in EXP:
        k.e("s_lshl_b32 s64, s3, 18"); k.e("s_lshl_b32 s66, s5, 15"); k.e("s_add_u32 s64, s64, s66")
        k.e("s_lshl_b32 s66, s41, 16"); k.e(f"s_add_u32 s66, s66, {OF_OFF}")
        k.e("s_and_b32 s67, s6, 3")
        k.e("s_cmp_eq_u32 s67, 1"); k.e("s_cselect_b32 s64, s66, s64")
        k.e("s_cmp_eq_u32 s67, 2"); k.e(f"s_cselect_b32 s64, {FL1_OFF}, s64")
        k.e("s_lshl_b32 s66, s69, 19"); k.e(f"s_add_u32 s66, s66, {OF_OFF}")
        k.e("s_cmp_eq_u32 s67, 3"); k.e("s_cselect_b32 s64, s66, s64")
        k.e("buffer_load_dword v219, v235, s[36:39], s64 offen sc1")
        k.e("s_mul_i32 s53, s69, 229376")
        srd(k, 64, "s22", "s23", OUT_BYTES)
        k.e("buffer_load_dword v219, v235, s[64:67], s53 offen")
    k.e("s_lshr_b32 s7, s6, 1")
    k.e("s_and_b32 s96, s6, 1")
    k.e("s_lshl_b32 s64, s96, 14")
    k.e("v_add_u32 v244, s64, v2")
    k.e("v_add_u32 v245, s40, v2")
    k.e("s_lshl_b32 s66, s7, 12")
    k.e("s_add_u32 s66, s66, 98304")
    k.e("v_add_u32 v248, s66, v2")
    k.e("v_and_b32 v249, 7, v1")
    k.e("v_lshlrev_b32 v249, 3, v249")
    k.e("s_lshl_b32 s97, s3, 7")
    k.e(f"s_add_u32 s97, s97, {FL1_OFF}")
    k.e("s_lshl_b32 s98, s3, 18")
    k.e("s_add_u32 s98, s98, s40")
    k.e("s_add_u32 s99, s5, 1")
    k.e("s_mov_b32 s49, 0")
    k.e("s_lshl_b32 s54, s69, 2")
    k.e("s_and_b32 s55, s70, 3")
    k.e("s_add_u32 s54, s54, s55")
    k.e("s_lshr_b32 s55, s70, 2")
    k.e("v_lshrrev_b32 v251, 3, v1")
    k.e("v_bfe_u32 v16, v251, 1, 1")
    k.e("v_lshlrev_b32 v16, 2, v16")
    k.e("v_and_b32 v17, 7, v1")
    k.e("v_xor_b32 v16, v16, v17")
    k.e("v_lshlrev_b32 v16, 4, v16")
    k.e("v_mul_u32_u24 v251, 896, v251")
    k.e("v_add_u32 v251, v251, v16")
    k.e("s_mul_i32 s100, s55, 112")
    k.e("s_mul_i32 s101, s6, 7168")
    k.e("s_add_u32 s100, s100, s101")
    k.e("s_mov_b32 s101, s100")
    k.e(f"s_add_u32 s43, s61, {WOB + 7*8192}")
    srd(k, 44, "s18", "s19", WO_BYTES)
    k.e("s_lshl_b32 s48, s3, 18")
    k.e("s_lshl_b32 s53, s5, 15")
    k.e("s_add_u32 s48, s48, s53")
    k.e("s_add_u32 s48, s48, s40")
    k.e("s_add_u32 s67, s40, 65536")
    k.e("v_add_u32 v238, s67, v2")
    k.e("s_lshl_b32 s66, s6, 11")
    k.e("s_add_u32 s66, s66, 98304")
    k.e("v_add_u32 v218, s66, v2")
    k.e("v_and_b32 v240, 31, v1")
    k.e("v_mov_b32 v239, 0x3f803f80")
    k.e("v_cmp_eq_u32 vcc, 28, v240")
    k.nop(2)
    k.e("v_cndmask_b32 v239, 0, v239, vcc")
    XR, QA, KA, VA, WF = 64, 16, 32, 48, 176
    KF, VF, QF = 200, 208, 220
    k.stamp("pro")
    WF = 176
    def R(c, vm):
        sl = c % 3
        k.e(f"s_waitcnt vmcnt({vm})")
        k.stamp("pro")
        xb = 8 if sl < 2 else 12
        xo = (sl % 2) * 32768
        for f in range(4):
            k.e(f"ds_read_b128 {vr(XR+(c*4+f)*4)}, v{xb+f} offset:{xo}")
        pieces = []
        if c + 3 <= 6: pieces += x_dma(c + 3)
        if c == 4:
            for n in range(4):
                pieces.append([f"s_add_u32 m0, s40, {WQ + n*1024}", f"s_add_u32 s68, s51, {n*16*2688}", "buffer_load_dwordx4 v6, s[32:35], s68 offen lds"])
            pieces.append(["buffer_load_dwordx2 v[236:237], v235, s[72:75], 0 offen sc1"])
        return pieces
    def wbase():
        k.e("s_lshl_b32 s64, s59, 13")
        k.e("v_add_u32 v242, s64, v232")
        k.e("v_add_u32 v243, s64, v233")
        k.ex(cyc7("s59"))
    def treads(g):
        c, f = divmod(g, 4)
        if f == 0:
            k.e("s_lshl_b32 s64, s59, 13")
            k.e(f"v_add_u32 v{242 + 4*(c&1)}, s64, v232")
            k.e(f"v_add_u32 v{243 + 4*(c&1)}, s64, v233")
            k.ex(cyc7("s59"))
        for seg in range(2):
            for s_ in range(2):
                r = WF + (g % 3)*8 + seg*4 + s_*2
                k.e(f"ds_read_b64_tr_b16 v[{r}:{r+1}], v{242 + 4*(c&1) + seg} offset:{(8*f+4*s_)*128}")
    waits = [6, 6, 5, 5, 5, 5, 5]
    if "notlb" not in EXP: waits = [8, 8, 5, 5, 5, 5, 5]
    for c in range(7):
        sl = c % 3
        k.e(f"s_waitcnt vmcnt({waits[c]})")
        k.stamp("pro")
        if c <= 5: k.e("s_barrier")
        xb = 8 if sl < 2 else 12
        xo = (sl % 2) * 32768
        if c == 0: treads(0)
        for f in range(4):
            k.e(f"ds_read_b128 {vr(XR+(c*4+f)*4)}, v{xb+f} offset:{xo}")
        if c == 0: treads(1)
        pend = []
        if c <= 3: pend.append(w_dma())
        if c + 2 <= 6: pend += x_dma(c + 2)
        if c == 5:
            for n in range(4):
                pend.append([f"s_add_u32 m0, s40, {WQ + n*1024}", f"s_add_u32 s68, s51, {n*16*2688}", "buffer_load_dwordx4 v6, s[32:35], s68 offen lds"])
        if c == 4:
            pend.append(["buffer_load_dwordx2 v[236:237], v235, s[72:75], 0 offen sc1"])
        n = len(pend); cuts = [(n*i)//4 for i in range(5)]
        per = [pend[cuts[i]:cuts[i+1]] for i in range(4)]
        for p in per[0]: k.ex(p)
        for f in range(4):
            g = c*4 + f
            if g + 2 < 28: treads(g + 2)
            if f == 0:
                later = (4 + 4) if c == 0 else (4 if g + 2 < 28 else 0)
            else:
                later = (4 if g + 1 < 28 else 0) + (4 if g + 2 < 28 else 0)
            k.e(f"s_waitcnt lgkmcnt({later})")
            x = XR + g*4; w = WF + (g % 3)*8
            z = "0" if g == 0 else None
            k.e(mfma(KA, w, x, z))
            k.e(mfma(VA, x, w+4, z))
            if f < 3:
                for p in per[f + 1]: k.ex(p)
    k.stamp("all" if "q2" not in STAMPSET else "q2")
    def qreads(n):
        c, f = divmod(n, 4)
        if f == 0:
            k.e("s_lshl_b32 s64, s59, 12")
            k.e(f"v_add_u32 v{242 + 4*(c&1)}, s64, v234")
            k.ex(cyc7("s59"))
        for s_ in range(2):
            r = WF + (n & 3)*4 + s_*2
            k.e(f"ds_read_b64_tr_b16 v[{r}:{r+1}], v{242 + 4*(c&1)} offset:{(8*f + 4*s_)*64}")
    k.e("s_waitcnt vmcnt(4)")
    k.e("s_mov_b32 s58, 0")
    k.lab("L_nonce")
    k.e("v_readfirstlane_b32 s56, v236")
    k.e("v_readfirstlane_b32 s57, v237")
    k.e("s_add_u32 s58, s58, 1")
    k.e(f"s_cmp_ge_u32 s58, {SPIN_MAX}")
    k.e("s_cbranch_scc1 L_nonce_ok")
    k.e("s_cmp_lg_u32 s56, 0")
    k.e("s_cbranch_scc1 L_nonce_ok")
    k.e("buffer_load_dwordx2 v[236:237], v235, s[72:75], 0 offen sc1")
    k.e("s_waitcnt vmcnt(0)")
    k.e("s_branch L_nonce")
    k.lab("L_nonce_ok")
    srd(k, 72, "s12", "s13", WO_BYTES)
    k.e("s_mov_b32 s64, 0xf0000000")
    k.e("s_mov_b32 s65, 0xf0000000")
    k.nop(2)
    k.e("s_mov_b64 exec, s[62:63]")
    for i in (12,13,14): k.e(f"v_mov_b32 v{KA+i}, 1.0")
    k.e(f"v_mov_b32 v{KA+15}, 0")
    k.e("s_mov_b64 exec, -1")
    for i in range(8): k.e(f"v_cvt_pk_bf16_f32 v{KF+i}, v{KA+2*i}, v{KA+2*i+1}")
    k.e(f"buffer_store_dwordx4 {vr(KF)}, v2, s[36:39], s48 offen sc1")
    k.e(f"buffer_store_dwordx4 {vr(KF+4)}, v2, s[36:39], s48 offen offset:1024 sc1")
    for i in range(8): k.e(f"v_cvt_pk_bf16_f32 v{VF+i}, v{VA+2*i}, v{VA+2*i+1}")
    k.e("s_mov_b64 exec, s[64:65]")
    for i in range(8): k.e(f"v_mov_b32 v{VF+i}, v239")
    k.e("s_mov_b64 exec, -1")
    k.e(f"buffer_store_dwordx4 {vr(VF)}, v2, s[36:39], s48 offen offset:2048 sc1")
    k.e(f"buffer_store_dwordx4 {vr(VF+4)}, v2, s[36:39], s48 offen offset:3072 sc1")
    for i, r in enumerate((KF, KF+4, VF, VF+4)): k.e(f"ds_write_b128 v238, {vr(r)} offset:{i*1024}")
    k.stamp("q2")
    k.e("s_waitcnt vmcnt(4)")
    k.e("ds_write_b16 v217, v216")
    k.e("s_waitcnt lgkmcnt(0)")
    k.e("s_barrier")
    k.stamp("q2")
    qreads(0); qreads(1); qreads(2)
    for n in range(28):
        if n + 3 < 28: qreads(n + 3)
        later = 2 * min(3, 27 - n)
        k.e(f"s_waitcnt lgkmcnt({later})")
        k.e(mfma(QA, WF + (n & 3)*4, XR + n*4, "0" if n == 0 else None))
    k.stamp("all" if "q2" not in STAMPSET else "q2")
    QR, OA, OB, S0, S1, PR, KR, VR, ST = 16, 32, 48, 64, 80, 96, 104, 120, 136
    GS = 250
    k.e(f"s_mov_b32 s64, {hex(f2u(CSCALE))}")
    k.e("v_mov_b32 v6, v244")
    k.e("v_mov_b32 v7, v245")
    k.e("v_add_u32 v3, 65536, v244")
    k.e("v_mov_b32 v4, v244")
    k.e("v_mov_b32 v5, v245")
    k.e("v_mov_b32 v9, v248")
    k.e("v_mov_b32 v10, v249")
    k.e("v_mov_b32 v11, v251")
    k.nop(3)
    k.e(f"v_mov_b32 v12, v{QA+12}")
    k.e(f"v_mov_b32 v{GS}, v{QA+12}")
    for i in range(12): k.e(f"v_mul_f32 v{QA+i}, s64, v{QA+i}")
    k.e(f"v_permlane32_swap_b32 v12, v{GS}")
    for i in range(6): k.e(f"v_cvt_pk_bf16_f32 v{QF+i}, v{QA+2*i}, v{QA+2*i+1}")
    k.e(f"v_mov_b32 v{QF+6}, 0")
    k.e(f"v_mov_b32 v{QF+7}, 0")
    k.e("s_mov_b32 exec_hi, 0")
    k.e(f"v_mul_f32 v{QA+12}, s64, v{QA+12}")
    k.e(f"v_mul_f32 v{QA+13}, s64, v{QA+13}")
    k.e(f"v_mul_f32 v{QA+14}, s64, v{QA+14}")
    k.e(f"v_mul_f32 v{QA+15}, s64, v{QA+15}")
    k.e(f"v_cvt_pk_bf16_f32 v{QF+6}, v{QA+12}, v{QA+13}")
    k.e(f"v_cvt_pk_bf16_f32 v{QF+7}, v{QA+14}, v{QA+15}")
    k.e("s_mov_b64 exec, -1")
    SS = 96
    k.e(f"v_mul_f32 v{GS}, s60, v{GS}")
    k.e(f"v_exp_f32 v{GS}, v{GS}")
    k.e(mfma(SS, KF, QF, "0"))
    k.e(mfma(SS, KF+4, QF+4))
    k.e(f"v_add_f32 v{GS}, 1.0, v{GS}")
    k.e(f"v_rcp_f32 v{GS}, v{GS}")
    k.e(f"ds_write_b128 v218, {vr(QF)}")
    k.nop(9)
    k.e(f"v_max3_f32 v12, v{SS}, v{SS+1}, v{SS+2}")
    k.e(f"v_max3_f32 v13, v{SS+3}, v{SS+4}, v{SS+5}")
    k.e(f"v_max3_f32 v12, v12, v{SS+6}, v{SS+7}")
    k.e(f"v_max3_f32 v13, v13, v{SS+8}, v{SS+9}")
    k.e(f"v_max3_f32 v12, v12, v{SS+10}, v{SS+11}")
    k.e(f"v_max3_f32 v13, v13, v{SS+12}, v{SS+13}")
    k.e(f"v_max3_f32 v12, v12, v{SS+14}, v{SS+15}")
    k.e("v_max_f32 v12, v12, v13")
    k.e("v_mov_b32 v13, v12")
    k.nop(2)
    k.e("v_permlane32_swap_b32 v12, v13")
    k.nop(1)
    k.e("v_max_f32 v12, v12, v13")
    shift_split(k, 12, 13, 14, 15, QF+6, QF+7)
    k.e(f"ds_write_b128 v218, {vr(QF+4)} offset:1024")
    k.e("s_waitcnt vmcnt(0) lgkmcnt(0)")
    k.e("s_barrier")
    k.e("s_cmp_lg_u32 s6, 0")
    k.e("s_cbranch_scc1 L_noflag1")
    k.e("s_lshl_b32 s66, s3, 7")
    k.e("s_lshl_b32 s67, s5, 3")
    k.e("s_add_u32 s66, s66, s67")
    k.e(f"s_add_u32 s66, s66, {FL1_OFF}")
    k.e("v_mov_b32 v236, s56")
    k.e("v_mov_b32 v237, s57")
    k.e("s_mov_b64 exec, 1")
    k.e("buffer_store_dwordx2 v[236:237], v235, s[36:39], s66 offen sc1")
    k.e("s_mov_b64 exec, -1")
    k.lab("L_noflag1")
    k.stamp("all" if "q2" not in STAMPSET else "q2")
    k.e(f"ds_read_b128 {vr(QR)}, v9")
    k.e(f"ds_read_b128 {vr(QR+4)}, v9 offset:1024")
    k.e(f"ds_read_b128 {vr(KR)}, v3")
    k.e(f"ds_read_b128 {vr(KR+4)}, v3 offset:1024")
    k.e(f"ds_read_b128 {vr(QR+8)}, v9 offset:2048")
    k.e(f"ds_read_b128 {vr(QR+12)}, v9 offset:3072")
    k.e("s_waitcnt lgkmcnt(2)")
    k.e(mfma(S0, KR, QR, "0"))
    k.e(mfma(S0, KR+4, QR+4))
    k.e("s_waitcnt lgkmcnt(0)")
    k.nop(11)
    def Lload():
        if "noload" in EXP: return ["s_add_u32 s99, s99, 1"]
        return ["s_and_b32 s53, s99, 7", "s_lshl_b32 s53, s53, 15", "s_add_u32 s53, s53, s98", "s_add_u32 s99, s99, 1"] + \
               [f"buffer_load_dwordx4 {vr(ST+4*i)}, v2, s[36:39], s53 offen offset:{i*1024} sc1" for i in range(4)]
    def slot(Sbuf, pv, sq, extra, pvmode="acc"):
        e = [f"v_exp_f32 v{Sbuf+i}, v{Sbuf+i}" for i in range(16)]
        c = [f"v_cvt_pk_bf16_f32 v{PR+i}, v{Sbuf+2*i}, v{Sbuf+2*i+1}" for i in range(8)]
        O, V = pv; Sd, Kb, Qb = sq
        mPV0 = mfma(O, V, PR, "0" if pvmode == "zero" else None); mPV1 = mfma(O, V+4, PR+4)
        if pvmode == "skip": mPV0 = "s_nop 0"; mPV1 = "s_nop 0"
        mS0 = mfma(Sd, Kb, Qb, "0"); mS1 = mfma(Sd, Kb+4, Qb+4)
        seq = [mPV0, e[0], e[1], e[2], c[0], e[3], e[4], mS0, c[1], e[5], e[6], e[7], c[2], e[8], mS1, e[9], c[3],
               e[10], e[11], e[12], mPV1, e[13], c[4], e[14], c[5], e[15], c[6], c[7]]
        if "sfirst" in VAR:
            seq = [mPV0, e[0], e[1], e[2], mS0, c[0], e[3], e[4], e[5], mS1, c[1], e[6], e[7], c[2], e[8], e[9], c[3],
                   e[10], mPV1, e[11], e[12], e[13], c[4], e[14], c[5], e[15], c[6], c[7]]
        for pos, x in enumerate(seq):
            k.ex(extra.get(pos, []))
            k.e(x)
    def bdma():
        if "nowo" in EXP: return []
        return ["s_mov_b32 m0, s43", "s_add_u32 s43, s43, 8192", "buffer_load_dwordx4 v11, s[44:47], s101 offen lds", f"s_add_u32 s101, s101, {8*7168}"]
    def wr(i):
        if "nowrite" in EXP: return []
        return [f"ds_write_b128 v5, {vr(ST+4*i)} offset:{i*1024}"]
    def Laddr(): return ["s_and_b32 s53, s99, 7", "s_lshl_b32 s53, s53, 15", "s_add_u32 s53, s53, s98", "s_add_u32 s99, s99, 1", "s_add_u32 s68, s67, s40"]
    def Lp(i):
        if "noload" in EXP: return []
        return ["s_mov_b32 m0, s68", "s_nop 0", f"buffer_load_dwordx4 v2, s[36:39], s53 offen offset:{i*1024} sc1 lds"]
    def rot(): return ["s_add_u32 s67, s67, 32768", "s_cmp_eq_u32 s67, 98304", "s_cselect_b32 s67, 0, s67"]
    def body(kind):
        for t in range(4):
            kb = KR + (t & 1) * 8; kn = KR + ((t + 1) & 1) * 8
            vb = VR + (t & 1) * 8; vp = VR + ((t + 1) & 1) * 8
            exA = {}; exB = {0: ["s_waitcnt lgkmcnt(0)"]}
            def add(d, p, l): d.setdefault(p, []); d[p] = d[p] + l
            if t < 3:
                rk = [f"ds_read_b128 {vr(kn)}, v3 offset:{(t+1)*4096}", f"ds_read_b128 {vr(kn+4)}, v3 offset:{(t+1)*4096+1024}"]
            else:
                rk = [f"ds_read_b128 {vr(kn)}, v4", f"ds_read_b128 {vr(kn+4)}, v4 offset:1024"]
            rv = [f"ds_read_b128 {vr(vb)}, v3 offset:{t*4096+2048}", f"ds_read_b128 {vr(vb+4)}, v3 offset:{t*4096+3072}"]
            late_k = (kind == "first" and t == 3)
            if kind == "last":
                if t == 0: add(exA, 0, ["s_barrier"])
                def adma(n): return [f"s_add_u32 m0, s61, {WOB + n*8192}", f"s_add_u32 s64, s100, {n*8*7168}", "buffer_load_dwordx4 v11, s[72:75], s64 offen lds"]
                if "aspread" in VAR or True:
                    add(exA, 12, adma(2*t))
                    if 2*t + 1 < 7: add(exB, 12, adma(2*t + 1))
            if kind == "first" and t == 2:
                add(exA, 0, k.stamp_list("loop") + poll_list("L_p1", 10, "s97", 152, True) + k.stamp_list("loop") + Laddr() + Lp(0))
                add(exA, 8, Lp(1)); add(exA, 16, Lp(2)); add(exA, 24, Lp(3) + rot())
            if late_k:
                exB[0] = ["s_waitcnt vmcnt(0) lgkmcnt(0)", "s_barrier"] + rk
                add(exB, 2, Laddr() + Lp(0)); add(exB, 7, ["s_waitcnt lgkmcnt(0)"])
                add(exB, 9, Lp(1)); add(exB, 15, Lp(2)); add(exB, 21, Lp(3) + rot())
                add(exA, 5, [rv[0]]); add(exA, 8, [rv[1]])
            else:
                if "vfirst" in VAR:
                    add(exA, 1, [rv[0]]); add(exA, 3, [rv[1]]); add(exA, 5, [rk[0]]); add(exA, 8, [rk[1]])
                    exB[0] = ["s_waitcnt lgkmcnt(2)"]; add(exB, 7, ["s_waitcnt lgkmcnt(0)"])
                elif "early" in VAR:
                    add(exA, 1, [rv[0], rv[1]]); add(exA, 2, [rk[0], rk[1]])
                    exB[0] = ["s_waitcnt lgkmcnt(0)"]
                elif "late" in VAR:
                    add(exA, 9, [rv[0]]); add(exA, 12, [rv[1]]); add(exA, 17, [rk[0]]); add(exA, 22, [rk[1]])
                    exB[0] = ["s_waitcnt lgkmcnt(2)"]; add(exB, 7, ["s_waitcnt lgkmcnt(0)"])
                else:
                    add(exA, 1, [rk[0]]); add(exA, 3, [rk[1]]); add(exA, 5, [rv[0]]); add(exA, 8, [rv[1]])
            if kind == "mid1" and t == 0:
                add(exA, 12, bdma()); add(exB, 12, bdma());
            if kind == "mid1" and t == 1:
                add(exA, 12, bdma()); add(exB, 12, bdma())
            if kind in ("mid", "mid1", "c6"):
                m = kind != "c6"
                if t == 0 and kind in ("mid", "c6"):
                    add(exA, 14, Lp(2)); add(exB, 14, Lp(3) + rot())
                if t == 2 and kind == "mid": add(exA, 14, bdma())
                if t == 3:
                    nyoung = 1 if kind == "mid" else (4 if kind == "mid1" else 0)
                    add(exA, 0, [f"s_waitcnt vmcnt({nyoung}) lgkmcnt(0)"] + ([] if "nobar" in EXP else ["s_barrier"]))
                    if m: add(exA, 10, Laddr() + Lp(0)); add(exB, 10, Lp(1))
                    if not m:
                        add(exA, 10, ["v_lshrrev_b32 v12, 3, v1", "v_lshlrev_b32 v12, 6, v12", "v_and_b32 v13, 7, v1", "v_add_u32 v12, v12, v13", "v_mul_u32_u24 v12, 896, v12",
                                      "buffer_load_dword v240, v12, s[72:75], s100 offen"])
                        add(exB, 10, ["buffer_load_dword v241, v12, s[72:75], s100 offen offset:124"])
            if t == 3 and kind != "last":
                add(exB, 20, ["v_mov_b32 v3, v4", "s_add_u32 s49, s49, 32768", "s_cmp_eq_u32 s49, 98304", "s_cselect_b32 s49, 0, s49"])
                add(exB, 22, ["v_add_u32 v4, s49, v6"])
                if kind == "mid":
                    add(exB, 24, ["s_add_u32 s48, s48, 1"]); add(exB, 26, ["s_cmp_lt_u32 s48, 6"])
            fa = "skip" if (kind == "first" and t == 0) else "zero" if (kind == "first" and t == 1) else "acc"
            fb = "zero" if (kind == "first" and t == 0) else "acc"
            slot(S0, (OB, vp), (S1, kb, QR+8), exA, fa)
            slot(S1, (OA, vb), (S0, kn, QR), exB, fb)
    if "prio" in EXP:
        k.e("s_cmp_lt_u32 s6, 4")
        k.e("s_cbranch_scc1 L_noprio")
        k.e("s_setprio 1")
        k.lab("L_noprio")
    if "prio2" in EXP:
        k.e("s_cmp_ge_u32 s6, 4")
        k.e("s_cbranch_scc1 L_noprio")
        k.e("s_setprio 1")
        k.lab("L_noprio")
    k.e("s_mov_b32 s67, 0")
    body("first")
    k.stamp("loop2")
    body("mid1")
    k.e("s_mov_b32 s48, 2")
    k.e(".p2align 6")
    k.lab("L_loop")
    body("mid")
    k.e("s_cbranch_scc1 L_loop")
    k.stamp("loop2")
    body("c6")
    k.stamp("loop2")
    body("last")
    k.stamp()
    k.nop(2)
    k.e(mfma(OB, VR+8, PR))
    k.e(mfma(OB, VR+12, PR+4))
    k.e("v_add_u32 v11, s40, v2")
    k.e("s_xor_b32 s29, s6, 1")
    k.e("s_lshl_b32 s29, s29, 12")
    k.e("v_add_u32 v12, s29, v2")
    k.e("s_lshl_b32 s29, s41, 16")
    k.e("s_lshl_b32 s30, s3, 11")
    k.e("s_add_u32 s29, s29, s30")
    k.e(f"s_add_u32 s29, s29, {OF_OFF}")
    k.e("s_barrier")
    k.nop(4)
    k.e("s_cmp_eq_u32 s96, 0")
    k.e("s_cbranch_scc0 L_x1")
    for i in range(4): k.e(f"ds_write_b128 v11, {vr(OB+4*i)} offset:{i*1024}")
    k.e("s_waitcnt lgkmcnt(0)")
    k.e("s_barrier")
    for i in range(4): k.e(f"ds_read_b128 {vr(S0+4*i)}, v12 offset:{i*1024}")
    for i in range(16):
        if i % 4 == 0: k.e(f"s_waitcnt lgkmcnt({3 - i//4})")
        k.e(f"v_add_f32 v{OA+i}, v{OA+i}, v{S0+i}")
    k.e("s_branch L_xd")
    k.lab("L_x1")
    for i in range(4): k.e(f"ds_write_b128 v11, {vr(OA+4*i)} offset:{i*1024}")
    k.e("s_waitcnt lgkmcnt(0)")
    k.e("s_barrier")
    for i in range(4): k.e(f"ds_read_b128 {vr(S0+4*i)}, v12 offset:{i*1024}")
    for i in range(16):
        if i % 4 == 0: k.e(f"s_waitcnt lgkmcnt({3 - i//4})")
        k.e(f"v_add_f32 v{OA+i}, v{OB+i}, v{S0+i}")
    k.lab("L_xd")
    k.e("s_mov_b32 s59, 0")
    k.lab("L_norm")
    k.e("s_mov_b32 s64, 0x203")
    k.e(f"v_mov_b32 v13, v{OA+12}")
    k.e(f"v_mov_b32 v14, v{OA+12}")
    k.e(f"v_maximum3_f32 v15, |v{OA}|, |v{OA+1}|, |v{OA+2}|")
    k.e(f"v_maximum3_f32 v15, |v{OA+3}|, |v{OA+4}|, v15")
    k.e("v_permlane32_swap_b32 v13, v14")
    for i in range(5, 15, 2): k.e(f"v_maximum3_f32 v15, |v{OA+i}|, |v{OA+i+1}|, v15")
    k.e("v_rcp_f32 v13, v14")
    k.e(f"v_maximum3_f32 v15, |v{OA+15}|, |v14|, v15")
    k.e(f"v_mul_f32 v13, v13, v{GS}")
    k.e("v_cmp_class_f32 vcc, v15, s64")
    for i in range(12): k.e(f"v_mul_f32 v{OA+i}, v{OA+i}, v13")
    k.e("s_cmp_lg_u32 s59, 0")
    k.e("s_cbranch_scc1 L_norm_ok")
    k.e("s_cmp_lg_u64 vcc, 0")
    k.e("s_cbranch_scc1 L_fallback")
    k.lab("L_norm_ok")
    for i in range(12, 16): k.e(f"v_mul_f32 v{OA+i}, v{OA+i}, v13")
    k.e("s_mov_b64 exec, s[62:63]")
    for i in (12,13,14,15): k.e(f"v_mov_b32 v{OA+i}, 0")
    k.e("s_mov_b64 exec, -1")
    for i in range(4): k.e(f"v_cvt_pk_bf16_f32 v{PR+i}, v{OA+2*i}, v{OA+2*i+1}")
    k.e(f"buffer_store_dwordx4 {vr(PR)}, v2, s[36:39], s29 offen sc1")
    for i in range(4, 8): k.e(f"v_cvt_pk_bf16_f32 v{PR+i}, v{OA+2*i}, v{OA+2*i+1}")
    k.e(f"buffer_store_dwordx4 {vr(PR+4)}, v2, s[36:39], s29 offen offset:1024 sc1")
    k.e("s_lshr_b32 s7, s6, 2")
    k.e("s_and_b32 s28, s6, 3")
    k.e("v_lshrrev_b32 v5, 5, v1")
    k.e("v_lshlrev_b32 v5, 2, v5")
    k.e("v_bfe_u32 v6, v1, 2, 2")
    k.e("v_add_u32 v5, v5, v6")
    k.e("v_lshlrev_b32 v5, 7, v5")
    k.e("v_bfe_u32 v7, v1, 4, 1")
    k.e("v_lshlrev_b32 v7, 1, v7")
    k.e("v_bfe_u32 v8, v1, 1, 1")
    k.e("v_add_u32 v7, v7, v8")
    k.e("v_bfe_u32 v8, v6, 1, 1")
    k.e("v_lshlrev_b32 v8, 2, v8")
    k.e("v_xor_b32 v7, v7, v8")
    k.e("v_lshlrev_b32 v7, 4, v7")
    k.e("v_add_u32 v5, v5, v7")
    k.e("v_and_b32 v7, 1, v1")
    k.e("v_lshlrev_b32 v7, 3, v7")
    k.e("v_add_u32 v5, v5, v7")
    k.e("v_xor_b32 v6, 64, v5")
    k.e("s_mul_i32 s29, s28, 28672")
    k.e(f"s_add_u32 s29, s29, {WOB}")
    k.e("v_add_u32 v5, s29, v5")
    k.e("v_add_u32 v6, s29, v6")
    k.e("v_mov_b32 v13, 0")
    k.e("v_and_b32 v10, 31, v1")
    k.e("v_lshlrev_b32 v11, 3, v10")
    k.e("s_lshr_b32 s66, s54, 2")
    k.e("s_lshl_b32 s66, s66, 8")
    k.e(f"s_add_u32 s66, s66, {FL2_OFF}")
    k.e("s_lshl_b32 s32, s54, 1")
    k.e("s_add_u32 s32, s32, s7")
    k.e("s_lshl_b32 s33, s32, 16")
    k.e("s_lshl_b32 s34, s28, 14")
    k.e("s_add_u32 s33, s33, s34")
    k.e(f"s_add_u32 s33, s33, {OF_OFF}")
    k.e("s_lshl_b32 s29, s7, 15")
    k.e("s_lshl_b32 s30, s28, 12")
    k.e("s_add_u32 s29, s29, s30")
    k.e("v_add_u32 v16, s29, v2")
    k.e("s_bfe_u32 s29, s6, 0x10001")
    k.e("s_and_b32 s30, s6, 1")
    k.e("s_lshl_b32 s31, s7, 15")
    k.e("s_lshl_b32 s34, s29, 14")
    k.e("s_add_u32 s31, s31, s34")
    k.e("s_lshl_b32 s34, s30, 11")
    k.e("s_add_u32 s31, s31, s34")
    k.e("v_add_u32 v17, s31, v2")
    k.e("v_mul_u32_u24 v18, 896, v10")
    k.e("v_lshrrev_b32 v12, 5, v1")
    k.e("v_lshlrev_b32 v12, 4, v12")
    k.e("v_add_u32 v18, v18, v12")
    k.e("s_lshl_b32 s31, s29, 6")
    k.e("s_lshl_b32 s34, s30, 5")
    k.e("s_add_u32 s31, s31, s34")
    k.e("v_add_u32 v12, s31, v12")
    k.e("v_cmp_gt_u32 vcc, 112, v12")
    k.e("s_mul_i32 s34, s55, 112")
    k.e("s_add_u32 s31, s31, s34")
    k.e("s_mul_i32 s34, s32, 28672")
    k.e("s_add_u32 s31, s31, s34")
    k.e("v_mov_b32 v19, 0x7fffffff")
    k.e("v_cndmask_b32 v18, v19, v18, vcc")
    srd(k, 48, "s22", "s23", OUT_BYTES)
    k.e("s_waitcnt vmcnt(0)")
    k.e("s_barrier")
    k.stamp()
    k.e("s_cmp_lg_u32 s6, 0")
    k.e("s_cbranch_scc1 L_noflag2")
    k.e("s_lshl_b32 s64, s5, 8")
    k.e("s_lshl_b32 s67, s3, 3")
    k.e("s_add_u32 s64, s64, s67")
    k.e(f"s_add_u32 s64, s64, {FL2_OFF}")
    k.e("v_mov_b32 v14, s56")
    k.e("v_mov_b32 v15, s57")
    k.e("s_mov_b64 exec, 1")
    k.e("buffer_store_dwordx2 v[14:15], v13, s[36:39], s64 offen sc1")
    k.e("s_mov_b64 exec, -1")
    k.lab("L_noflag2")
    k.ex(poll_list("L_p2", 11, "s66", 14, False))
    k.stamp()
    OR = 64
    for i in range(16):
        if i % 4 == 0 and i > 0: k.e("s_add_u32 s33, s33, 4096")
        k.e(f"buffer_load_dwordx4 {vr(OR+4*i)}, v2, s[36:39], s33 offen offset:{(i%4)*1024} sc1")
    A0, A1, WF3 = 32, 48, 128
    steps = [(hh, m) for hh in range(8) for m in range(2)]
    def treads3(hh, m, buf):
        for ct in range(2):
            for s_ in range(2):
                r = WF3 + buf*8 + ct*4 + s_*2
                k.e(f"ds_read_b64_tr_b16 v[{r}:{r+1}], v{5+ct} offset:{(hh*28 + 16*m + 8*s_) * 128}")
    treads3(*steps[0], 0)
    for i, (hh, m) in enumerate(steps):
        if i + 1 < len(steps):
            treads3(*steps[i+1], (i+1) & 1)
            k.e(f"s_waitcnt vmcnt({15-i}) lgkmcnt(4)")
        else:
            k.e(f"s_waitcnt vmcnt({15-i}) lgkmcnt(0)")
        w = WF3 + (i & 1)*8
        z = "0" if i == 0 else None
        k.e(mfma(A0, w, OR+4*i, z))
        k.e(mfma(A1, w+4, OR+4*i, z))
    k.stamp()
    k.e("s_barrier")
    k.nop(10)
    for q in range(4): k.e(f"ds_write_b128 v16, {vr(A0+4*q)} offset:{q*1024}")
    for q in range(4): k.e(f"ds_write_b128 v16, {vr(A1+4*q)} offset:{16384+q*1024}")
    k.e("s_waitcnt lgkmcnt(0)")
    k.e("s_barrier")
    for kq in range(4):
        for q in range(2):
            k.e(f"ds_read_b128 {vr(64+kq*8+q*4)}, v17 offset:{kq*4096+q*1024}")
    k.e("s_waitcnt lgkmcnt(4)")
    for i in range(8): k.e(f"v_add_f32 v{64+i}, v{64+i}, v{72+i}")
    k.e("s_waitcnt lgkmcnt(0)")
    for i in range(8): k.e(f"v_add_f32 v{80+i}, v{80+i}, v{88+i}")
    for i in range(8): k.e(f"v_add_f32 v{64+i}, v{64+i}, v{80+i}")
    for i in range(4): k.e(f"v_cvt_pk_bf16_f32 v{20+i}, v{64+2*i}, v{65+2*i}")
    k.nop(2)
    k.e("v_permlane32_swap_b32 v20, v22")
    k.e("v_permlane32_swap_b32 v21, v23")
    k.nop(1)
    k.e("buffer_store_dwordx4 v[20:23], v18, s[48:51], s31 offen")
    k.stamp()
    k.stamp_flush()
    k.lab("L_end")
    k.e("s_endpgm")
    k.lab("L_fallback")
    k.e("s_mov_b32 s59, 1")
    k.e("s_and_b32 s30, s6, 1")
    k.e("s_cmp_eq_u32 s30, 0")
    k.e("s_cbranch_scc1 L_fbq")
    for i in range(8): k.e(f"v_mov_b32 v{QR+i}, v{QR+8+i}")
    k.lab("L_fbq")
    k.e("s_mov_b64 exec, s[62:63]")
    k.e(f"v_mov_b32 v{QR+6}, 0")
    k.e(f"v_mov_b32 v{QR+7}, 0")
    k.e("s_mov_b64 exec, -1")
    k.e("v_mov_b32 v13, 0xff800000")
    k.e("s_lshl_b32 s64, s3, 18")
    k.e("s_mov_b32 s30, 0")
    k.lab("L_fb1")
    k.e(f"buffer_load_dwordx4 {vr(KR)}, v2, s[36:39], s64 offen sc1")
    k.e(f"buffer_load_dwordx4 {vr(KR+4)}, v2, s[36:39], s64 offen offset:1024 sc1")
    k.e("s_waitcnt vmcnt(0)")
    k.e(mfma(S0, KR, QR, "0"))
    k.e(mfma(S0, KR+4, QR+4))
    k.nop(12)
    for i in range(0, 16, 2): k.e(f"v_max3_f32 v13, v13, v{S0+i}, v{S0+i+1}")
    k.e("s_add_u32 s64, s64, 4096")
    k.e("s_add_u32 s30, s30, 1")
    k.e("s_cmp_lt_u32 s30, 64")
    k.e("s_cbranch_scc1 L_fb1")
    k.e("v_mov_b32 v14, v13")
    k.nop(2)
    k.e("v_permlane32_swap_b32 v13, v14")
    k.nop(1)
    k.e("v_max_f32 v13, v13, v14")
    shift_split(k, 13, 14, 15, 12, QR+6, QR+7)
    for i in range(16): k.e(f"v_mov_b32 v{OA+i}, 0")
    k.e("s_lshl_b32 s64, s3, 18")
    k.e("s_mov_b32 s30, 0")
    k.lab("L_fb2")
    k.e(f"buffer_load_dwordx4 {vr(KR)}, v2, s[36:39], s64 offen sc1")
    k.e(f"buffer_load_dwordx4 {vr(KR+4)}, v2, s[36:39], s64 offen offset:1024 sc1")
    k.e(f"buffer_load_dwordx4 {vr(VR)}, v2, s[36:39], s64 offen offset:2048 sc1")
    k.e(f"buffer_load_dwordx4 {vr(VR+4)}, v2, s[36:39], s64 offen offset:3072 sc1")
    k.e("s_waitcnt vmcnt(0)")
    k.e(mfma(S0, KR, QR, "0"))
    k.e(mfma(S0, KR+4, QR+4))
    k.nop(12)
    for i in range(16): k.e(f"v_exp_f32 v{S0+i}, v{S0+i}")
    k.nop(1)
    for i in range(8): k.e(f"v_cvt_pk_bf16_f32 v{PR+i}, v{S0+2*i}, v{S0+2*i+1}")
    k.nop(2)
    k.e(mfma(OA, VR, PR))
    k.e(mfma(OA, VR+4, PR+4))
    k.e("s_add_u32 s64, s64, 4096")
    k.e("s_add_u32 s30, s30, 1")
    k.e("s_cmp_lt_u32 s30, 64")
    k.e("s_cbranch_scc1 L_fb2")
    k.nop(12)
    k.e("s_branch L_norm")
    return k.l, dict(vgpr=252, sgpr=100, lds=163840, block=512)

def main(outpath):
    l, m = gen()
    o = [f"; gated_mix mha block, fused single launch (projection -> attention -> output projection, flag hand-offs). Generated by my own generator script.",
         f"; @launch grid=(256,1,1) block=({m['block']},1,1) lds={m['lds']}",
         '.amdgcn_target "amdgcn-amd-amdhsa--gfx950"', ".text", f".globl {KNAME}", ".p2align 8", f".type {KNAME},@function"] + l
    acc = (m['vgpr'] + 3) // 4 * 4
    o += ['.section .rodata,"a"', ".p2align 6", f".amdhsa_kernel {KNAME}", f"  .amdhsa_next_free_vgpr {m['vgpr']}", f"  .amdhsa_next_free_sgpr {m['sgpr']}",
          f"  .amdhsa_accum_offset {acc}", "  .amdhsa_group_segment_fixed_size 0", "  .amdhsa_kernarg_size 80",
          "  .amdhsa_user_sgpr_count 2", "  .amdhsa_user_sgpr_kernarg_segment_ptr 1", "  .amdhsa_system_sgpr_workgroup_id_x 1", ".end_amdhsa_kernel"]
    open(outpath, "w").write("\n".join(o) + "\n")

if __name__ == "__main__":
    main(sys.argv[1] if len(sys.argv) > 1 else f"cdna_kernels/{NAME}.s")
```

```python
import sys, math, os, struct

NAME = "gated_mix__mha_block__softmax_full_mha__prompt"
KNAME = NAME + "_kernel"
X_BYTES = 2048 * 448 * 2
W_BYTES = 448 * 1344 * 2
WO_BYTES = 448 * 448 * 2
OUT_BYTES = 2048 * 448 * 2
KV_OFF = 0
OF_OFF = 8 << 20
FL1_OFF = (12 << 20) + 8192
FL2_OFF = (12 << 20) + 16384
STAMP_OFF = 13 << 20
WS_USED = 14 << 20
LOG2E = math.log2(math.e)
CSCALE = (28 ** -0.5) * LOG2E
STAMP = int(os.environ.get("STAMP", "0"))
STAMPSET = os.environ.get("STAMPSET", "all").split(",")
EXP = os.environ.get("EXP", "").split(",")
SPIN_MAX = 1 << 18
TICKET = int(os.environ.get("TICKET", "0"))
VAR = os.environ.get("VAR", "").split(",")
PF0 = int(os.environ.get("PF0", "1"))
def f2u(x): return struct.unpack('<I', struct.pack('<f', x))[0]

class K:
    def __init__(s): s.l = []; s.ns = 0
    def e(s, t):
        if t.endswith(":"): s.l.append(t)
        else: s.l.append("  " + t)
    def ex(s, ts):
        for t in ts: s.e(t)
    def lab(s, t): s.l.append(t + ":")
    def nop(s, n):
        while n > 0:
            k = min(n, 16); s.e(f"s_nop {k-1}"); n -= k
    def stamp(s, tag="all"):
        if not STAMP: return
        if tag not in STAMPSET and s.ns > 0: return
        i = s.ns; s.ns += 1
        assert i < 14
        if i == 0:
            s.e("s_memrealtime s[76:77]"); s.e("s_waitcnt lgkmcnt(0)"); s.e("s_mov_b32 s94, s76")
        s.e("s_memrealtime s[76:77]" if os.environ.get("STAMPRT") else "s_memtime s[76:77]"); s.e("s_waitcnt lgkmcnt(0)"); s.e(f"s_mov_b32 s{80+i}, s76")
    def stamp_list(s, tag):
        save = s.l; s.l = []
        s.stamp(tag)
        out = [x.strip() for x in s.l]; s.l = save
        return out
    def stamp_flush(s):
        if not STAMP: return
        if os.environ.get("STAMPDBG") == "multi":
            ia, ib = [int(x) for x in os.environ.get("STAMPIDX", "0,7").split(",")]
            base = int(os.environ.get("STAMPBASE", "248"))
            s.e(f"s_sub_u32 s78, s2, {base+1}"); s.e("s_cmp_ge_u32 s78, 7"); s.e("s_cbranch_scc1 L_nodbg"); s.e("s_cmp_lg_u32 s6, 0"); s.e("s_cbranch_scc1 L_nodbg")
            s.e("s_mov_b32 s72, s24"); s.e("s_mov_b32 s73, s25"); s.e("s_mov_b32 s74, 256"); s.e("s_mov_b32 s75, 0x20000")
            s.e("s_lshl_b32 s78, s78, 3"); s.e("s_add_u32 s78, s78, 8")
            s.e("v_mov_b32 v0, 0"); s.e("s_mov_b64 exec, 1")
            s.e(f"s_sub_u32 s79, s{80+ia}, s56"); s.e("v_mov_b32 v2, s79"); s.e(f"s_sub_u32 s79, s{80+ib}, s56"); s.e("v_mov_b32 v3, s79")
            s.e("buffer_store_dwordx2 v[2:3], v0, s[72:75], s78 offen")
            s.e("s_mov_b64 exec, -1")
            s.lab("L_nodbg")
            return
        if os.environ.get("STAMPDBG"):
            wgid = int(os.environ["STAMPDBG"])
            s.e(f"s_cmp_lg_u32 s2, {wgid}"); s.e("s_cbranch_scc1 L_nodbg"); s.e("s_cmp_lg_u32 s6, 0"); s.e("s_cbranch_scc1 L_nodbg")
            s.e("s_mov_b32 s72, s24"); s.e("s_mov_b32 s73, s25"); s.e("s_mov_b32 s74, 256"); s.e("s_mov_b32 s75, 0x20000")
            s.e("v_mov_b32 v0, 0"); s.e("s_mov_b64 exec, 1")
            for i in range(14):
                s.e(f"s_sub_u32 s78, s{80+i}, s80")
                s.e(f"v_mov_b32 v1, s78")
                s.e(f"buffer_store_dword v1, v0, s[72:75], 0 offen offset:{8+4*i}")
                s.e("s_nop 1")
            s.e("s_mov_b64 exec, -1")
            s.lab("L_nodbg")
            return
        s.e("s_lshl_b32 s78, s2, 3"); s.e("s_add_u32 s78, s78, s6"); s.e("s_lshl_b32 s78, s78, 6")
        s.e(f"s_add_u32 s78, s78, {STAMP_OFF}")
        s.e("s_memrealtime s[76:77]"); s.e("s_waitcnt lgkmcnt(0)"); s.e("s_mov_b32 s95, s76")
        s.e("v_mov_b32 v0, 0"); s.e("s_mov_b64 exec, 1")
        for i in range(16):
            s.e(f"v_mov_b32 v1, s{80+i}")
            s.e(f"buffer_store_dword v1, v0, s[36:39], s78 offen offset:{4*i}")
            s.e("s_nop 1")
        s.e("s_mov_b64 exec, -1")

def vr(b, n=4): return f"v[{b}:{b+n-1}]"
def mfma(d, a, b, c=None):
    cc = vr(d, 16) if c is None else c
    return f"v_mfma_f32_32x32x16_bf16 {vr(d,16)}, {vr(a)}, {vr(b)}, {cc}"
def srd(k, b, lo, hi, nbytes):
    k.e(f"s_mov_b32 s{b}, {lo}"); k.e(f"s_mov_b32 s{b+1}, {hi}"); k.e(f"s_mov_b32 s{b+2}, {nbytes}"); k.e(f"s_mov_b32 s{b+3}, 0x20000")
def cyc7(r): return [f"s_add_u32 {r}, {r}, 1", f"s_cmp_eq_u32 {r}, 7", f"s_cselect_b32 {r}, 0, {r}"]

def shift_split(k, m, t1, t2, t3, q6, q7):
    k.e(f"v_sub_f32 v{m}, 0, v{m}")
    k.e(f"v_cvt_pk_bf16_f32 v{t1}, v{m}, v{m}")
    k.e(f"v_and_b32 v{t1}, 0xffff0000, v{t1}")
    k.e(f"v_sub_f32 v{t2}, v{m}, v{t1}")
    k.e(f"v_cvt_pk_bf16_f32 v{t3}, v{t2}, v{t2}")
    k.e(f"v_and_b32 v{t3}, 0xffff0000, v{t3}")
    k.e(f"v_sub_f32 v{t2}, v{t2}, v{t3}")
    k.e(f"v_mov_b32 v{m}, 0")
    k.e("s_mov_b64 exec, s[62:63]")
    k.e(f"v_cvt_pk_bf16_f32 v{q6}, v{t1}, v{t3}")
    k.e(f"v_cvt_pk_bf16_f32 v{q7}, v{t2}, v{m}")
    k.e("s_mov_b64 exec, -1")

def poll_list(label, voff, soff, vtmp, first_issued):
    o = ["s_cmp_lg_u32 s6, 0", f"s_cbranch_scc1 {label}_done", "s_mov_b32 s58, 0", f"{label}:",
         f"buffer_load_dwordx2 v[{vtmp}:{vtmp+1}], v{voff}, s[36:39], {soff} offen sc1",
         "s_waitcnt vmcnt(0)", f"v_cmp_eq_u64 vcc, s[56:57], v[{vtmp}:{vtmp+1}]", "s_add_u32 s58, s58, 1",
         f"s_cmp_ge_u32 s58, {SPIN_MAX}", f"s_cbranch_scc1 {label}_done", "s_cmp_eq_u64 vcc, exec", f"s_cbranch_scc1 {label}_done",
         "s_sleep 1", f"s_branch {label}", f"{label}_done:", "s_barrier"]
    return o

def gen():
    k = K()
    k.lab(KNAME)
    k.e("s_cmp_ge_u32 s2, 256")
    k.e("s_cbranch_scc1 L_end")
    k.e("s_load_dwordx16 s[8:23], s[0:1], 0")
    k.e("s_load_dwordx4 s[24:27], s[0:1], 64")
    k.e("v_and_b32 v1, 63, v0")
    k.e("v_lshrrev_b32 v2, 6, v0")
    k.e("s_getreg_b32 s69, hwreg(HW_REG_XCC_ID)")
    k.e("s_getreg_b32 s70, hwreg(HW_REG_HW_ID)")
    k.e("v_readfirstlane_b32 s6, v2")
    k.e("s_and_b32 s69, s69, 7")
    k.stamp()
    k.e("v_lshlrev_b32 v2, 4, v1")
    XS, WKV, WQ, WOB = 0, 98304, 32768, 40960
    k.e("v_lshrrev_b32 v3, 3, v1")
    k.e("v_lshrrev_b32 v4, 1, v3")
    k.e("v_and_b32 v5, 7, v1")
    k.e("v_xor_b32 v4, v4, v5")
    k.e("v_lshlrev_b32 v4, 4, v4")
    k.e("v_mul_u32_u24 v3, 896, v3")
    k.e("v_add_u32 v3, v3, v4")
    k.e("v_xor_b32 v4, 64, v3")
    k.e("v_lshrrev_b32 v5, 3, v1")
    k.e("v_bfe_u32 v6, v1, 2, 1")
    k.e("v_bfe_u32 v7, v1, 4, 1")
    k.e("v_xor_b32 v6, v6, v7")
    k.e("v_mul_u32_u24 v6, 896, v6")
    k.e("v_mul_u32_u24 v5, 2688, v5")
    k.e("v_add_u32 v5, v5, v6")
    k.e("v_and_b32 v6, 3, v1")
    k.e("v_lshlrev_b32 v6, 4, v6")
    k.e("v_add_u32 v5, v5, v6")
    k.e("v_add_u32 v5, 896, v5")
    k.e("v_lshrrev_b32 v7, 2, v1")
    k.e("v_mul_u32_u24 v7, 2688, v7")
    k.e("v_add_u32 v6, v7, v6")
    k.e("s_lshl_b32 s40, s6, 12")
    k.e("s_lshl_b32 s61, s6, 10")
    if TICKET:
        k.e("s_bfe_u32 s4, s70, 0x2000d")
        k.e("s_lshl_b32 s4, s4, 3")
        k.e("s_bfe_u32 s5, s70, 0x30008")
        k.e("s_add_u32 s70, s4, s5")
        k.e("v_mov_b32 v9, 0")
        k.e("v_mov_b32 v8, 1")
        k.e("s_waitcnt lgkmcnt(0)")
        srd(k, 72, "s24", "s25", 256)
        srd(k, 28, "s8", "s9", X_BYTES)
        k.e("s_cmp_lg_u32 s6, 0")
        k.e("s_cbranch_scc1 L_tk0")
        k.e("s_lshl_b32 s64, s69, 5")
        k.e("s_add_u32 s64, s64, 16")
        k.e("s_mov_b64 exec, 1")
        k.e("buffer_atomic_add v8, v9, s[72:75], s64 offen sc0 sc1")
        k.e("s_mov_b64 exec, -1")
        k.lab("L_tk0")
        if PF0:
            k.e("s_cmp_ge_u32 s69, 4")
            k.e("s_cselect_b32 s32, s16, s10")
            k.e("s_cselect_b32 s33, s17, s11")
            k.e(f"s_mov_b32 s34, {W_BYTES}")
            k.e("s_mov_b32 s35, 0x20000")
            k.e("s_cmp_ge_u32 s6, 4")
            k.e("s_cbranch_scc1 L_pfw")
            k.e("s_mul_i32 s68, s70, 224")
            k.e("s_mul_i32 s71, s6, 56")
            k.e("s_add_u32 s68, s68, s71")
            k.e("s_lshl_b32 s68, s68, 7")
            k.e("s_and_b32 s71, s69, 1")
            k.e("s_mul_i32 s71, s71, 917504")
            k.e("s_add_u32 s68, s68, s71")
            k.e("v_lshlrev_b32 v10, 7, v1")
            k.e("s_mov_b32 exec_hi, 0x00ffffff")
            k.e("buffer_load_dword v240, v10, s[28:31], s68 offen")
            k.e("s_branch L_pfd")
            k.lab("L_pfw")
            k.e("s_mul_i32 s68, s70, 168")
            k.e("s_sub_u32 s71, s6, 4")
            k.e("s_mul_i32 s71, s71, 42")
            k.e("s_add_u32 s68, s68, s71")
            k.e("v_add_u32 v10, s68, v1")
            k.e("v_lshrrev_b32 v11, 2, v10")
            k.e("v_mul_u32_u24 v11, 896, v11")
            k.e("v_and_b32 v10, 3, v10")
            k.e("v_lshlrev_b32 v10, 7, v10")
            k.e("v_add_u32 v10, v10, v11")
            k.e("s_bfe_u32 s71, s69, 0x10001")
            k.e("s_mul_i32 s71, s71, 384")
            k.e("s_mov_b32 exec_hi, 0x3ff")
            k.e("buffer_load_dword v240, v10, s[32:35], s71 offen")
            k.lab("L_pfd")
            k.e("s_mov_b64 exec, -1")
        k.e("s_cmp_lg_u32 s6, 0")
        k.e("s_cbranch_scc1 L_tk1")
        k.e("s_mov_b32 s58, 0")
        k.e(f"s_waitcnt vmcnt({1 if PF0 else 0})")
        k.lab("L_tkl")
        k.e("v_readfirstlane_b32 s70, v8")
        k.e("s_add_u32 s58, s58, 1")
        k.e("s_cmp_lt_u32 s70, 32")
        k.e("s_cbranch_scc1 L_tkd")
        k.e("s_cmp_ge_u32 s58, 64")
        k.e("s_cbranch_scc1 L_tkd")
        k.e("s_add_u32 s69, s69, 1")
        k.e("s_and_b32 s69, s69, 7")
        k.e("s_lshl_b32 s64, s69, 5")
        k.e("s_add_u32 s64, s64, 16")
        k.e("v_mov_b32 v8, 1")
        k.e("s_mov_b64 exec, 1")
        k.e("buffer_atomic_add v8, v9, s[72:75], s64 offen sc0 sc1")
        k.e("s_mov_b64 exec, -1")
        k.e("s_waitcnt vmcnt(0)")
        k.e("s_branch L_tkl")
        k.lab("L_tkd")
        k.e("s_and_b32 s70, s70, 31")
        k.e("s_lshl_b32 s64, s70, 3")
        k.e("s_or_b32 s64, s64, s69")
        k.e("v_mov_b32 v8, s64")
        k.e("v_mov_b32 v9, 163832")
        k.e("ds_write_b32 v9, v8")
        k.e("s_waitcnt lgkmcnt(0)")
        k.lab("L_tk1")
        k.e("s_barrier")
        k.e("v_mov_b32 v9, 163832")
        k.e("ds_read_b32 v8, v9")
        k.e("s_waitcnt lgkmcnt(0)")
        k.e("v_readfirstlane_b32 s64, v8")
        k.nop(1)
        k.e("s_and_b32 s69, s64, 7")
        k.e("s_lshr_b32 s70, s64, 3")
    else:
        k.e("s_and_b32 s69, s2, 7")
        k.e("s_lshr_b32 s70, s2, 3")
    k.e("s_lshr_b32 s3, s69, 1")
    k.e("s_lshl_b32 s3, s3, 3")
    k.e("s_and_b32 s4, s70, 7")
    k.e("s_add_u32 s3, s3, s4")
    k.e("s_and_b32 s5, s69, 1")
    k.e("s_lshl_b32 s5, s5, 2")
    k.e("s_lshr_b32 s4, s70, 3")
    k.e("s_add_u32 s5, s5, s4")
    k.e("s_and_b32 s7, s3, 15")
    k.e("s_lshl_b32 s41, s5, 3")
    k.e("s_add_u32 s41, s41, s6")
    k.e("s_mul_i32 s42, s41, 28672")
    k.e("s_mul_i32 s43, s7, 56")
    k.e("s_cmp_eq_u32 s7, 15")
    k.e("s_cselect_b32 s4, 8, 0")
    k.e("s_sub_u32 s43, s43, s4")
    k.e("s_mul_i32 s50, s6, 21504")
    k.e("s_add_u32 s50, s50, s43")
    k.e("s_mul_i32 s51, s6, 172032")
    k.e("s_add_u32 s51, s51, s43")
    k.e("s_and_b32 s71, s70, 7")
    k.e("s_lshr_b32 s68, s70, 3")
    k.e("s_lshl_b32 s68, s68, 1")
    k.e("s_add_u32 s71, s71, s68")
    for _ in range(2):
        k.e("s_cmp_ge_u32 s71, 7")
        k.e("s_cselect_b32 s68, 7, 0")
        k.e("s_sub_u32 s71, s71, s68")
    k.e("s_mov_b32 s59, s71")
    k.e("s_mov_b32 s52, s71")
    k.e("s_waitcnt lgkmcnt(0)")
    k.stamp("pro")
    srd(k, 28, "s8", "s9", X_BYTES)
    k.e("s_cmp_ge_u32 s3, 16")
    k.e("s_cselect_b32 s32, s16, s10")
    k.e("s_cselect_b32 s33, s17, s11")
    k.e(f"s_mov_b32 s34, {W_BYTES}")
    k.e("s_mov_b32 s35, 0x20000")
    k.e("s_cselect_b32 s60, 0, 0x80000000")
    k.e(f"s_xor_b32 s60, s60, {hex(f2u(LOG2E))}")
    def w_dma():
        return ["s_lshl_b32 s64, s52, 13", "s_add_u32 s64, s64, s61", f"s_add_u32 m0, s64, {WKV}", "s_mul_i32 s68, s52, 172032",
                "s_add_u32 s68, s68, s50", "buffer_load_dwordx4 v5, s[32:35], s68 offen lds"] + cyc7("s52")
    def x_dma(i):
        sl = i % 3
        p = []
        for q in range(4):
            o = []
            if q == 0: o += [f"s_add_u32 m0, s40, {XS + sl*32768}", "s_lshl_b32 s65, s71, 7", "s_add_u32 s65, s65, s42"]
            else: o += [f"s_add_u32 m0, s40, {XS + sl*32768}", "s_add_u32 s65, s65, 6144"]
            o += [f"buffer_load_dwordx4 v{3 + (q&1)}, s[28:31], s65 offen offset:{q*1024} lds"]
            if q == 3: o += cyc7("s71")
            p.append(o)
        return p
    k.ex(w_dma())
    for p in x_dma(0): k.ex(p)
    k.ex(w_dma())
    k.e("s_barrier")
    srd(k, 36, "s26", "s27", WS_USED)
    srd(k, 52 + 20, "s24", "s25", 256)
    k.e("s_or_b32 s58, s2, s6")
    k.e("s_cmp_lg_u32 s58, 0")
    k.e("s_cbranch_scc1 L_nononce")
    k.e("s_memrealtime s[56:57]")
    k.e("s_waitcnt lgkmcnt(0)")
    k.e("s_or_b32 s56, s56, 1")
    k.e("v_mov_b32 v8, s56")
    k.e("v_mov_b32 v9, s57")
    k.e("v_mov_b32 v10, 0")
    k.e("s_mov_b64 exec, 1")
    k.e("buffer_store_dwordx2 v[8:9], v10, s[72:75], 0 offen sc1")
    k.e("s_mov_b64 exec, -1")
    k.lab("L_nononce")
    k.ex(w_dma())
    for p in x_dma(1): k.ex(p)
    srd(k, 44, "s20", "s21", 896)
    k.e("s_lshr_b32 s64, s4, 2")
    k.e("v_lshlrev_b32 v8, 1, v0")
    k.e("v_subrev_u32 v8, s64, v8")
    k.e("buffer_load_ushort v216, v8, s[44:47], 0 offen")
    k.stamp("pro")
    k.e("v_and_b32 v16, 31, v1")
    k.e("v_bfe_u32 v17, v1, 1, 3")
    k.e("v_lshrrev_b32 v18, 5, v1")
    k.e("v_lshlrev_b32 v19, 2, v18")
    k.e("v_xor_b32 v17, v17, v19")
    k.e("v_lshlrev_b32 v17, 4, v17")
    k.e("v_lshlrev_b32 v16, 7, v16")
    k.e("v_add_u32 v16, v16, v17")
    k.e("v_add_u32 v8, s40, v16")
    for f in (1, 2, 3): k.e(f"v_xor_b32 v{8+f}, {16*f}, v8")
    for f in range(4): k.e(f"v_add_u32 v{12+f}, 0x10000, v{8+f}")
    k.e("v_lshlrev_b32 v16, 5, v18")
    k.e("v_bfe_u32 v17, v1, 2, 2")
    k.e("v_add_u32 v16, v16, v17")
    k.e("v_bfe_u32 v19, v1, 4, 1")
    k.e("v_lshlrev_b32 v19, 5, v19")
    k.e("v_and_b32 v20, 3, v1")
    k.e("v_lshlrev_b32 v20, 3, v20")
    k.e("v_add_u32 v19, v19, v20")
    k.e("v_lshlrev_b32 v20, 7, v16")
    k.e("v_add_u32 v20, v20, v19")
    k.e("v_bfe_u32 v21, v1, 3, 1")
    k.e("v_lshlrev_b32 v21, 6, v21")
    k.e("v_add_u32 v20, v20, v21")
    k.e(f"v_add_u32 v232, {WKV}, v20")
    k.e("v_xor_b32 v233, 64, v232")
    k.e("v_add_u32 v232, s4, v232")
    k.e("v_add_u32 v233, s4, v233")
    k.e("v_lshlrev_b32 v20, 6, v16")
    k.e("v_add_u32 v20, v20, v19")
    k.e(f"v_add_u32 v234, {WQ}, v20")
    k.e("v_add_u32 v234, s4, v234")
    k.e("v_lshlrev_b32 v217, 6, v0")
    k.e(f"v_add_u32 v217, {WQ + 56}, v217")
    k.e("s_mul_i32 s64, s4, 7")
    k.e("v_subrev_u32 v217, s64, v217")
    k.e("s_mov_b32 s62, 0")
    k.e("s_mov_b32 s63, -1")
    k.e("v_mov_b32 v235, 0")
    if "notlb" not in EXP:
        k.e("s_lshl_b32 s64, s3, 18"); k.e("s_lshl_b32 s66, s5, 15"); k.e("s_add_u32 s64, s64, s66")
        k.e("s_lshl_b32 s66, s41, 16"); k.e(f"s_add_u32 s66, s66, {OF_OFF}")
        k.e("s_and_b32 s67, s6, 3")
        k.e("s_cmp_eq_u32 s67, 1"); k.e("s_cselect_b32 s64, s66, s64")
        k.e("s_cmp_eq_u32 s67, 2"); k.e(f"s_cselect_b32 s64, {FL1_OFF}, s64")
        k.e("s_lshl_b32 s66, s69, 19"); k.e(f"s_add_u32 s66, s66, {OF_OFF}")
        k.e("s_cmp_eq_u32 s67, 3"); k.e("s_cselect_b32 s64, s66, s64")
        k.e("buffer_load_dword v219, v235, s[36:39], s64 offen sc1")
        k.e("s_mul_i32 s53, s69, 229376")
        srd(k, 64, "s22", "s23", OUT_BYTES)
        k.e("buffer_load_dword v219, v235, s[64:67], s53 offen")
    k.e("s_lshr_b32 s7, s6, 1")
    k.e("s_and_b32 s96, s6, 1")
    k.e("s_lshl_b32 s64, s96, 14")
    k.e("v_add_u32 v244, s64, v2")
    k.e("v_add_u32 v245, s40, v2")
    k.e("s_lshl_b32 s66, s7, 12")
    k.e("s_add_u32 s66, s66, 98304")
    k.e("v_add_u32 v248, s66, v2")
    k.e("v_and_b32 v249, 7, v1")
    k.e("v_lshlrev_b32 v249, 3, v249")
    k.e("s_lshl_b32 s97, s3, 7")
    k.e(f"s_add_u32 s97, s97, {FL1_OFF}")
    k.e("s_lshl_b32 s98, s3, 18")
    k.e("s_add_u32 s98, s98, s40")
    k.e("s_add_u32 s99, s5, 1")
    k.e("s_mov_b32 s49, 0")
    k.e("s_lshl_b32 s54, s69, 2")
    k.e("s_and_b32 s55, s70, 3")
    k.e("s_add_u32 s54, s54, s55")
    k.e("s_lshr_b32 s55, s70, 2")
    k.e("v_lshrrev_b32 v251, 3, v1")
    k.e("v_bfe_u32 v16, v251, 1, 1")
    k.e("v_lshlrev_b32 v16, 2, v16")
    k.e("v_and_b32 v17, 7, v1")
    k.e("v_xor_b32 v16, v16, v17")
    k.e("v_lshlrev_b32 v16, 4, v16")
    k.e("v_mul_u32_u24 v251, 896, v251")
    k.e("v_add_u32 v251, v251, v16")
    k.e("s_mul_i32 s100, s55, 112")
    k.e("s_mul_i32 s101, s6, 7168")
    k.e("s_add_u32 s100, s100, s101")
    k.e("s_mov_b32 s101, s100")
    k.e(f"s_add_u32 s43, s61, {WOB + 7*8192}")
    srd(k, 44, "s18", "s19", WO_BYTES)
    k.e("s_lshl_b32 s48, s3, 18")
    k.e("s_lshl_b32 s53, s5, 15")
    k.e("s_add_u32 s48, s48, s53")
    k.e("s_add_u32 s48, s48, s40")
    k.e("s_add_u32 s67, s40, 65536")
    k.e("v_add_u32 v238, s67, v2")
    k.e("s_lshl_b32 s66, s6, 11")
    k.e("s_add_u32 s66, s66, 98304")
    k.e("v_add_u32 v218, s66, v2")
    k.e("v_and_b32 v240, 31, v1")
    k.e("v_mov_b32 v239, 0x3f803f80")
    k.e("v_cmp_eq_u32 vcc, 28, v240")
    k.nop(2)
    k.e("v_cndmask_b32 v239, 0, v239, vcc")
    XR, QA, KA, VA, WF = 64, 16, 32, 48, 176
    KF, VF, QF = 200, 208, 220
    k.stamp("pro")
    WF = 176
    def R(c, vm):
        sl = c % 3
        k.e(f"s_waitcnt vmcnt({vm})")
        k.stamp("pro")
        xb = 8 if sl < 2 else 12
        xo = (sl % 2) * 32768
        for f in range(4):
            k.e(f"ds_read_b128 {vr(XR+(c*4+f)*4)}, v{xb+f} offset:{xo}")
        pieces = []
        if c + 3 <= 6: pieces += x_dma(c + 3)
        if c == 4:
            for n in range(4):
                pieces.append([f"s_add_u32 m0, s40, {WQ + n*1024}", f"s_add_u32 s68, s51, {n*16*2688}", "buffer_load_dwordx4 v6, s[32:35], s68 offen lds"])
            pieces.append(["buffer_load_dwordx2 v[236:237], v235, s[72:75], 0 offen sc1"])
        return pieces
    def wbase():
        k.e("s_lshl_b32 s64, s59, 13")
        k.e("v_add_u32 v242, s64, v232")
        k.e("v_add_u32 v243, s64, v233")
        k.ex(cyc7("s59"))
    def treads(g):
        c, f = divmod(g, 4)
        if f == 0:
            k.e("s_lshl_b32 s64, s59, 13")
            k.e(f"v_add_u32 v{242 + 4*(c&1)}, s64, v232")
            k.e(f"v_add_u32 v{243 + 4*(c&1)}, s64, v233")
            k.ex(cyc7("s59"))
        for seg in range(2):
            for s_ in range(2):
                r = WF + (g % 3)*8 + seg*4 + s_*2
                k.e(f"ds_read_b64_tr_b16 v[{r}:{r+1}], v{242 + 4*(c&1) + seg} offset:{(8*f+4*s_)*128}")
    waits = [6, 6, 5, 5, 5, 5, 5]
    if "notlb" not in EXP: waits = [8, 8, 5, 5, 5, 5, 5]
    for c in range(7):
        sl = c % 3
        k.e(f"s_waitcnt vmcnt({waits[c]})")
        k.stamp("pro")
        if c <= 5: k.e("s_barrier")
        xb = 8 if sl < 2 else 12
        xo = (sl % 2) * 32768
        if c == 0: treads(0)
        for f in range(4):
            k.e(f"ds_read_b128 {vr(XR+(c*4+f)*4)}, v{xb+f} offset:{xo}")
        if c == 0: treads(1)
        pend = []
        if c <= 3: pend.append(w_dma())
        if c + 2 <= 6: pend += x_dma(c + 2)
        if c == 5:
            for n in range(4):
                pend.append([f"s_add_u32 m0, s40, {WQ + n*1024}", f"s_add_u32 s68, s51, {n*16*2688}", "buffer_load_dwordx4 v6, s[32:35], s68 offen lds"])
        if c == 4:
            pend.append(["buffer_load_dwordx2 v[236:237], v235, s[72:75], 0 offen sc1"])
        n = len(pend); cuts = [(n*i)//4 for i in range(5)]
        per = [pend[cuts[i]:cuts[i+1]] for i in range(4)]
        for p in per[0]: k.ex(p)
        for f in range(4):
            g = c*4 + f
            if g + 2 < 28: treads(g + 2)
            if f == 0:
                later = (4 + 4) if c == 0 else (4 if g + 2 < 28 else 0)
            else:
                later = (4 if g + 1 < 28 else 0) + (4 if g + 2 < 28 else 0)
            k.e(f"s_waitcnt lgkmcnt({later})")
            x = XR + g*4; w = WF + (g % 3)*8
            z = "0" if g == 0 else None
            k.e(mfma(KA, w, x, z))
            k.e(mfma(VA, x, w+4, z))
            if f < 3:
                for p in per[f + 1]: k.ex(p)
    k.stamp("all" if "q2" not in STAMPSET else "q2")
    def qreads(n):
        c, f = divmod(n, 4)
        if f == 0:
            k.e("s_lshl_b32 s64, s59, 12")
            k.e(f"v_add_u32 v{242 + 4*(c&1)}, s64, v234")
            k.ex(cyc7("s59"))
        for s_ in range(2):
            r = WF + (n & 3)*4 + s_*2
            k.e(f"ds_read_b64_tr_b16 v[{r}:{r+1}], v{242 + 4*(c&1)} offset:{(8*f + 4*s_)*64}")
    k.e("s_waitcnt vmcnt(4)")
    k.e("s_mov_b32 s58, 0")
    k.lab("L_nonce")
    k.e("v_readfirstlane_b32 s56, v236")
    k.e("v_readfirstlane_b32 s57, v237")
    k.e("s_add_u32 s58, s58, 1")
    k.e(f"s_cmp_ge_u32 s58, {SPIN_MAX}")
    k.e("s_cbranch_scc1 L_nonce_ok")
    k.e("s_cmp_lg_u32 s56, 0")
    k.e("s_cbranch_scc1 L_nonce_ok")
    k.e("buffer_load_dwordx2 v[236:237], v235, s[72:75], 0 offen sc1")
    k.e("s_waitcnt vmcnt(0)")
    k.e("s_branch L_nonce")
    k.lab("L_nonce_ok")
    srd(k, 72, "s12", "s13", WO_BYTES)
    k.e("s_mov_b32 s64, 0xf0000000")
    k.e("s_mov_b32 s65, 0xf0000000")
    k.nop(2)
    k.e("s_mov_b64 exec, s[62:63]")
    for i in (12,13,14): k.e(f"v_mov_b32 v{KA+i}, 1.0")
    k.e(f"v_mov_b32 v{KA+15}, 0")
    k.e("s_mov_b64 exec, -1")
    for i in range(8): k.e(f"v_cvt_pk_bf16_f32 v{KF+i}, v{KA+2*i}, v{KA+2*i+1}")
    k.e(f"buffer_store_dwordx4 {vr(KF)}, v2, s[36:39], s48 offen sc1")
    k.e(f"buffer_store_dwordx4 {vr(KF+4)}, v2, s[36:39], s48 offen offset:1024 sc1")
    for i in range(8): k.e(f"v_cvt_pk_bf16_f32 v{VF+i}, v{VA+2*i}, v{VA+2*i+1}")
    k.e("s_mov_b64 exec, s[64:65]")
    for i in range(8): k.e(f"v_mov_b32 v{VF+i}, v239")
    k.e("s_mov_b64 exec, -1")
    k.e(f"buffer_store_dwordx4 {vr(VF)}, v2, s[36:39], s48 offen offset:2048 sc1")
    k.e(f"buffer_store_dwordx4 {vr(VF+4)}, v2, s[36:39], s48 offen offset:3072 sc1")
    for i, r in enumerate((KF, KF+4, VF, VF+4)): k.e(f"ds_write_b128 v238, {vr(r)} offset:{i*1024}")
    k.stamp("q2")
    k.e("s_waitcnt vmcnt(4)")
    k.e("ds_write_b16 v217, v216")
    k.e("s_waitcnt lgkmcnt(0)")
    k.e("s_barrier")
    k.stamp("q2")
    qreads(0); qreads(1); qreads(2)
    for n in range(28):
        if n + 3 < 28: qreads(n + 3)
        later = 2 * min(3, 27 - n)
        k.e(f"s_waitcnt lgkmcnt({later})")
        k.e(mfma(QA, WF + (n & 3)*4, XR + n*4, "0" if n == 0 else None))
    k.stamp("all" if "q2" not in STAMPSET else "q2")
    QR, OA, OB, S0, S1, PR, KR, VR, ST = 16, 32, 48, 64, 80, 96, 104, 120, 136
    GS = 250
    k.e(f"s_mov_b32 s64, {hex(f2u(CSCALE))}")
    k.e("v_mov_b32 v6, v244")
    k.e("v_mov_b32 v7, v245")
    k.e("v_add_u32 v3, 65536, v244")
    k.e("v_mov_b32 v4, v244")
    k.e("v_mov_b32 v5, v245")
    k.e("v_mov_b32 v9, v248")
    k.e("v_mov_b32 v10, v249")
    k.e("v_mov_b32 v11, v251")
    k.nop(3)
    k.e(f"v_mov_b32 v12, v{QA+12}")
    k.e(f"v_mov_b32 v{GS}, v{QA+12}")
    for i in range(12): k.e(f"v_mul_f32 v{QA+i}, s64, v{QA+i}")
    k.e(f"v_permlane32_swap_b32 v12, v{GS}")
    for i in range(6): k.e(f"v_cvt_pk_bf16_f32 v{QF+i}, v{QA+2*i}, v{QA+2*i+1}")
    k.e(f"v_mov_b32 v{QF+6}, 0")
    k.e(f"v_mov_b32 v{QF+7}, 0")
    k.e("s_mov_b32 exec_hi, 0")
    k.e(f"v_mul_f32 v{QA+12}, s64, v{QA+12}")
    k.e(f"v_mul_f32 v{QA+13}, s64, v{QA+13}")
    k.e(f"v_mul_f32 v{QA+14}, s64, v{QA+14}")
    k.e(f"v_mul_f32 v{QA+15}, s64, v{QA+15}")
    k.e(f"v_cvt_pk_bf16_f32 v{QF+6}, v{QA+12}, v{QA+13}")
    k.e(f"v_cvt_pk_bf16_f32 v{QF+7}, v{QA+14}, v{QA+15}")
    k.e("s_mov_b64 exec, -1")
    SS = 96
    k.e(f"v_mul_f32 v{GS}, s60, v{GS}")
    k.e(f"v_exp_f32 v{GS}, v{GS}")
    k.e(mfma(SS, KF, QF, "0"))
    k.e(mfma(SS, KF+4, QF+4))
    k.e(f"v_add_f32 v{GS}, 1.0, v{GS}")
    k.e(f"v_rcp_f32 v{GS}, v{GS}")
    k.e(f"ds_write_b128 v218, {vr(QF)}")
    k.nop(9)
    k.e(f"v_max3_f32 v12, v{SS}, v{SS+1}, v{SS+2}")
    k.e(f"v_max3_f32 v13, v{SS+3}, v{SS+4}, v{SS+5}")
    k.e(f"v_max3_f32 v12, v12, v{SS+6}, v{SS+7}")
    k.e(f"v_max3_f32 v13, v13, v{SS+8}, v{SS+9}")
    k.e(f"v_max3_f32 v12, v12, v{SS+10}, v{SS+11}")
    k.e(f"v_max3_f32 v13, v13, v{SS+12}, v{SS+13}")
    k.e(f"v_max3_f32 v12, v12, v{SS+14}, v{SS+15}")
    k.e("v_max_f32 v12, v12, v13")
    k.e("v_mov_b32 v13, v12")
    k.nop(2)
    k.e("v_permlane32_swap_b32 v12, v13")
    k.nop(1)
    k.e("v_max_f32 v12, v12, v13")
    shift_split(k, 12, 13, 14, 15, QF+6, QF+7)
    k.e(f"ds_write_b128 v218, {vr(QF+4)} offset:1024")
    k.e("s_waitcnt vmcnt(0) lgkmcnt(0)")
    k.e("s_barrier")
    k.e("s_cmp_lg_u32 s6, 0")
    k.e("s_cbranch_scc1 L_noflag1")
    k.e("s_lshl_b32 s66, s3, 7")
    k.e("s_lshl_b32 s67, s5, 3")
    k.e("s_add_u32 s66, s66, s67")
    k.e(f"s_add_u32 s66, s66, {FL1_OFF}")
    k.e("v_mov_b32 v236, s56")
    k.e("v_mov_b32 v237, s57")
    k.e("s_mov_b64 exec, 1")
    k.e("buffer_store_dwordx2 v[236:237], v235, s[36:39], s66 offen sc1")
    k.e("s_mov_b64 exec, -1")
    k.lab("L_noflag1")
    k.stamp("all" if "q2" not in STAMPSET else "q2")
    k.e(f"ds_read_b128 {vr(QR)}, v9")
    k.e(f"ds_read_b128 {vr(QR+4)}, v9 offset:1024")
    k.e(f"ds_read_b128 {vr(KR)}, v3")
    k.e(f"ds_read_b128 {vr(KR+4)}, v3 offset:1024")
    k.e(f"ds_read_b128 {vr(QR+8)}, v9 offset:2048")
    k.e(f"ds_read_b128 {vr(QR+12)}, v9 offset:3072")
    k.e("s_waitcnt lgkmcnt(2)")
    k.e(mfma(S0, KR, QR, "0"))
    k.e(mfma(S0, KR+4, QR+4))
    k.e("s_waitcnt lgkmcnt(0)")
    k.nop(11)
    def Lload():
        if "noload" in EXP: return ["s_add_u32 s99, s99, 1"]
        return ["s_and_b32 s53, s99, 7", "s_lshl_b32 s53, s53, 15", "s_add_u32 s53, s53, s98", "s_add_u32 s99, s99, 1"] + \
               [f"buffer_load_dwordx4 {vr(ST+4*i)}, v2, s[36:39], s53 offen offset:{i*1024} sc1" for i in range(4)]
    def slot(Sbuf, pv, sq, extra, pvmode="acc"):
        e = [f"v_exp_f32 v{Sbuf+i}, v{Sbuf+i}" for i in range(16)]
        c = [f"v_cvt_pk_bf16_f32 v{PR+i}, v{Sbuf+2*i}, v{Sbuf+2*i+1}" for i in range(8)]
        O, V = pv; Sd, Kb, Qb = sq
        mPV0 = mfma(O, V, PR, "0" if pvmode == "zero" else None); mPV1 = mfma(O, V+4, PR+4)
        if pvmode == "skip": mPV0 = "s_nop 0"; mPV1 = "s_nop 0"
        mS0 = mfma(Sd, Kb, Qb, "0"); mS1 = mfma(Sd, Kb+4, Qb+4)
        seq = [mPV0, e[0], e[1], e[2], c[0], e[3], e[4], mS0, c[1], e[5], e[6], e[7], c[2], e[8], mS1, e[9], c[3],
               e[10], e[11], e[12], mPV1, e[13], c[4], e[14], c[5], e[15], c[6], c[7]]
        if "sfirst" in VAR:
            seq = [mPV0, e[0], e[1], e[2], mS0, c[0], e[3], e[4], e[5], mS1, c[1], e[6], e[7], c[2], e[8], e[9], c[3],
                   e[10], mPV1, e[11], e[12], e[13], c[4], e[14], c[5], e[15], c[6], c[7]]
        for pos, x in enumerate(seq):
            k.ex(extra.get(pos, []))
            k.e(x)
    def bdma():
        if "nowo" in EXP: return []
        return ["s_mov_b32 m0, s43", "s_add_u32 s43, s43, 8192", "buffer_load_dwordx4 v11, s[44:47], s101 offen lds", f"s_add_u32 s101, s101, {8*7168}"]
    def wr(i):
        if "nowrite" in EXP: return []
        return [f"ds_write_b128 v5, {vr(ST+4*i)} offset:{i*1024}"]
    def Laddr(): return ["s_and_b32 s53, s99, 7", "s_lshl_b32 s53, s53, 15", "s_add_u32 s53, s53, s98", "s_add_u32 s99, s99, 1", "s_add_u32 s68, s67, s40"]
    def Lp(i):
        if "noload" in EXP: return []
        return ["s_mov_b32 m0, s68", "s_nop 0", f"buffer_load_dwordx4 v2, s[36:39], s53 offen offset:{i*1024} sc1 lds"]
    def rot(): return ["s_add_u32 s67, s67, 32768", "s_cmp_eq_u32 s67, 98304", "s_cselect_b32 s67, 0, s67"]
    def body(kind):
        for t in range(4):
            kb = KR + (t & 1) * 8; kn = KR + ((t + 1) & 1) * 8
            vb = VR + (t & 1) * 8; vp = VR + ((t + 1) & 1) * 8
            exA = {}; exB = {0: ["s_waitcnt lgkmcnt(0)"]}
            def add(d, p, l): d.setdefault(p, []); d[p] = d[p] + l
            if t < 3:
                rk = [f"ds_read_b128 {vr(kn)}, v3 offset:{(t+1)*4096}", f"ds_read_b128 {vr(kn+4)}, v3 offset:{(t+1)*4096+1024}"]
            else:
                rk = [f"ds_read_b128 {vr(kn)}, v4", f"ds_read_b128 {vr(kn+4)}, v4 offset:1024"]
            rv = [f"ds_read_b128 {vr(vb)}, v3 offset:{t*4096+2048}", f"ds_read_b128 {vr(vb+4)}, v3 offset:{t*4096+3072}"]
            late_k = (kind == "first" and t == 3)
            if kind == "last":
                if t == 0: add(exA, 0, ["s_barrier"])
                def adma(n): return [f"s_add_u32 m0, s61, {WOB + n*8192}", f"s_add_u32 s64, s100, {n*8*7168}", "buffer_load_dwordx4 v11, s[72:75], s64 offen lds"]
                if "aspread" in VAR or True:
                    add(exA, 12, adma(2*t))
                    if 2*t + 1 < 7: add(exB, 12, adma(2*t + 1))
            if kind == "first" and t == 2:
                add(exA, 0, k.stamp_list("loop") + poll_list("L_p1", 10, "s97", 152, True) + k.stamp_list("loop") + Laddr() + Lp(0))
                add(exA, 8, Lp(1)); add(exA, 16, Lp(2)); add(exA, 24, Lp(3) + rot())
            if late_k:
                exB[0] = ["s_waitcnt vmcnt(0) lgkmcnt(0)", "s_barrier"] + rk
                add(exB, 2, Laddr() + Lp(0)); add(exB, 7, ["s_waitcnt lgkmcnt(0)"])
                add(exB, 9, Lp(1)); add(exB, 15, Lp(2)); add(exB, 21, Lp(3) + rot())
                add(exA, 5, [rv[0]]); add(exA, 8, [rv[1]])
            else:
                if "vfirst" in VAR:
                    add(exA, 1, [rv[0]]); add(exA, 3, [rv[1]]); add(exA, 5, [rk[0]]); add(exA, 8, [rk[1]])
                    exB[0] = ["s_waitcnt lgkmcnt(2)"]; add(exB, 7, ["s_waitcnt lgkmcnt(0)"])
                elif "early" in VAR:
                    add(exA, 1, [rv[0], rv[1]]); add(exA, 2, [rk[0], rk[1]])
                    exB[0] = ["s_waitcnt lgkmcnt(0)"]
                elif "late" in VAR:
                    add(exA, 9, [rv[0]]); add(exA, 12, [rv[1]]); add(exA, 17, [rk[0]]); add(exA, 22, [rk[1]])
                    exB[0] = ["s_waitcnt lgkmcnt(2)"]; add(exB, 7, ["s_waitcnt lgkmcnt(0)"])
                else:
                    add(exA, 1, [rk[0]]); add(exA, 3, [rk[1]]); add(exA, 5, [rv[0]]); add(exA, 8, [rv[1]])
            if kind == "mid1" and t == 0:
                add(exA, 12, bdma()); add(exB, 12, bdma());
            if kind == "mid1" and t == 1:
                add(exA, 12, bdma()); add(exB, 12, bdma())
            if kind in ("mid", "mid1", "c6"):
                m = kind != "c6"
                if t == 0 and kind in ("mid", "c6"):
                    add(exA, 14, Lp(2)); add(exB, 14, Lp(3) + rot())
                if t == 2 and kind == "mid": add(exA, 14, bdma())
                if t == 3:
                    nyoung = 1 if kind == "mid" else (4 if kind == "mid1" else 0)
                    add(exA, 0, [f"s_waitcnt vmcnt({nyoung}) lgkmcnt(0)"] + ([] if "nobar" in EXP else ["s_barrier"]))
                    if m: add(exA, 10, Laddr() + Lp(0)); add(exB, 10, Lp(1))
                    if not m:
                        add(exA, 10, ["v_lshrrev_b32 v12, 3, v1", "v_lshlrev_b32 v12, 6, v12", "v_and_b32 v13, 7, v1", "v_add_u32 v12, v12, v13", "v_mul_u32_u24 v12, 896, v12",
                                      "buffer_load_dword v240, v12, s[72:75], s100 offen"])
                        add(exB, 10, ["buffer_load_dword v241, v12, s[72:75], s100 offen offset:124"])
            if t == 3 and kind != "last":
                add(exB, 20, ["v_mov_b32 v3, v4", "s_add_u32 s49, s49, 32768", "s_cmp_eq_u32 s49, 98304", "s_cselect_b32 s49, 0, s49"])
                add(exB, 22, ["v_add_u32 v4, s49, v6"])
                if kind == "mid":
                    add(exB, 24, ["s_add_u32 s48, s48, 1"]); add(exB, 26, ["s_cmp_lt_u32 s48, 6"])
            fa = "skip" if (kind == "first" and t == 0) else "zero" if (kind == "first" and t == 1) else "acc"
            fb = "zero" if (kind == "first" and t == 0) else "acc"
            slot(S0, (OB, vp), (S1, kb, QR+8), exA, fa)
            slot(S1, (OA, vb), (S0, kn, QR), exB, fb)
    if "prio" in EXP:
        k.e("s_cmp_lt_u32 s6, 4")
        k.e("s_cbranch_scc1 L_noprio")
        k.e("s_setprio 1")
        k.lab("L_noprio")
    if "prio2" in EXP:
        k.e("s_cmp_ge_u32 s6, 4")
        k.e("s_cbranch_scc1 L_noprio")
        k.e("s_setprio 1")
        k.lab("L_noprio")
    k.e("s_mov_b32 s67, 0")
    body("first")
    k.stamp("loop2")
    body("mid1")
    k.e("s_mov_b32 s48, 2")
    k.e(".p2align 6")
    k.lab("L_loop")
    body("mid")
    k.e("s_cbranch_scc1 L_loop")
    k.stamp("loop2")
    body("c6")
    k.stamp("loop2")
    body("last")
    k.stamp()
    k.nop(2)
    k.e(mfma(OB, VR+8, PR))
    k.e(mfma(OB, VR+12, PR+4))
    k.e("v_add_u32 v11, s40, v2")
    k.e("s_xor_b32 s29, s6, 1")
    k.e("s_lshl_b32 s29, s29, 12")
    k.e("v_add_u32 v12, s29, v2")
    k.e("s_lshl_b32 s29, s41, 16")
    k.e("s_lshl_b32 s30, s3, 11")
    k.e("s_add_u32 s29, s29, s30")
    k.e(f"s_add_u32 s29, s29, {OF_OFF}")
    k.e("s_barrier")
    k.nop(4)
    k.e("s_cmp_eq_u32 s96, 0")
    k.e("s_cbranch_scc0 L_x1")
    for i in range(4): k.e(f"ds_write_b128 v11, {vr(OB+4*i)} offset:{i*1024}")
    k.e("s_waitcnt lgkmcnt(0)")
    k.e("s_barrier")
    for i in range(4): k.e(f"ds_read_b128 {vr(S0+4*i)}, v12 offset:{i*1024}")
    for i in range(16):
        if i % 4 == 0: k.e(f"s_waitcnt lgkmcnt({3 - i//4})")
        k.e(f"v_add_f32 v{OA+i}, v{OA+i}, v{S0+i}")
    k.e("s_branch L_xd")
    k.lab("L_x1")
    for i in range(4): k.e(f"ds_write_b128 v11, {vr(OA+4*i)} offset:{i*1024}")
    k.e("s_waitcnt lgkmcnt(0)")
    k.e("s_barrier")
    for i in range(4): k.e(f"ds_read_b128 {vr(S0+4*i)}, v12 offset:{i*1024}")
    for i in range(16):
        if i % 4 == 0: k.e(f"s_waitcnt lgkmcnt({3 - i//4})")
        k.e(f"v_add_f32 v{OA+i}, v{OB+i}, v{S0+i}")
    k.lab("L_xd")
    k.e("s_mov_b32 s59, 0")
    k.lab("L_norm")
    k.e("s_mov_b32 s64, 0x71800000")
    k.e(f"v_mov_b32 v13, v{OA+12}")
    k.e(f"v_mov_b32 v14, v{OA+12}")
    k.e(f"v_maximum3_f32 v15, |v{OA}|, |v{OA+1}|, |v{OA+2}|")
    k.e(f"v_maximum3_f32 v15, |v{OA+3}|, |v{OA+4}|, v15")
    k.e("v_permlane32_swap_b32 v13, v14")
    for i in range(5, 15, 2): k.e(f"v_maximum3_f32 v15, |v{OA+i}|, |v{OA+i+1}|, v15")
    k.e("v_rcp_f32 v13, v14")
    k.e(f"v_maximum3_f32 v15, |v{OA+15}|, |v14|, v15")
    k.e(f"v_mul_f32 v13, v13, v{GS}")
    k.e("v_cmp_nle_f32 vcc, v15, s64")
    for i in range(12): k.e(f"v_mul_f32 v{OA+i}, v{OA+i}, v13")
    k.e("s_cmp_lg_u32 s59, 0")
    k.e("s_cbranch_scc1 L_norm_ok")
    k.e("s_cmp_lg_u64 vcc, 0")
    k.e("s_cbranch_scc1 L_fallback")
    k.lab("L_norm_ok")
    for i in range(12, 16): k.e(f"v_mul_f32 v{OA+i}, v{OA+i}, v13")
    k.e("s_mov_b64 exec, s[62:63]")
    for i in (12,13,14,15): k.e(f"v_mov_b32 v{OA+i}, 0")
    k.e("s_mov_b64 exec, -1")
    for i in range(4): k.e(f"v_cvt_pk_bf16_f32 v{PR+i}, v{OA+2*i}, v{OA+2*i+1}")
    k.stamp("tail")
    k.e(f"buffer_store_dwordx4 {vr(PR)}, v2, s[36:39], s29 offen sc1")
    for i in range(4, 8): k.e(f"v_cvt_pk_bf16_f32 v{PR+i}, v{OA+2*i}, v{OA+2*i+1}")
    k.e(f"buffer_store_dwordx4 {vr(PR+4)}, v2, s[36:39], s29 offen offset:1024 sc1")
    k.e("s_lshr_b32 s7, s6, 2")
    k.e("s_and_b32 s28, s6, 3")
    k.e("v_lshrrev_b32 v5, 5, v1")
    k.e("v_lshlrev_b32 v5, 2, v5")
    k.e("v_bfe_u32 v6, v1, 2, 2")
    k.e("v_add_u32 v5, v5, v6")
    k.e("v_lshlrev_b32 v5, 7, v5")
    k.e("v_bfe_u32 v7, v1, 4, 1")
    k.e("v_lshlrev_b32 v7, 1, v7")
    k.e("v_bfe_u32 v8, v1, 1, 1")
    k.e("v_add_u32 v7, v7, v8")
    k.e("v_bfe_u32 v8, v6, 1, 1")
    k.e("v_lshlrev_b32 v8, 2, v8")
    k.e("v_xor_b32 v7, v7, v8")
    k.e("v_lshlrev_b32 v7, 4, v7")
    k.e("v_add_u32 v5, v5, v7")
    k.e("v_and_b32 v7, 1, v1")
    k.e("v_lshlrev_b32 v7, 3, v7")
    k.e("v_add_u32 v5, v5, v7")
    k.e("v_xor_b32 v6, 64, v5")
    k.e("s_mul_i32 s29, s28, 28672")
    k.e(f"s_add_u32 s29, s29, {WOB}")
    k.e("v_add_u32 v5, s29, v5")
    k.e("v_add_u32 v6, s29, v6")
    k.e("v_mov_b32 v13, 0")
    k.e("v_and_b32 v10, 31, v1")
    k.e("v_lshlrev_b32 v11, 3, v10")
    k.e("s_lshr_b32 s66, s54, 2")
    k.e("s_lshl_b32 s66, s66, 8")
    k.e(f"s_add_u32 s66, s66, {FL2_OFF}")
    k.e("s_lshl_b32 s32, s54, 1")
    k.e("s_add_u32 s32, s32, s7")
    k.e("s_lshl_b32 s33, s32, 16")
    k.e("s_lshl_b32 s34, s28, 14")
    k.e("s_add_u32 s33, s33, s34")
    k.e(f"s_add_u32 s33, s33, {OF_OFF}")
    k.e("s_lshl_b32 s29, s7, 15")
    k.e("s_lshl_b32 s30, s28, 12")
    k.e("s_add_u32 s29, s29, s30")
    k.e("v_add_u32 v16, s29, v2")
    k.e("s_bfe_u32 s29, s6, 0x10001")
    k.e("s_and_b32 s30, s6, 1")
    k.e("s_lshl_b32 s31, s7, 15")
    k.e("s_lshl_b32 s34, s29, 14")
    k.e("s_add_u32 s31, s31, s34")
    k.e("s_lshl_b32 s34, s30, 11")
    k.e("s_add_u32 s31, s31, s34")
    k.e("v_add_u32 v17, s31, v2")
    k.e("v_mul_u32_u24 v18, 896, v10")
    k.e("v_lshrrev_b32 v12, 5, v1")
    k.e("v_lshlrev_b32 v12, 4, v12")
    k.e("v_add_u32 v18, v18, v12")
    k.e("s_lshl_b32 s31, s29, 6")
    k.e("s_lshl_b32 s34, s30, 5")
    k.e("s_add_u32 s31, s31, s34")
    k.e("v_add_u32 v12, s31, v12")
    k.e("v_cmp_gt_u32 vcc, 112, v12")
    k.e("s_mul_i32 s34, s55, 112")
    k.e("s_add_u32 s31, s31, s34")
    k.e("s_mul_i32 s34, s32, 28672")
    k.e("s_add_u32 s31, s31, s34")
    k.e("v_mov_b32 v19, 0x7fffffff")
    k.e("v_cndmask_b32 v18, v19, v18, vcc")
    srd(k, 48, "s22", "s23", OUT_BYTES)
    k.stamp("tail")
    k.e("s_waitcnt vmcnt(0)")
    k.stamp("tail")
    k.e("s_barrier")
    k.stamp()
    k.e("s_cmp_lg_u32 s6, 0")
    k.e("s_cbranch_scc1 L_noflag2")
    k.e("s_lshl_b32 s64, s5, 8")
    k.e("s_lshl_b32 s67, s3, 3")
    k.e("s_add_u32 s64, s64, s67")
    k.e(f"s_add_u32 s64, s64, {FL2_OFF}")
    k.e("v_mov_b32 v14, s56")
    k.e("v_mov_b32 v15, s57")
    k.e("s_mov_b64 exec, 1")
    k.e("buffer_store_dwordx2 v[14:15], v13, s[36:39], s64 offen sc1")
    k.e("s_mov_b64 exec, -1")
    k.lab("L_noflag2")
    k.ex(poll_list("L_p2", 11, "s66", 14, False))
    k.stamp()
    OR = 64
    for i in range(16):
        if i % 4 == 0 and i > 0: k.e("s_add_u32 s33, s33, 4096")
        k.e(f"buffer_load_dwordx4 {vr(OR+4*i)}, v2, s[36:39], s33 offen offset:{(i%4)*1024} sc1")
    A0, A1, WF3 = 32, 48, 128
    steps = [(hh, m) for hh in range(8) for m in range(2)]
    def treads3(hh, m, buf):
        for ct in range(2):
            for s_ in range(2):
                r = WF3 + buf*8 + ct*4 + s_*2
                k.e(f"ds_read_b64_tr_b16 v[{r}:{r+1}], v{5+ct} offset:{(hh*28 + 16*m + 8*s_) * 128}")
    treads3(*steps[0], 0)
    for i, (hh, m) in enumerate(steps):
        if i + 1 < len(steps):
            treads3(*steps[i+1], (i+1) & 1)
            k.e(f"s_waitcnt vmcnt({15-i}) lgkmcnt(4)")
        else:
            k.e(f"s_waitcnt vmcnt({15-i}) lgkmcnt(0)")
        w = WF3 + (i & 1)*8
        z = "0" if i == 0 else None
        k.e(mfma(A0, w, OR+4*i, z))
        k.e(mfma(A1, w+4, OR+4*i, z))
    k.stamp()
    k.e("s_barrier")
    k.nop(10)
    for q in range(4): k.e(f"ds_write_b128 v16, {vr(A0+4*q)} offset:{q*1024}")
    for q in range(4): k.e(f"ds_write_b128 v16, {vr(A1+4*q)} offset:{16384+q*1024}")
    k.e("s_waitcnt lgkmcnt(0)")
    k.e("s_barrier")
    for kq in range(4):
        for q in range(2):
            k.e(f"ds_read_b128 {vr(64+kq*8+q*4)}, v17 offset:{kq*4096+q*1024}")
    k.e("s_waitcnt lgkmcnt(4)")
    for i in range(8): k.e(f"v_add_f32 v{64+i}, v{64+i}, v{72+i}")
    k.e("s_waitcnt lgkmcnt(0)")
    for i in range(8): k.e(f"v_add_f32 v{80+i}, v{80+i}, v{88+i}")
    for i in range(8): k.e(f"v_add_f32 v{64+i}, v{64+i}, v{80+i}")
    for i in range(4): k.e(f"v_cvt_pk_bf16_f32 v{20+i}, v{64+2*i}, v{65+2*i}")
    k.nop(2)
    k.e("v_permlane32_swap_b32 v20, v22")
    k.e("v_permlane32_swap_b32 v21, v23")
    k.nop(1)
    k.e("buffer_store_dwordx4 v[20:23], v18, s[48:51], s31 offen")
    k.stamp()
    k.stamp_flush()
    k.lab("L_end")
    k.e("s_endpgm")
    k.lab("L_fallback")
    k.e("s_mov_b32 s59, 1")
    k.e("s_and_b32 s30, s6, 1")
    k.e("s_cmp_eq_u32 s30, 0")
    k.e("s_cbranch_scc1 L_fbq")
    for i in range(8): k.e(f"v_mov_b32 v{QR+i}, v{QR+8+i}")
    k.lab("L_fbq")
    k.e("s_mov_b64 exec, s[62:63]")
    k.e(f"v_mov_b32 v{QR+6}, 0")
    k.e(f"v_mov_b32 v{QR+7}, 0")
    k.e("s_mov_b64 exec, -1")
    k.e("v_mov_b32 v13, 0xff800000")
    k.e("s_lshl_b32 s64, s3, 18")
    k.e("s_mov_b32 s30, 0")
    k.lab("L_fb1")
    k.e(f"buffer_load_dwordx4 {vr(KR)}, v2, s[36:39], s64 offen sc1")
    k.e(f"buffer_load_dwordx4 {vr(KR+4)}, v2, s[36:39], s64 offen offset:1024 sc1")
    k.e("s_waitcnt vmcnt(0)")
    k.e(mfma(S0, KR, QR, "0"))
    k.e(mfma(S0, KR+4, QR+4))
    k.nop(12)
    for i in range(0, 16, 2): k.e(f"v_max3_f32 v13, v13, v{S0+i}, v{S0+i+1}")
    k.e("s_add_u32 s64, s64, 4096")
    k.e("s_add_u32 s30, s30, 1")
    k.e("s_cmp_lt_u32 s30, 64")
    k.e("s_cbranch_scc1 L_fb1")
    k.e("v_mov_b32 v14, v13")
    k.nop(2)
    k.e("v_permlane32_swap_b32 v13, v14")
    k.nop(1)
    k.e("v_max_f32 v13, v13, v14")
    shift_split(k, 13, 14, 15, 12, QR+6, QR+7)
    for i in range(16): k.e(f"v_mov_b32 v{OA+i}, 0")
    k.e("s_lshl_b32 s64, s3, 18")
    k.e("s_mov_b32 s30, 0")
    k.lab("L_fb2")
    k.e(f"buffer_load_dwordx4 {vr(KR)}, v2, s[36:39], s64 offen sc1")
    k.e(f"buffer_load_dwordx4 {vr(KR+4)}, v2, s[36:39], s64 offen offset:1024 sc1")
    k.e(f"buffer_load_dwordx4 {vr(VR)}, v2, s[36:39], s64 offen offset:2048 sc1")
    k.e(f"buffer_load_dwordx4 {vr(VR+4)}, v2, s[36:39], s64 offen offset:3072 sc1")
    k.e("s_waitcnt vmcnt(0)")
    k.e(mfma(S0, KR, QR, "0"))
    k.e(mfma(S0, KR+4, QR+4))
    k.nop(12)
    for i in range(16): k.e(f"v_exp_f32 v{S0+i}, v{S0+i}")
    k.nop(1)
    for i in range(8): k.e(f"v_cvt_pk_bf16_f32 v{PR+i}, v{S0+2*i}, v{S0+2*i+1}")
    k.nop(2)
    k.e(mfma(OA, VR, PR))
    k.e(mfma(OA, VR+4, PR+4))
    k.e("s_add_u32 s64, s64, 4096")
    k.e("s_add_u32 s30, s30, 1")
    k.e("s_cmp_lt_u32 s30, 64")
    k.e("s_cbranch_scc1 L_fb2")
    k.nop(12)
    k.e("s_branch L_norm")
    return k.l, dict(vgpr=252, sgpr=100, lds=163840, block=512)

def main(outpath):
    l, m = gen()
    o = ["; gated mix of two full-softmax MHA blocks (B=1, S=2048, D=448, H=16), one fused launch. Generated by my own generator script.",
         "; Kernarg (80 bytes, pointers): 0 A_x, 8 A_wqkv, 16 A_wo, 24 B_x (unused by the reference), 32 B_wqkv, 40 B_wo, 48 gate_w, 56 d_out, 64 d_debug, 72 d_ws",
         "; 256 workgroups (one per CU), workgroup = (head-branch hb, 256-row block qt):",
         ";   phase 1  Q,K,V projection of the block (MFMA, LDS-DMA staged x / W), gate logit as a spare column of Wq,",
         ";            K/V fragments handed to the 7 sibling workgroups through d_ws (write-through stores + flag)",
         ";   phase 2  attention: S^T = K Q^T with the row shift folded into spare k-slots, exp2, P V with the row sum as a spare V column;",
         ";            the shift is the true row max over the workgroup's own first key tile, checked at the end, with a per-wave true-max fallback",
         ";   phase 3  output projection of a 64x56 tile over both branches (gate folded into the normalised O)",
         "; hand-off flags in d_ws carry a per-launch nonce published through d_debug",
         f"; @launch grid=(256,1,1) block=({m['block']},1,1) lds={m['lds']}",
         '.amdgcn_target "amdgcn-amd-amdhsa--gfx950"', ".text", f".globl {KNAME}", ".p2align 8", f".type {KNAME},@function"] + l
    acc = (m['vgpr'] + 3) // 4 * 4
    o += ['.section .rodata,"a"', ".p2align 6", f".amdhsa_kernel {KNAME}", f"  .amdhsa_next_free_vgpr {m['vgpr']}", f"  .amdhsa_next_free_sgpr {m['sgpr']}",
          f"  .amdhsa_accum_offset {acc}", "  .amdhsa_group_segment_fixed_size 0", "  .amdhsa_kernarg_size 80",
          "  .amdhsa_user_sgpr_count 2", "  .amdhsa_user_sgpr_kernarg_segment_ptr 1", "  .amdhsa_system_sgpr_workgroup_id_x 1", ".end_amdhsa_kernel"]
    open(outpath, "w").write("\n".join(o) + "\n")

if __name__ == "__main__":
    main(sys.argv[1] if len(sys.argv) > 1 else f"cdna_kernels/{NAME}.s")
```
